```python
import torch

def _softmax(x, axis=-1):
    return torch.softmax(x, dim=axis)
def _gelu(x):
    return torch.nn.functional.gelu(x, approximate="tanh")
def _silu(x):
    return torch.nn.functional.silu(x)
def _sigmoid(x):
    return torch.sigmoid(x)
def _layernorm(x, axis=-1, eps=1e-5):
    m = x.mean(dim=axis, keepdim=True)
    v = x.var(dim=axis, keepdim=True, unbiased=False)
    return (x - m) / torch.sqrt(v + eps)
def _scatter_add(tgt, idx, src, axis=0):
    return tgt.clone().index_add_(axis, idx, src)
def _segment_sum(src, seg, n):
    out = torch.zeros((n,) + src.shape[1:], dtype=src.dtype)
    return out.index_add_(0, seg, src)
def _pad(x, pw):
    flat = tuple(v for pair in reversed(pw) for v in pair)
    return torch.nn.functional.pad(x, flat)

kernel_name = 'gated_mix__softmax_full_mha__ssm_conv_s4d__prompt'

def setup_inputs():

    _w = (lambda a: (lambda t: t.to(torch.bfloat16) if t.is_floating_point() else t)(torch.as_tensor(a)))
    def _A_setup():
        B, S, D = 1, 2048, 512
        return {
            "x": _w((lambda *s: torch.randn(*s, dtype=torch.bfloat16) * 0.05)(B, S, D)),
            "wqkv": _w((lambda *s: torch.randn(*s, dtype=torch.bfloat16) * 0.8)(D, 3 * D)),
            "wo": _w((lambda *s: torch.randn(*s, dtype=torch.bfloat16) * 0.05)(D, D)),
        }
    _A_in = _A_setup()

    def _B_setup():
        Bsz, L, D, N = 1, 2048, 512, 128
        return {
            "u": _w((lambda *s: torch.randn(*s, dtype=torch.bfloat16) * 0.05)(Bsz, L, D)),
            "log_A_real": _w((lambda *s: torch.randn(*s, dtype=torch.bfloat16) * 6.4)(D, N) * 0.5),
            "A_imag": _w((lambda *s: torch.randn(*s, dtype=torch.bfloat16) * 0.1)(D, N) * 3.14),
            "C_real": _w((lambda *s: torch.randn(*s, dtype=torch.bfloat16) * 0.4)(D, N) / N ** 0.5),
            "C_imag": _w((lambda *s: torch.randn(*s, dtype=torch.bfloat16) * 0.4)(D, N) / N ** 0.5),
            "log_dt": _w((lambda *s: torch.randn(*s, dtype=torch.bfloat16) * 0.1)(D) * 0.5 - 4.0),
            "D_skip": _w((lambda *s: torch.randn(*s, dtype=torch.bfloat16) * 0.1)(D)),
        }
    _B_in = _B_setup()

    return {
        "A_x": _A_in["x"],
        "A_wqkv": _A_in["wqkv"],
        "A_wo": _A_in["wo"],
        "B_u": _B_in["u"],
        "B_log_A_real": _B_in["log_A_real"],
        "B_A_imag": _B_in["A_imag"],
        "B_C_real": _B_in["C_real"],
        "B_C_imag": _B_in["C_imag"],
        "B_log_dt": _B_in["log_dt"],
        "B_D_skip": _B_in["D_skip"],
        "gate_w": _w((lambda *s: torch.randn(*s, dtype=torch.bfloat16) * 0.05)(512) * 16.0),
    }

def reference(A_x, A_wqkv, A_wo, B_u, B_log_A_real, B_A_imag, B_C_real, B_C_imag, B_log_dt, B_D_skip, gate_w):
    def _A_ref(x, wqkv, wo):
        B, S, D = x.shape
        H = 32; Dh = D // H
        qkv = (lambda x, *d: x.permute(*d))((x @ wqkv).reshape(B, S, 3, H, Dh), 2, 0, 3, 1, 4)
        q, k, v = qkv[0], qkv[1], qkv[2]
        scale = Dh ** -0.5
        scores = torch.einsum("bhqd,bhkd->bhqk", q, k) * scale
        p = _softmax(scores, axis=-1)
        o = torch.einsum("bhqk,bhkd->bhqd", p, v)
        return (lambda x, *d: x.permute(*d))(o, 0, 2, 1, 3).reshape(B, S, D) @ wo

    def _B_ref(u, log_A_real, A_imag, C_real, C_imag, log_dt, D_skip):
        L = u.shape[1]
        dt = torch.exp(log_dt)
        A = -torch.exp(log_A_real) + 1j * A_imag
        C = (C_real + 1j * C_imag) * dt[:, None]
        pos = (lambda x, dt: x.to(dt))(torch.arange(L), log_dt.dtype)
        P = torch.exp((A * dt[:, None])[:, :, None] * pos[None, None, :])
        K = 2.0 * torch.einsum("dn,dnl->dl", C, P).real
        L2 = 2 * L
        u_t = (lambda x, *d: x.permute(*d))(u, 0, 2, 1)
        Kf = (lambda x, *a, **k: torch.fft.rfft(x.float(), *a, **k))(K, L2)
        Uf = (lambda x, *a, **k: torch.fft.rfft(x.float(), *a, **k))(u_t, L2)
        y = (lambda x, *a, **k: torch.fft.irfft(x, *a, **k).to(torch.bfloat16))(Uf * Kf[None, :, :], L2)[:, :, :L]
        y = (lambda x, *d: x.permute(*d))(y, 0, 2, 1)
        return y + u * D_skip[None, None, :]

    x = A_x
    g = _sigmoid((x * gate_w).sum(-1, keepdims=True))
    a = _A_ref(x, A_wqkv, A_wo)
    b = _B_ref(x, B_log_A_real, B_A_imag, B_C_real, B_C_imag, B_log_dt, B_D_skip)
    return g * a + (1 - g) * b
```

```python
import re

TRANS = ('v_exp_f32', 'v_log_f32', 'v_rcp_f32', 'v_rsq_f32', 'v_sqrt_f32', 'v_sin_f32', 'v_cos_f32')
REG_RE = re.compile(r'(?<![\w.])([vsa])(?:(\d+)|\[(\d+):(\d+)\])(?![\w])')


def regs_of(op):
    out = set()
    for m in REG_RE.finditer(op):
        k = m.group(1)
        if m.group(2) is not None:
            out.add((k, int(m.group(2))))
        else:
            out.update((k, i) for i in range(int(m.group(3)), int(m.group(4)) + 1))
    if re.search(r'\bvcc\b', op):
        out.add(('s', 'vcc'))
    if re.search(r'\bexec\b', op):
        out.add(('s', 'exec'))
    if re.search(r'\bm0\b', op):
        out.add(('s', 'm0'))
    return out


def split_ops(rest):
    ops, depth, cur = [], 0, ''
    for ch in rest:
        if ch == '[':
            depth += 1
        if ch == ']':
            depth -= 1
        if ch == ',' and depth == 0:
            ops.append(cur.strip())
            cur = ''
        else:
            cur += ch
    if cur.strip():
        ops.append(cur.strip())
    return ops


class Ins:
    def __init__(self, text):
        self.text = text
        t = text.split(';')[0].strip()
        self.label = t[:-1] if t.endswith(':') else None
        self.directive = t.startswith('.')
        self.mn = ''
        self.dst, self.src = set(), set()
        self.a = self.b = self.c = set()
        self.states = 0
        if not t or self.label or self.directive:
            return
        p = t.split(None, 1)
        mn = self.mn = p[0]
        ops = split_ops(p[1]) if len(p) > 1 else []
        self.ops = ops
        self.states = 1
        R = [regs_of(o) for o in ops]
        allr = set().union(*R) if R else set()
        self.mfma = mn.startswith('v_mfma') or mn.startswith('v_smfmac')
        self.valu = mn.startswith('v_') and not self.mfma
        self.vmem = mn.startswith('buffer_') or mn.startswith('global_')
        self.ds = mn.startswith('ds_')
        self.salu = mn.startswith('s_')
        self.trans = any(mn.startswith(x) for x in TRANS)
        self.dpp = 'row_' in t or 'quad_perm' in t or 'wave_' in t
        if mn == 's_nop':
            self.states = int(ops[0], 0) + 1
        if self.mfma:
            self.dst = R[0]
            self.a, self.b = R[1], R[2]
            if mn.startswith('v_smfmac'):
                self.c = R[0]
                self.b = R[2] | R[3]
            else:
                self.c = R[3]
            self.src = self.a | self.b | self.c
            self.passes = 4 if '16x16' in mn else 8
        elif self.valu:
            if mn.startswith('v_permlane') and 'swap' in mn:
                self.dst = R[0] | R[1]
                self.src = R[0] | R[1]
            elif mn.startswith(('v_add_co', 'v_sub_co', 'v_addc_co', 'v_subb_co')):
                self.dst = R[0] | R[1]
                self.src = set().union(*R[2:])
            else:
                self.dst = R[0]
                self.src = set().union(*R[1:]) if len(R) > 1 else set()
                if mn.startswith(('v_fmac', 'v_dot2c', 'v_writelane')) or 'UNUSED_PRESERVE' in t or self.dpp:
                    self.src = self.src | R[0]
            if mn.startswith('v_cmpx'):
                self.dst = self.dst | {('s', 'exec')}
        elif self.ds:
            if mn.startswith(('ds_read', 'ds_bpermute', 'ds_permute', 'ds_swizzle')) or '_rtn' in mn:
                self.dst = R[0]
                self.src = set().union(*R[1:])
            else:
                self.src = allr
        elif self.vmem:
            lds = re.search(r'\blds\b', t) is not None
            if 'load' in mn and not lds:
                self.dst = R[0]
                self.src = set().union(*R[1:])
            else:
                self.src = allr
                if lds:
                    self.src = self.src | {('s', 'm0')}
            self.lds_dma = lds
            self.wide_store = 'store' in mn and ('x4' in mn or 'x3' in mn)
            self.data = R[0] if 'store' in mn else set()
        elif self.salu:
            if mn.startswith(('s_cmp', 's_waitcnt', 's_barrier', 's_branch', 's_cbranch', 's_nop', 's_endpgm', 's_setprio', 's_bitcmp')):
                self.src = allr
            else:
                self.dst = R[0] if R else set()
                self.src = set().union(*R[1:]) if len(R) > 1 else set()
                if 'saveexec' in mn:
                    self.dst = self.dst | {('s', 'exec')}


def need(p, c):
    n = 0
    vd = {r for r in p.dst if r[0] in 'va'}
    sd = {r for r in p.dst if r[0] == 's'}
    if p.valu:
        if c.mfma and vd & c.src:
            n = max(n, 2)
        if c.mfma and ('s', 'exec') in sd:
            n = max(n, 4)
        if c.valu and c.mn.startswith(('v_readlane', 'v_readfirstlane')) and vd & c.src:
            n = max(n, 1)
        if c.valu and c.mn.startswith('v_permlane') and vd & c.src:
            n = max(n, 2)
        if c.valu and c.dpp and vd & c.src:
            n = max(n, 2)
        if p.mn.startswith('v_dot') and c.mn != p.mn and (c.valu or c.vmem or c.ds or c.mfma) and vd & (c.src | c.dst):
            n = max(n, 3)
        if p.trans and c.valu and not c.trans and vd & c.src:
            n = max(n, 1)
        if ('sdwa' in p.mn or ('op_sel' in p.text and not p.mn.endswith('_f32'))) and c.valu and vd & (c.src | c.dst):
            n = max(n, 1)
        if sd:
            if c.valu and sd & c.src:
                n = max(n, 4 if c.mn.startswith(('v_readlane', 'v_writelane')) else 2)
            if c.vmem and sd & c.src:
                n = max(n, 5)
            if ('s', 'exec') in sd and c.valu and c.dpp:
                n = max(n, 5)
            if c.salu and sd & c.src:
                n = max(n, 1)
    if p.mfma:
        big = p.passes + 4
        if c.mfma:
            if p.dst & (c.a | c.b):
                n = max(n, big)
            if p.dst & c.c and not (p.dst == c.c and p.passes == c.passes):
                n = max(n, p.passes + 2)
            if p.dst & c.dst and not (p.dst == c.c):
                n = max(n, p.passes + 2)
        elif (c.valu or c.vmem or c.ds) and p.dst & (c.src | c.dst):
            n = max(n, big)
        if c.valu and p.c & c.dst:
            n = max(n, p.passes - 1)
    if p.vmem and getattr(p, 'wide_store', False) and p.data & c.dst:
        n = max(n, 2 if c.valu else 1)
    if p.salu and ('s', 'm0') in sd and c.vmem and getattr(c, 'lds_dma', False):
        n = max(n, 1)
    return n


WINDOW = 20


def violation(seq, c):
    dist, miss = 0, 0
    for p in reversed(seq):
        if not p.mn:
            continue
        miss = max(miss, need(p, c) - dist)
        dist += p.states
        if dist >= WINDOW:
            break
    return miss


class Asm:
    def __init__(self):
        self.ins = []
        self.padded = []

    def __call__(self, text):
        for line in text.split('\n'):
            if not line.strip():
                continue
            i = Ins(line.strip())
            if i.mn:
                start = len(self.ins)
                while start > 0 and len(self.ins) - start < 2 * WINDOW:
                    q = self.ins[start - 1]
                    if q.mn in ('s_branch', 's_endpgm'):
                        break
                    start -= 1
                m = violation(self.ins[start:], i)
                if m > 0:
                    self.padded.append((i.text, m))
                    while m > 0:
                        k = min(m, 16)
                        self.ins.append(Ins(f's_nop {k - 1}'))
                        m -= k
            self.ins.append(i)

    def check_branches(self):
        labels = {i.label: k for k, i in enumerate(self.ins) if i.label}
        bad = []
        for k, i in enumerate(self.ins):
            if i.mn.startswith(('s_branch', 's_cbranch')):
                tgt = labels[i.ops[0]]
                seq = [x for x in self.ins[max(0, k - 2 * WINDOW):k + 1] if x.mn]
                n = 0
                for c in self.ins[tgt:]:
                    if not c.mn:
                        continue
                    m = violation(seq, c)
                    if m > 0:
                        bad.append((i.text, c.text, m))
                    seq.append(c)
                    n += c.states
                    if n >= WINDOW or c.mn in ('s_branch', 's_endpgm'):
                        break
        return bad

    def text(self):
        out = []
        for i in self.ins:
            out.append(i.text if (i.label or i.directive) else '    ' + i.text)
        return '\n'.join(out) + '\n'


def vr(b, n=1):
    return f'v{b}' if n == 1 else f'v[{b}:{b + n - 1}]'


def sr(b, n=1):
    return f's{b}' if n == 1 else f's[{b}:{b + n - 1}]'
```

```python
import sys, os, struct
sys.path.insert(0, os.path.dirname(os.path.abspath(__file__)))
from asmlib import Asm, vr, sr

NAME = 'gated_mix__softmax_full_mha__ssm_conv_s4d__prompt'

QF, KF, VF, OF, XT, BT = 0x000000, 0x200000, 0x400000, 0x600000, 0x800000, 0xA00000
WOF, GG, KC = 0xC00000, 0xC80000, 0xD00000
KCS = 4224
WS_BYTES = 0x1000000


def f32(x):
    return '0x%08x' % struct.unpack('<I', struct.pack('<f', x))[0]


LOG2E = 1.4426950408889634
MFMA = 'v_mfma_f32_32x32x16_bf16'
SMF = 'v_smfmac_f32_32x32x32_bf16'


def srd(a, d, base, nbytes):
    a(f'''s_mov_b32 s{d}, s{base}
    s_and_b32 s{d + 1}, s{base + 1}, 0xffff
    s_mov_b32 s{d + 2}, {nbytes:#x}
    s_mov_b32 s{d + 3}, 0x20000''')


def swap23(a, dst, src, t):
    a(f'''v_lshrrev_b32 v{t}, 1, v{src}
    v_xor_b32 v{t}, v{t}, v{src}
    v_and_b32 v{t}, 4, v{t}
    v_mul_u32_u24 v{t}, 3, v{t}
    v_xor_b32 v{dst}, v{t}, v{src}''')


def identity_frags(a, dst, vn, vh, t0, t1):
    a(f'''v_and_b32 v{t0}, 1, v{vn}
    v_lshlrev_b32 v{t0}, 4, v{t0}
    v_mov_b32 v{t1}, 0x3f80
    v_lshlrev_b32 v{t0}, v{t0}, v{t1}
    v_lshrrev_b32 v{t1}, 1, v{vn}
    v_lshlrev_b32 v{dst}, 2, v{vh}
    v_sub_u32 v{t1}, v{t1}, v{dst}''')
    for s in range(2):
        for q in range(4):
            a(f'''v_cmp_eq_u32 vcc, {8 * s + q}, v{t1}
            v_cndmask_b32 v{dst + 4 * s + q}, 0, v{t0}, vcc''')


def cvt8(a, dst, src, n=8):
    for i in range(n):
        a(f'v_cvt_pk_bf16_f32 v{dst + i}, v{src + 2 * i}, v{src + 2 * i + 1}')


K1_XR = 98304
K1_AUX = 147456


def k1(a):
    sX, sW, sWS = 28, 32, 36
    sWV, sRB, sCB = 3, 40, 41
    a(f'''s_cmp_ge_u32 s2, 256
    s_cbranch_scc1 K1_END
    s_load_dwordx4 s[4:7], s[0:1], 0
    s_load_dwordx2 s[8:9], s[0:1], 16
    s_load_dwordx8 s[12:19], s[0:1], 32
    s_load_dwordx4 s[20:23], s[0:1], 64
    s_load_dwordx2 s[24:25], s[0:1], 80
    s_load_dwordx2 s[26:27], s[0:1], 104
    v_lshrrev_b32 v1, 6, v0
    v_and_b32 v0, 63, v0
    v_readfirstlane_b32 s{sWV}, v1
    s_and_b32 s42, s2, 7
    s_lshr_b32 s43, s2, 3
    s_lshr_b32 s{sRB}, s42, 1
    s_lshl_b32 s{sRB}, s{sRB}, 2
    s_and_b32 s44, s43, 3
    s_add_u32 s{sRB}, s{sRB}, s44
    s_and_b32 s{sCB}, s42, 1
    s_lshl_b32 s{sCB}, s{sCB}, 3
    s_lshr_b32 s44, s43, 2
    s_add_u32 s{sCB}, s{sCB}, s44
    v_and_b32 v2, 31, v0
    v_lshrrev_b32 v3, 5, v0''')
    swap23(a, 4, 2, 5)
    a(f'''v_lshrrev_b32 v5, 2, v0
    v_mul_u32_u24 v5, 3072, v5
    v_and_b32 v6, 3, v0
    v_lshl_add_u32 v5, v6, 4, v5
    s_lshl_b32 s44, s{sCB}, 6
    s_mul_i32 s45, s{sWV}, 49152
    s_add_u32 s44, s44, s45
    s_mul_i32 s45, s{sWV}, 3072
    s_waitcnt lgkmcnt(0)''')
    srd(a, sX, 4, 0x200000)
    srd(a, sW, 6, 0x180000)
    srd(a, sWS, 26, WS_BYTES)

    def w_dma():
        for i in range(4):
            a(f'''s_add_u32 m0, s45, {i * 24576}
            s_add_u32 s46, s44, {i * 393216}''')
            for s in range(3):
                a(f'buffer_load_dwordx4 v5, s[{sW}:{sW + 3}], s46 offen offset:{s * 1024} lds')

    a(f'''s_cmp_ge_u32 s{sWV}, 4
    s_cbranch_scc1 K1_AUX''')

    w_dma()
    vXD, vXR, vWQ, vWV = 8, 12, 16, 17
    accQ, accK, accV = 32, 48, 64
    FR = (80, 96)
    a(f'''v_lshrrev_b32 v6, 4, v0
    v_and_b32 v7, 7, v0
    v_xor_b32 v6, v6, v7
    v_lshlrev_b32 v6, 4, v6
    v_lshrrev_b32 v7, 3, v0
    v_lshl_add_u32 v{vXD}, v7, 10, v6
    v_xor_b32 v{vXD + 1}, 64, v{vXD}
    v_add_u32 v{vXD + 2}, {2 * 7168}, v{vXD}
    v_add_u32 v{vXD + 3}, {3 * 7168}, v{vXD + 1}
    v_add_u32 v{vXD + 1}, 7168, v{vXD + 1}
    s_lshl_b32 s47, s{sRB}, 2
    s_add_u32 s47, s47, s{sWV}
    s_lshl_b32 s48, s47, 15
    s_mul_i32 s49, s{sWV}, 12288
    s_add_u32 s49, s49, {K1_XR}''')

    def x_dma(c):
        a(f'''s_add_u32 m0, s49, {(c % 3) * 4096}
        s_add_u32 s46, s48, {c * 128}''')
        for q in range(4):
            a(f'buffer_load_dwordx4 v{vXD + q}, s[{sX}:{sX + 3}], s46 offen offset:{q * 1024} lds')

    for c in range(3):
        x_dma(c)
    a(f'''v_bfe_u32 v6, v4, 1, 3
    v_xor_b32 v6, v6, v3
    v_lshlrev_b32 v6, 4, v6
    v_lshl_add_u32 v6, v4, 7, v6
    v_add_u32 v{vXR}, s49, v6
    v_xor_b32 v7, 32, v6
    v_add_u32 v{vXR + 1}, s49, v7
    v_xor_b32 v7, 64, v6
    v_add_u32 v{vXR + 2}, s49, v7
    v_xor_b32 v7, 96, v6
    v_add_u32 v{vXR + 3}, s49, v7
    v_bfe_u32 v6, v0, 2, 2
    v_lshl_add_u32 v6, v3, 3, v6
    v_lshlrev_b32 v6, 6, v6
    v_bfe_u32 v7, v0, 4, 1
    v_lshl_add_u32 v6, v7, 5, v6
    v_and_b32 v7, 3, v0
    v_lshl_add_u32 v{vWV}, v7, 3, v6
    v_bfrev_b32 v7, v7
    v_lshrrev_b32 v7, 30, v7
    v_lshl_add_u32 v{vWQ}, v7, 3, v6''')
    for i in range(48):
        a(f'v_mov_b32 v{accQ + i}, 0')

    def reads(s):
        f = FR[s & 1]
        c = s >> 2
        a(f'ds_read_b128 {vr(f, 4)}, v{vXR + (s & 3)} offset:{(c % 3) * 4096}')
        for seg in range(3):
            base = vWV if seg == 2 else vWQ
            off = (s & 15) * 3072 + seg * 1024
            a(f'''ds_read_b64_tr_b16 {vr(f + 4 + 4 * seg, 2)}, v{base} offset:{off}
            ds_read_b64_tr_b16 {vr(f + 6 + 4 * seg, 2)}, v{base} offset:{off + 256}''')

    a('''s_waitcnt vmcnt(8)
    s_barrier''')
    reads(0)
    for s in range(32):
        c = s >> 2
        f = FR[s & 1]
        if s + 1 < 32:
            if (s & 3) == 3:
                a(f's_waitcnt vmcnt({4 if c + 2 <= 7 else 0})')
            if s + 1 == 16:
                a(f'''v_add_u32 v{vWQ}, 49152, v{vWQ}
                v_add_u32 v{vWV}, 49152, v{vWV}''')
            reads(s + 1)
            a('s_waitcnt lgkmcnt(7)')
        else:
            a('s_waitcnt lgkmcnt(0)')
        if (s & 3) == 3 and c + 3 <= 7:
            x_dma(c + 3)
        a(f'''{MFMA} {vr(accQ, 16)}, {vr(f + 4, 4)}, {vr(f, 4)}, {vr(accQ, 16)}
        {MFMA} {vr(accK, 16)}, {vr(f + 8, 4)}, {vr(f, 4)}, {vr(accK, 16)}
        {MFMA} {vr(accV, 16)}, {vr(f, 4)}, {vr(f + 12, 4)}, {vr(accV, 16)}''')
    a(f'''v_lshl_add_u32 v6, v3, 5, v4
    v_lshlrev_b32 v6, 4, v6
    v_lshrrev_b32 v7, 4, v2
    v_lshlrev_b32 v7, 16, v7
    v_lshl_add_u32 v7, v3, 8, v7
    v_and_b32 v8, 15, v2
    v_lshl_add_u32 v7, v8, 4, v7
    s_lshl_b32 s50, s{sCB}, 17
    s_lshl_b32 s51, s47, 10
    s_add_u32 s50, s50, s51
    s_add_u32 s51, s50, 0x10000
    s_add_u32 s52, s50, {KF}
    s_add_u32 s53, s51, {KF}
    s_add_u32 s54, s50, {VF}
    s_mov_b32 s55, {f32(0.25 * LOG2E)}''')
    for i in range(16):
        a(f'v_mul_f32 v{accQ + i}, s55, v{accQ + i}')
    cvt8(a, 80, accQ)
    a(f'''buffer_store_dwordx4 v[80:83], v6, s[{sWS}:{sWS + 3}], s50 offen
    buffer_store_dwordx4 v[84:87], v6, s[{sWS}:{sWS + 3}], s51 offen''')
    cvt8(a, 88, accK)
    a(f'''buffer_store_dwordx4 v[88:91], v6, s[{sWS}:{sWS + 3}], s52 offen
    buffer_store_dwordx4 v[92:95], v6, s[{sWS}:{sWS + 3}], s53 offen''')
    cvt8(a, 96, accV)
    a(f'''buffer_store_dwordx4 v[96:99], v7, s[{sWS}:{sWS + 3}], s54 offen
    buffer_store_dwordx4 v[100:103], v7, s[{sWS}:{sWS + 3}], s54 offen offset:512
    s_endpgm''')

    sWP, sCH, sMH, sPB, sTP = 47, 48, 49, 50, 51
    vP = 8
    vXT, vGX, vGW, vWO = 12, 20, 28, 32
    vT1, vT2, vPA = 40, 41, 42
    vGA = 44
    vID = 60
    acc = 68
    PR = (84, 100)
    tX, tY, tC, tS = 116, 124, 132, 140
    fA, fB = 148, 152
    a(f'''K1_AUX:
    s_sub_u32 s{sWP}, s{sWV}, 4
    s_lshr_b32 s52, s{sWP}, 1
    s_lshl_b32 s{sCH}, s2, 1
    s_add_u32 s{sCH}, s{sCH}, s52
    s_and_b32 s{sMH}, s{sWP}, 1
    s_lshl_b32 s53, s{sCH}, 8
    s_lshl_b32 s54, s{sMH}, 7
    s_add_u32 s53, s53, s54
    v_lshl_add_u32 v6, v0, 1, s53
    global_load_ushort v{vP}, v6, s[12:13]
    global_load_ushort v{vP + 1}, v6, s[14:15]
    global_load_ushort v{vP + 2}, v6, s[16:17]
    global_load_ushort v{vP + 3}, v6, s[18:19]
    s_lshl_b32 s53, s2, 2
    s_load_dword s56, s[20:21], s53
    s_load_dword s57, s[22:23], s53''')
    w_dma()
    a(f'''s_lshl_b32 s58, s{sRB}, 2
    s_add_u32 s58, s58, s{sWP}
    s_lshl_b32 s53, s58, 15
    s_lshl_b32 s54, s{sCB}, 6
    s_add_u32 s53, s53, s54
    v_lshlrev_b32 v6, 10, v4
    v_lshl_add_u32 v6, v3, 4, v6
    buffer_load_dwordx4 {vr(vXT, 4)}, v6, s[{sX}:{sX + 3}], s53 offen
    buffer_load_dwordx4 {vr(vXT + 4, 4)}, v6, s[{sX}:{sX + 3}], s53 offen offset:32
    s_lshl_b32 s59, s{sRB}, 7
    s_lshl_b32 s54, s{sCB}, 3
    s_add_u32 s59, s59, s54
    s_lshl_b32 s54, s{sWP}, 1
    s_add_u32 s59, s59, s54
    s_lshl_b32 s53, s59, 10
    v_lshlrev_b32 v7, 4, v0
    buffer_load_dwordx4 {vr(vGX, 4)}, v7, s[{sX}:{sX + 3}], s53 offen
    buffer_load_dwordx4 {vr(vGX + 4, 4)}, v7, s[{sX}:{sX + 3}], s53 offen offset:1024
    global_load_dwordx4 {vr(vGW, 4)}, v7, s[24:25]
    s_cmp_lg_u32 s{sWP}, 3
    s_cbranch_scc1 K1_NOWO1
    s_lshr_b32 s53, s2, 4
    s_lshl_b32 s53, s53, 15
    s_and_b32 s54, s2, 15
    s_lshl_b32 s54, s54, 6
    s_add_u32 s53, s53, s54
    v_lshlrev_b32 v6, 10, v2
    v_lshl_add_u32 v6, v3, 4, v6
    v_add_u32 v6, s53, v6
    global_load_dwordx4 {vr(vWO, 4)}, v6, s[8:9]
    global_load_dwordx4 {vr(vWO + 4, 4)}, v6, s[8:9] offset:32
K1_NOWO1:
    s_lshl_b32 s{sPB}, s{sWP}, 12
    s_add_u32 s{sPB}, s{sPB}, {K1_AUX}
    s_lshl_b32 s{sTP}, s52, 13
    s_add_u32 s{sTP}, s{sTP}, {K1_AUX + 1024}''')
    a(f'''v_mov_b32 v6, s{sPB}
    v_mov_b32 v7, 0
    ds_write_b32 v6, v7 offset:4092''')
    a(f'''v_lshlrev_b32 v6, 3, v2
    v_cvt_f32_u32 v{vT2}, v6
    v_lshlrev_b32 v6, 8, v2
    v_subrev_u32 v6, 3072, v6
    v_bfe_u32 v7, v2, 1, 1
    v_lshlrev_b32 v7, 8, v7
    v_and_b32 v{vT1}, 1, v2
    v_lshl_add_u32 v7, v{vT1}, 2, v7
    v_add_u32 v7, 512, v7
    v_cmp_gt_u32 vcc, 16, v2
    v_cndmask_b32 v6, v6, v7, vcc
    v_lshlrev_b32 v7, 1, v2
    v_add_u32 v7, 240, v7
    v_cmp_gt_u32 vcc, 12, v2
    v_cndmask_b32 v6, v6, v7, vcc
    v_cmp_gt_u32 vcc, 8, v2
    v_cndmask_b32 v6, v6, v2, vcc
    v_cvt_f32_u32 v{vT1}, v6
    v_lshl_add_u32 v{vPA}, v3, 6, s{sPB}''')
    identity_frags(a, vID, 2, 3, 6, 7)
    a(f's_sub_u32 s53, s{sTP}, {0x4280 * 4}')
    for r in range(2):
        a(f'''s_lshl_b32 s54, s{sMH}, 10
        s_sub_u32 s54, {2047 - 512 * r}, s54
        v_lshlrev_b32 v6, 3, v0
        v_sub_u32 v{tX}, s54, v6
        v_cvt_f32_u32 v{tY}, v{tX}''')
        for e in range(1, 8):
            a(f'v_add_f32 v{tY + e}, {f32(-float(e))}, v{tY}')
        for e in range(0, 8, 2):
            g = vGA + 8 * r + e
            a(f'''v_cvt_pk_bf16_f32 v6, v{tY + e}, v{tY + e + 1}
            v_and_b32 v7, 0xffff, v6
            v_lshrrev_b32 v6, 16, v6
            v_lshl_add_u32 v{g}, v7, 2, s53
            v_lshl_add_u32 v{g + 1}, v6, 2, s53''')
        if r == 1:
            for e in range(8):
                a(f'''v_subrev_u32 v6, {e}, v{tX}
                v_min_u32 v6, 0x80, v6
                v_lshl_add_u32 v6, v6, 2, s{sTP}
                v_max_i32 v{vGA + 8 + e}, v{vGA + 8 + e}, v6''')
    a(f'''s_waitcnt vmcnt(17) lgkmcnt(0)
    s_lshl_b32 s54, s52, 4
    s_lshr_b32 s56, s56, s54
    s_lshl_b32 s56, s56, 16
    s_lshr_b32 s57, s57, s54
    s_lshl_b32 s57, s57, 16
    s_mov_b32 s60, {f32(LOG2E)}
    v_mov_b32 v6, s56
    v_mul_f32 v6, s60, v6
    v_lshlrev_b32 v{vP}, 16, v{vP}
    v_mul_f32 v{vP}, s60, v{vP}
    v_exp_f32 v6, v6
    v_exp_f32 v{vP}, v{vP}
    v_lshlrev_b32 v{vP + 1}, 16, v{vP + 1}
    v_cvt_pk_bf16_f32 v6, v6, v{vP}
    v_and_b32 v{vP}, 0xffff0000, v6
    v_lshlrev_b32 v6, 16, v6
    v_mul_f32 v{vP}, v{vP}, v6
    v_mul_f32 v{vP}, {f32(-LOG2E)}, v{vP}
    v_mul_f32 v{vP + 1}, v{vP + 1}, v6
    v_mul_f32 v{vP + 1}, 0.15915494, v{vP + 1}''')
    a(f'''v_add_f32 v6, v6, v6
    v_lshlrev_b32 v{vP + 2}, 16, v{vP + 2}
    v_lshlrev_b32 v{vP + 3}, 16, v{vP + 3}
    v_mul_f32 v{vP + 2}, v{vP + 2}, v6
    v_mul_f32 v{vP + 3}, v{vP + 3}, v6
    v_lshl_add_u32 v6, v0, 4, s{sPB}
    ds_write_b128 v6, {vr(vP, 4)}''')
    for i in range(16):
        a(f'v_mov_b32 v{acc + i}, 0')
    a('s_waitcnt lgkmcnt(0)')

    def pread(q):
        for e in range(4):
            a(f'ds_read_b128 {vr(PR[q & 1] + 4 * e, 4)}, v{vPA} offset:{q * 128 + e * 16}')

    def kstep(q):
        p = PR[q & 1]
        if q + 1 < 8:
            pread(q + 1)
            a('s_waitcnt lgkmcnt(4)')
        else:
            a('s_waitcnt lgkmcnt(0)')
        T = lambda k: vT1 if k < 4 else vT2
        for k in range(8):
            a(f'''v_mul_f32 v{tX + k}, v{p + 4 * (k & 3)}, v{T(k)}
            v_mul_f32 v{tY + k}, v{p + 4 * (k & 3) + 1}, v{T(k)}''')
        for k in range(8):
            a(f'''v_exp_f32 v{tX + k}, v{tX + k}
            v_fract_f32 v{tY + k}, v{tY + k}''')
        for k in range(8):
            a(f'''v_cos_f32 v{tC + k}, v{tY + k}
            v_sin_f32 v{tS + k}, v{tY + k}''')
        for k in range(4, 8):
            a(f'''v_mul_f32 v{tC + k}, v{tX + k}, v{tC + k}
            v_mul_f32 v{tS + k}, v{tX + k}, v{tS + k}''')
        for k in range(4):
            a(f'''v_mul_f32 v{tY + k}, v{tX + k}, v{p + 4 * k + 3}
            v_mul_f32 v{tX + k}, v{tX + k}, v{p + 4 * k + 2}''')
        for k in range(4):
            a(f'''v_cvt_pk_bf16_f32 v{fB + k}, v{tC + 4 + k}, v{tS + 4 + k}
            v_mul_f32 v{tX + 4 + k}, v{tX + k}, v{tC + k}
            v_mul_f32 v{tY + 4 + k}, v{tX + k}, v{tS + k}''')
        for k in range(4):
            a(f'''v_fma_f32 v{tX + 4 + k}, -v{tY + k}, v{tS + k}, v{tX + 4 + k}
            v_fma_f32 v{tY + 4 + k}, -v{tY + k}, v{tC + k}, -v{tY + 4 + k}''')
        for k in range(4):
            a(f'v_cvt_pk_bf16_f32 v{fA + k}, v{tX + 4 + k}, v{tY + 4 + k}')
        a(f'{MFMA} {vr(acc, 16)}, {vr(fA, 4)}, {vr(fB, 4)}, {vr(acc, 16)}')

    pread(0)
    for q in range(K1_PRE):
        kstep(q)
    a('''s_waitcnt vmcnt(0)
    s_barrier''')
    D2 = 160
    a(f'''{MFMA} {vr(D2, 16)}, {vr(vXT, 4)}, {vr(vID, 4)}, 0
    {MFMA} {vr(D2, 16)}, {vr(vXT + 4, 4)}, {vr(vID + 4, 4)}, {vr(D2, 16)}
    v_mov_b32 v6, 0
    v_mov_b32 v7, 0''')
    for i in range(4):
        a(f'''v_dot2_f32_bf16 v6, v{vGX + i}, v{vGW + i}, v6
        v_dot2_f32_bf16 v7, v{vGX + 4 + i}, v{vGW + i}, v7''')
    a('s_nop 2')
    for d in ('row_shr:1', 'row_shr:2', 'row_shr:4', 'row_shr:8', 'row_bcast:15 row_mask:0xa', 'row_bcast:31 row_mask:0xc'):
        a(f'''v_add_f32_dpp v6, v6, v6 {d}
        v_add_f32_dpp v7, v7, v7 {d}''')
    a(f'''v_mul_f32 v6, {f32(-LOG2E)}, v6
    v_mul_f32 v7, {f32(-LOG2E)}, v7
    v_exp_f32 v6, v6
    v_exp_f32 v7, v7
    v_add_f32 v6, 1.0, v6
    v_add_f32 v7, 1.0, v7
    v_rcp_f32 v6, v6
    v_rcp_f32 v7, v7
    s_lshl_b32 s53, s59, 2
    s_add_u32 s53, s53, {GG}
    v_mov_b32 v{tX}, 0
    s_mov_b32 exec_lo, 0
    s_brev_b32 exec_hi, 1
    buffer_store_dwordx2 v[6:7], v{tX}, s[{sWS}:{sWS + 3}], s53 offen
    s_mov_b64 exec, -1''')
    cvt8(a, vXT, D2)
    a(f'''v_lshlrev_b32 v{tX}, 12, v2
    v_lshl_add_u32 v{tX}, v3, 4, v{tX}
    s_lshl_b32 s53, s{sCB}, 17
    s_lshl_b32 s54, s58, 6
    s_add_u32 s53, s53, s54
    s_add_u32 s53, s53, {XT}
    buffer_store_dwordx4 {vr(vXT, 4)}, v{tX}, s[{sWS}:{sWS + 3}], s53 offen
    buffer_store_dwordx4 {vr(vXT + 4, 4)}, v{tX}, s[{sWS}:{sWS + 3}], s53 offen offset:32
    s_cmp_lg_u32 s{sWP}, 3
    s_cbranch_scc1 K1_NOWO2
    {MFMA} {vr(D2, 16)}, {vr(vWO, 4)}, {vr(vID, 4)}, 0
    {MFMA} {vr(D2, 16)}, {vr(vWO + 4, 4)}, {vr(vID + 4, 4)}, {vr(D2, 16)}
    v_lshl_add_u32 v{tX}, v3, 5, v4
    v_lshlrev_b32 v{tX}, 4, v{tX}
    s_and_b32 s53, s2, 15
    s_lshl_b32 s53, s53, 15
    s_lshr_b32 s54, s2, 4
    s_lshl_b32 s54, s54, 11
    s_add_u32 s53, s53, s54
    s_add_u32 s53, s53, {WOF}''')
    cvt8(a, vWO, D2)
    a(f'''buffer_store_dwordx4 {vr(vWO, 4)}, v{tX}, s[{sWS}:{sWS + 3}], s53 offen
    buffer_store_dwordx4 {vr(vWO + 4, 4)}, v{tX}, s[{sWS}:{sWS + 3}], s53 offen offset:1024
K1_NOWO2:
    s_nop 1''')
    for q in range(K1_PRE, 8):
        kstep(q)
    a(f'''v_lshlrev_b32 v6, 3, v2
    v_lshl_add_u32 v6, v3, 2, v6
    v_lshl_add_u32 v{tX}, v6, 2, s{sPB}
    v_lshlrev_b32 v6, 2, v2
    v_add_u32 v6, 256, v6
    v_lshlrev_b32 v7, 1, v2
    v_add_u32 v7, 384, v7
    v_cmp_eq_u32 vcc, 1, v3
    v_cndmask_b32 v6, v6, v7, vcc
    v_lshl_add_u32 v{tX + 1}, v6, 2, s{sPB}
    v_cndmask_b32 v7, 2, 64, vcc
    v_lshl_add_u32 v{tX + 2}, v7, 2, v{tX + 1}
    v_lshl_add_u32 v6, v3, 7, v2
    v_lshl_add_u32 v{tX + 3}, v6, 2, s{sPB}''')
    for jj in range(4):
        a(f'ds_write_b32 v{tX}, v{acc + jj} offset:{1024 + jj * 4}')
    for jj in range(4):
        a(f'ds_write_b32 v{tX + 1 + (jj >> 1)}, v{acc + 4 + jj} offset:{1024 + (jj & 1) * 4}')
    a(f'''ds_write_b32 v{tX + 3}, v{acc + 8} offset:{1024 + 2048}
    s_mov_b32 exec_hi, 0''')
    for jj in range(1, 4):
        a(f'ds_write_b32 v{tX + 3}, v{acc + 8 + jj} offset:{1024 + 2048 + jj * 128}')
    a(f'''s_mov_b64 exec, -1
    v_mov_b32 v6, s{sPB}
    v_mov_b32 v7, 1
    s_waitcnt lgkmcnt(0)
    ds_write_b32 v6, v7 offset:4092
    v_xor_b32 v6, 0x1000, v6
K1_POLL:
    ds_read_b32 v7, v6 offset:4092
    s_waitcnt lgkmcnt(0)
    v_readfirstlane_b32 s53, v7
    s_cmp_eq_u32 s53, 1
    s_cbranch_scc0 K1_POLL''')
    G0 = 176
    for k in range(16):
        a(f'ds_read2st64_b32 {vr(G0 + 2 * k, 2)}, v{vGA + k} offset0:0 offset1:16')
        if k == 7:
            a('s_waitcnt lgkmcnt(0)')
    a(f'''v_mov_b32 v6, s57
    v_lshl_add_u32 v7, v0, 1, s{sMH}
    v_cmp_eq_u32 vcc, 0x7f, v7
    v_cndmask_b32 v6, 0, v6, vcc
    s_waitcnt lgkmcnt(0)''')
    for k in range(16):
        a(f'v_add_f32 v{tX + k}, v{G0 + 2 * k}, v{G0 + 2 * k + 1}')
    a(f'v_add_f32 v{tX + 15}, v{tX + 15}, v6')
    cvt8(a, tC, tX)
    a(f'''s_mul_i32 s53, s{sCH}, {KCS}
    s_add_u32 s53, s53, {KC}
    s_lshl_b32 s54, s{sMH}, 11
    s_add_u32 s54, s54, s53
    v_lshlrev_b32 v6, 4, v0
    buffer_store_dwordx4 {vr(tC, 4)}, v6, s[{sWS}:{sWS + 3}], s54 offen
    buffer_store_dwordx4 {vr(tC + 4, 4)}, v6, s[{sWS}:{sWS + 3}], s54 offen offset:1024
    s_cmp_lg_u32 s{sMH}, 0
    s_cbranch_scc1 K1_END
    s_add_u32 s53, s53, 4096
    v_mov_b32 v8, 0
    v_mov_b32 v9, 0
    v_mov_b32 v10, 0
    v_mov_b32 v11, 0
    s_mov_b64 exec, 0xff
    buffer_store_dwordx4 v[8:11], v6, s[{sWS}:{sWS + 3}], s53 offen
K1_END:
    s_endpgm''')


K1_PRE = 3

K2_V = 65536
VT = 1040
K2_CV = K2_V + 64 * VT
K2_CVS = 15360
K2_LDS = K2_CV + 2 * K2_CVS
K2_B1 = 12
K2_PRIO_DROP = 56


def k2(a):
    sWS, sWV, sH, sQT = 8, 3, 12, 13
    a(f'''s_cmp_ge_u32 s2, 256
    s_cbranch_scc1 K2_END
    s_load_dwordx2 s[4:5], s[0:1], 104
    v_lshrrev_b32 v1, 6, v0
    v_and_b32 v0, 63, v0
    v_readfirstlane_b32 s{sWV}, v1
    v_lshlrev_b32 v1, 4, v0
    v_and_b32 v2, 31, v0
    v_lshrrev_b32 v3, 5, v0
    s_and_b32 s{sH}, s2, 31
    s_lshr_b32 s{sQT}, s2, 5
    s_lshl_b32 s{sQT}, s{sQT}, 3
    s_add_u32 s{sQT}, s{sQT}, s{sWV}
    s_waitcnt lgkmcnt(0)''')
    srd(a, sWS, 4, WS_BYTES)
    W = f's[{sWS}:{sWS + 3}]'
    a(f'''s_cmp_ge_u32 s{sWV}, 8
    s_cbranch_scc1 K2_CONV''')

    Q, Kf, V0, V1 = 4, 8, 12, 16
    V0B = (12, 92)
    vIX, vK, vV0, vV1 = 20, 21, 22, 23
    S = (24, 40)
    O, M = 56, 72
    a(f'''s_lshl_b32 s14, s{sH}, 16
    s_lshl_b32 s15, s{sQT}, 10
    s_add_u32 s15, s15, s14
    s_add_u32 s16, s14, {KF}
    buffer_load_dwordx4 {vr(Q, 4)}, v1, {W}, s15 offen
    buffer_load_dwordx4 {vr(Kf, 4)}, v1, {W}, s16 offen
    s_and_b32 s17, s{sWV}, 1
    s_lshr_b32 s18, s{sWV}, 1
    s_lshl_b32 s19, s17, 21
    s_add_u32 s16, s16, s19
    s_lshl_b32 s19, s18, 10
    s_add_u32 s16, s16, s19
    s_lshl_b32 s19, s17, 4
    s_add_u32 s19, s19, 1024
    s_mul_i32 s20, s18, s19
    s_lshl_b32 s21, s17, 16
    s_add_u32 s20, s20, s21
    s_lshl_b32 s19, s19, 2''')
    for i in range(16):
        a(f'''s_mov_b32 m0, s20
        s_add_u32 s20, s20, s19
        buffer_load_dwordx4 v1, {W}, s16 offen lds
        s_add_u32 s16, s16, 4096''')
    a(f'''s_cmp_lg_u32 s{sWV}, 0
    s_cbranch_scc1 K2_NOONES
    v_mov_b32 v24, 0x3f803f80
    v_mov_b32 v25, 0x3f803f80
    v_mov_b32 v26, 0x3f803f80
    v_mov_b32 v27, 0x3f803f80
    v_mul_u32_u24 v28, {VT}, v0
    v_add_u32 v28, {K2_V + 1024}, v28
    ds_write_b128 v28, v[24:27]
K2_NOONES:
    v_mov_b32 v{vIX}, 0xdddd
    v_mov_b32 v{vK}, v1
    v_lshlrev_b32 v24, 8, v3
    v_and_b32 v25, 15, v2
    v_lshl_add_u32 v25, v25, 4, v24
    v_cmp_gt_u32 vcc, 16, v2
    v_cndmask_b32 v24, v24, v25, vcc
    v_add_u32 v25, 512, v24
    v_add_u32 v26, 4, v2
    v_bfe_u32 v26, v26, 3, 2
    v_cmp_eq_u32 vcc, 3, v26
    v_cmp_gt_u32 s[22:23], 16, v2
    s_or_b64 vcc, vcc, s[22:23]
    v_mov_b32 v26, 1024
    v_cndmask_b32 v24, v26, v24, vcc
    v_cndmask_b32 v25, v26, v25, vcc
    v_add_u32 v{vV0}, {K2_V}, v24
    v_add_u32 v{vV1}, {K2_V}, v25''')
    for i in range(16):
        a(f'v_mov_b32 v{O + i}, 0')
    a(f'''s_cmp_ge_u32 s{sWV}, 4
    s_cbranch_scc0 K2_NOPRIO
    s_setprio 1
K2_NOPRIO:
    s_waitcnt vmcnt(16)
    {MFMA} {vr(S[1], 16)}, {vr(Kf, 4)}, {vr(Q, 4)}, 0''')

    def rowmax(src, dst, t):
        a(f'v_max3_f32 v{dst}, v{src}, v{src + 1}, v{src + 2}')
        for i in range(3, 15, 2):
            a(f'v_max3_f32 v{dst}, v{dst}, v{src + i}, v{src + i + 1}')
        a(f'v_max_f32 v{dst}, v{dst}, v{src + 15}')

    def set_m(mx, t):
        a(f'''v_mov_b32 v{t}, v{mx}
        v_permlane32_swap_b32 v{mx}, v{t}
        v_max_f32 v{mx}, v{mx}, v{t}
        v_sub_f32 v{M}, 0, v{mx}''')
        for i in range(1, 16):
            a(f'v_mov_b32 v{M + i}, v{M}')

    rowmax(S[1], 88, 89)
    set_m(88, 89)
    a(f'''{MFMA} {vr(S[0], 16)}, {vr(Kf, 4)}, {vr(Q, 4)}, {vr(M, 16)}
    s_waitcnt vmcnt({16 - K2_B1 // 4}) lgkmcnt(0)
    s_barrier
    ds_read_b128 {vr(Kf, 4)}, v{vK} offset:1024
    ds_read_b128 {vr(V0, 4)}, v{vV0}''')
    for t in range(64):
        s, sn = S[t & 1], S[(t + 1) & 1]
        e = lambda i: a(f'v_exp_f32 v{s + i}, v{s + i}')
        if t == K2_B1 - 2:
            a('''s_waitcnt vmcnt(0)
            s_barrier''')
        if t == K2_PRIO_DROP:
            a('s_setprio 0')
        e(0)
        a('s_waitcnt lgkmcnt(0)')
        e(1)
        if t > 0:
            a(f'{SMF} {vr(O, 16)}, {vr(V1, 4)}, {vr(sn + 8, 8)}, v{vIX}')
        a(f'ds_read_b128 {vr(V1, 4)}, v{vV1} offset:{t * VT}')
        for i in range(2, 6):
            e(i)
        if t + 1 < 64:
            a(f'{MFMA} {vr(sn, 16)}, {vr(Kf, 4)}, {vr(Q, 4)}, {vr(M, 16)}')
        if t + 2 < 64:
            a(f'ds_read_b128 {vr(Kf, 4)}, v{vK} offset:{(t + 2) * 1024}')
        if t + 1 < 64:
            a(f'ds_read_b128 {vr(V0B[(t + 1) & 1], 4)}, v{vV0} offset:{(t + 1) * VT}')
        for i in range(6, 11):
            e(i)
        a(f'{SMF} {vr(O, 16)}, {vr(V0B[t & 1], 4)}, {vr(s, 8)}, v{vIX}')
        for i in range(11, 16):
            e(i)
    a(f'''s_waitcnt lgkmcnt(0)
    s_nop 0
    {SMF} {vr(O, 16)}, {vr(V1, 4)}, {vr(S[1] + 8, 8)}, v{vIX}
    s_mov_b32 s24, 0
K2_FIN:
    s_lshl_b32 s14, s{sQT}, 5
    s_add_u32 s14, s14, s{sH}
    s_lshl_b32 s14, s14, 10
    s_add_u32 s14, s14, {OF}
    v_cmp_eq_u32 vcc, 1, v3
    s_mov_b32 s15, {f32(2.0 ** 30)}
    s_nop 6
    v_cndmask_b32 v88, v{O + 8}, v{O + 12}, vcc
    v_cmp_nlt_f32 vcc, v88, s15
    v_rcp_f32 v89, v88
    s_cmp_eq_u32 s24, 0
    s_cselect_b64 s[26:27], vcc, 0
    s_cmp_lg_u64 s[26:27], 0
    s_cbranch_scc1 K2_REDO''')
    for i in range(8):
        a(f'v_mul_f32 v{O + i}, v{O + i}, v89')
    cvt8(a, 24, O, 4)
    a(f'''buffer_store_dwordx4 v[24:27], v1, {W}, s14 offen
    s_endpgm''')
    a(f'''K2_REDO:
    s_mov_b32 s24, 1
    v_mov_b32 v88, 0xff800000
    v_mov_b32 v90, v1
    s_mov_b32 s25, 64
K2_R1:
    ds_read_b128 {vr(Kf, 4)}, v90
    v_add_u32 v90, 1024, v90
    s_waitcnt lgkmcnt(0)
    {MFMA} {vr(S[0], 16)}, {vr(Kf, 4)}, {vr(Q, 4)}, 0''')
    rowmax(S[0], 89, 91)
    a('''v_max_f32 v88, v88, v89
    s_sub_u32 s25, s25, 1
    s_cmp_lg_u32 s25, 0
    s_cbranch_scc1 K2_R1''')
    set_m(88, 89)
    for i in range(16):
        a(f'v_mov_b32 v{O + i}, 0')
    a(f'''v_mov_b32 v90, v1
    v_mov_b32 v91, v{vV0}
    v_mov_b32 v93, v{vV1}
    s_mov_b32 s25, 64
K2_R2:
    ds_read_b128 {vr(Kf, 4)}, v90
    ds_read_b128 {vr(V0, 4)}, v91
    ds_read_b128 {vr(V1, 4)}, v93
    v_add_u32 v90, 1024, v90
    v_add_u32 v91, {VT}, v91
    v_add_u32 v93, {VT}, v93
    s_waitcnt lgkmcnt(0)
    {MFMA} {vr(S[0], 16)}, {vr(Kf, 4)}, {vr(Q, 4)}, {vr(M, 16)}''')
    for i in range(16):
        a(f'v_exp_f32 v{S[0] + i}, v{S[0] + i}')
    a(f'''{SMF} {vr(O, 16)}, {vr(V0, 4)}, {vr(S[0], 8)}, v{vIX}
    {SMF} {vr(O, 16)}, {vr(V1, 4)}, {vr(S[0] + 8, 8)}, v{vIX}
    s_sub_u32 s25, s25, 1
    s_cmp_lg_u32 s25, 0
    s_cbranch_scc1 K2_R2
    s_branch K2_FIN''')

    sCI, sT, sCH, sLB = 14, 15, 16, 17
    vA, vB = 4, 5
    acc = 8
    FA, FB = (24, 32), (28, 36)
    a(f'''K2_CONV:
    s_setprio 2
    s_sub_u32 s18, s{sWV}, 8
    s_lshr_b32 s{sCI}, s18, 1
    s_and_b32 s{sT}, s18, 1
    s_lshl_b32 s{sCH}, s2, 1
    s_add_u32 s{sCH}, s{sCH}, s{sCI}
    s_mul_i32 s{sLB}, s{sCI}, {K2_CVS}
    s_add_u32 s{sLB}, s{sLB}, {K2_CV}''')
    swap23(a, 6, 2, 7)
    a(f'''v_and_b32 v7, 1, v6
    v_cmp_eq_u32 vcc, 0, v7
    v_mov_b32 v7, 4158
    v_cndmask_b32 v7, 0, v7, vcc
    v_lshlrev_b32 v6, 1, v6
    v_sub_u32 v7, v7, v6
    v_lshl_add_u32 v7, v3, 4, v7
    v_add_u32 v7, {4094 - 32 * 14}, v7
    v_add_u32 v{vA}, s{sLB}, v7
    v_mul_u32_u24 v7, 96, v3
    v_add_u32 v7, v7, v2
    s_lshl_b32 s19, s{sT}, 9
    s_add_u32 s19, s19, s{sLB}
    s_add_u32 s19, s19, {9216 + (32 - 7) * 16}
    v_lshl_add_u32 v{vB}, v7, 4, s19''')
    for i in range(16):
        a(f'v_mov_b32 v{acc + i}, 0')
    a(f'''s_cmp_eq_u32 s{sT}, 0
    s_cbranch_scc1 K2_CU
    s_mul_i32 s20, s{sCH}, {KCS}
    s_add_u32 s20, s20, {KC}
    v_add_u32 v6, {4096 - 4158}, v1
    v_add_u32 v7, 4096, v1
    v_cmp_gt_u32 vcc, 4, v0
    v_cndmask_b32 v6, v6, v7, vcc
    v_add_u32 v7, {5120 - 4158}, v1
    s_barrier
    s_mov_b32 m0, s{sLB}
    s_nop 0''')
    for q in range(4):
        a(f'buffer_load_dwordx4 v1, {W}, s20 offen offset:{q * 1024} lds')
    a(f'''s_add_u32 m0, s{sLB}, 4096
    s_nop 0
    buffer_load_dwordx4 v6, {W}, s20 offen lds
    s_add_u32 m0, s{sLB}, 5120
    s_nop 0''')
    for q in range(4):
        a(f'buffer_load_dwordx4 v7, {W}, s20 offen offset:{q * 1024} lds')
    a(f'''s_branch K2_CW
K2_CU:
    s_lshl_b32 s20, s{sCH}, 12
    s_add_u32 s20, s20, {XT}
    s_mov_b32 s21, 683''')
    for q in range(6):
        r = 40 + q
        a(f'''v_add_u32 v6, {64 * q}, v0
        v_mul_u32_u24 v7, s21, v6
        v_lshrrev_b32 v7, 16, v7
        v_mul_u32_u24 v{r}, 96, v7
        v_sub_u32 v6, v6, v{r}
        v_subrev_u32 v{r}, 32, v6
        v_lshlrev_b32 v{r}, 6, v{r}
        v_lshl_add_u32 v{r}, v7, 4, v{r}
        v_cmp_gt_u32 vcc, 32, v6
        v_mov_b32 v7, 0x7fff0000
        v_cndmask_b32 v{r}, v{r}, v7, vcc''')
    a('s_barrier')
    for q in range(6):
        a(f'''s_add_u32 m0, s{sLB}, {9216 + q * 1024}
        s_nop 0
        buffer_load_dwordx4 v{40 + q}, {W}, s20 offen lds''')
    a(f'''K2_CW:
    s_lshl_b32 s22, s{sT}, 2
    s_add_u32 s22, s22, 4
    s_waitcnt vmcnt(0)
    s_barrier
K2_CL:''')

    def creads(k):
        f = k & 1
        oa = (15 - k) * 8
        ob = (7 - (k >> 1)) * 16 + (3072 if (k & 1) == 0 else 0)
        a(f'''ds_read2_b32 {vr(FA[f], 2)}, v{vA} offset0:{oa} offset1:{oa + 1}
        ds_read2_b32 {vr(FA[f] + 2, 2)}, v{vA} offset0:{oa + 2} offset1:{oa + 3}
        ds_read_b128 {vr(FB[f], 4)}, v{vB} offset:{ob}''')

    creads(0)
    for k in range(16):
        if k + 1 < 16:
            creads(k + 1)
            a('s_waitcnt lgkmcnt(3)')
        else:
            a(f'''v_subrev_u32 v{vA}, 512, v{vA}
            v_subrev_u32 v{vB}, 128, v{vB}
            s_sub_u32 s22, s22, 1
            s_cmp_lg_u32 s22, 0
            s_waitcnt lgkmcnt(0)''')
        a(f'{MFMA} {vr(acc, 16)}, {vr(FA[k & 1], 4)}, {vr(FB[k & 1], 4)}, {vr(acc, 16)}')
    a(f'''s_cbranch_scc1 K2_CL
    s_lshl_b32 s20, s{sCH}, 12
    s_lshl_b32 s21, s{sT}, 11
    s_add_u32 s20, s20, s21
    s_add_u32 s20, s20, {BT}
    v_lshlrev_b32 v6, 6, v2
    v_lshl_add_u32 v6, v3, 4, v6''')
    cvt8(a, 24, acc)
    a(f'''buffer_store_dwordx4 v[24:27], v6, {W}, s20 offen
    buffer_store_dwordx4 v[28:31], v6, {W}, s20 offen offset:32
K2_END:
    s_endpgm''')


K3_CH = (0, 10, 20, 27, 32)


def k3(a):
    sWS, sOUT, sWV, sTB, sCB = 8, 12, 3, 16, 17
    a(f'''s_cmp_ge_u32 s2, 256
    s_cbranch_scc1 K3_END
    s_load_dwordx2 s[4:5], s[0:1], 104
    s_load_dwordx2 s[6:7], s[0:1], 88
    v_lshrrev_b32 v1, 6, v0
    v_and_b32 v0, 63, v0
    v_readfirstlane_b32 s{sWV}, v1
    v_lshlrev_b32 v1, 4, v0
    v_and_b32 v2, 31, v0
    v_lshrrev_b32 v3, 5, v0
    s_and_b32 s{sTB}, s2, 31
    s_lshr_b32 s{sCB}, s2, 5
    s_and_b32 s18, s{sWV}, 1
    s_lshr_b32 s19, s{sWV}, 1
    s_lshl_b32 s20, s{sTB}, 1
    s_add_u32 s20, s20, s18
    s_lshl_b32 s21, s{sCB}, 1
    s_add_u32 s22, s21, s18
    s_add_u32 s21, s21, s19
    s_lshl_b32 s23, s20, 15
    s_add_u32 s23, s23, {OF}
    s_lshl_b32 s22, s22, 15
    s_add_u32 s22, s22, {WOF}
    s_cmp_eq_u32 s19, 0
    s_cselect_b32 s22, s23, s22
    s_lshl_b32 s23, s{sWV}, 15
    s_waitcnt lgkmcnt(0)''')
    srd(a, sWS, 4, WS_BYTES)
    srd(a, sOUT, 6, 0x200000)
    W = f's[{sWS}:{sWS + 3}]'
    vBT, vG, vID, vAo, vAw = 8, 16, 20, 28, 29
    acc, accb = 32, 48
    FR = (64, 72)
    swap23(a, 4, 2, 5)
    a(f'''v_lshlrev_b32 v5, 12, v4
    v_lshl_add_u32 v5, v3, 4, v5
    s_lshl_b32 s24, s21, 17
    s_lshl_b32 s25, s20, 6
    s_add_u32 s24, s24, s25
    s_add_u32 s24, s24, {BT}
    s_lshl_b32 s25, s20, 7
    s_add_u32 s25, s25, {GG}
    v_lshlrev_b32 v6, 2, v2''')
    for k in range(0, 32, 4):
        a(f'''s_add_u32 m0, s23, {k * 1024}
        s_add_u32 s26, s22, {k * 1024}''')
        for q in range(4):
            a(f'buffer_load_dwordx4 v1, {W}, s26 offen offset:{q * 1024} lds')
    a(f'''buffer_load_dwordx4 {vr(vBT, 4)}, v5, {W}, s24 offen
    buffer_load_dwordx4 {vr(vBT + 4, 4)}, v5, {W}, s24 offen offset:32
    buffer_load_dword v{vG}, v6, {W}, s25 offen
    s_lshl_b32 s26, s18, 15
    v_add_u32 v{vAo}, s26, v1
    s_lshl_b32 s26, s19, 15
    s_add_u32 s26, s26, 65536
    v_add_u32 v{vAw}, s26, v1''')
    identity_frags(a, vID, 2, 3, 6, 7)
    for i in range(16):
        a(f'v_mov_b32 v{acc + i}, 0')

    def reads(k):
        f = FR[k & 1]
        a(f'''ds_read_b128 {vr(f, 4)}, v{vAw} offset:{k * 1024}
        ds_read_b128 {vr(f + 4, 4)}, v{vAo} offset:{k * 1024}''')

    for c in range(len(K3_CH) - 1):
        k0, k1_ = K3_CH[c], K3_CH[c + 1]
        a(f'''s_waitcnt vmcnt({35 - k1_})
        s_barrier''')
        reads(k0)
        for k in range(k0, k1_):
            if k + 1 < k1_:
                reads(k + 1)
                a('s_waitcnt lgkmcnt(2)')
            else:
                a('s_waitcnt lgkmcnt(0)')
            a(f'{MFMA} {vr(acc, 16)}, {vr(FR[k & 1], 4)}, {vr(FR[k & 1] + 4, 4)}, {vr(acc, 16)}')
    a(f'''s_waitcnt vmcnt(0)
    {MFMA} {vr(accb, 16)}, {vr(vBT, 4)}, {vr(vID, 4)}, 0
    {MFMA} {vr(accb, 16)}, {vr(vBT + 4, 4)}, {vr(vID + 4, 4)}, {vr(accb, 16)}
    v_lshlrev_b32 v5, 10, v2
    v_lshl_add_u32 v5, v3, 4, v5
    s_lshl_b32 s24, s20, 15
    s_lshl_b32 s25, s21, 6
    s_add_u32 s24, s24, s25''')
    for i in range(16):
        a(f'v_sub_f32 v{acc + i}, v{acc + i}, v{accb + i}')
    for i in range(16):
        a(f'v_fma_f32 v{acc + i}, v{vG}, v{acc + i}, v{accb + i}')
    cvt8(a, 64, acc)
    a(f'''buffer_store_dwordx4 v[64:67], v5, s[{sOUT}:{sOUT + 3}], s24 offen
    buffer_store_dwordx4 v[68:71], v5, s[{sOUT}:{sOUT + 3}], s24 offen offset:32
K3_END:
    s_endpgm''')


KERNELS = [
    ('gm_qkv_kernel', k1, 512, 163840, 208),
    ('gm_attn_kernel', k2, 768, K2_LDS, 96),
    ('gm_out_kernel', k3, 256, 131072, 80),
]


def build():
    here = os.path.dirname(os.path.abspath(__file__))
    ref = open(os.path.join(here, '..', 'cdna_kernels', NAME + '.s.ref')).read().split('\n')
    head = [l for l in ref if l.startswith(';') and 'launch' not in l.lower() and 'lds=0' not in l]
    out = '\n'.join(head) + '\n'
    for name, _, blk, lds, _ in KERNELS:
        out += f'; @launch kernel={name} grid=(256,1,1) block=({blk},1,1) lds={lds}\n'
    out += '.amdgcn_target "amdgcn-amd-amdhsa--gfx950"\n.text\n'
    for name, fn, _, _, _ in KERNELS:
        a = Asm()
        fn(a)
        bad = a.check_branches()
        if bad:
            for b in bad:
                print('BRANCH HAZARD', name, b, file=sys.stderr)
            sys.exit(1)
        if os.environ.get('SHOWPAD'):
            for p in a.padded:
                print('pad', name, p, file=sys.stderr)
        out += f'.globl {name}\n.p2align 8\n.type {name},@function\n{name}:\n' + a.text()
    out += '.section .rodata,"a"\n'
    for name, _, _, _, nv in KERNELS:
        out += f'''.p2align 6
.amdhsa_kernel {name}
  .amdhsa_next_free_vgpr {nv}
  .amdhsa_next_free_sgpr 96
  .amdhsa_accum_offset {nv}
  .amdhsa_group_segment_fixed_size 0
  .amdhsa_kernarg_size 112
  .amdhsa_user_sgpr_count 2
  .amdhsa_user_sgpr_kernarg_segment_ptr 1
  .amdhsa_system_sgpr_workgroup_id_x 1
.end_amdhsa_kernel
'''
    return out


if __name__ == '__main__':
    dst = sys.argv[1] if len(sys.argv) > 1 else os.path.join(os.path.dirname(os.path.abspath(__file__)), '..', 'cdna_kernels', NAME + '.s')
    open(dst, 'w').write(build())
    print('wrote', dst)
```

```python
import sys, os, struct
sys.path.insert(0, os.path.dirname(os.path.abspath(__file__)))
from asmlib import Asm, vr, sr

NAME = 'gated_mix__softmax_full_mha__ssm_conv_s4d__prompt'

QF, KF, VF, OF, XT, BT = 0x000000, 0x200000, 0x400000, 0x600000, 0x800000, 0xA00000
WOF, GG, KC = 0xC00000, 0xC80000, 0xD00000
KCS = 4224
WS_BYTES = 0x1000000


def f32(x):
    return '0x%08x' % struct.unpack('<I', struct.pack('<f', x))[0]


LOG2E = 1.4426950408889634
MFMA = 'v_mfma_f32_32x32x16_bf16'
SMF = 'v_smfmac_f32_32x32x32_bf16'


STAMP = bool(os.environ.get('STAMP'))
STAMPS = 0xF20000


def stamp(a, i):
    if STAMP:
        a(f's_memtime s[{66 + 2 * i}:{67 + 2 * i}]')
        if i == 0:
            a('s_memrealtime s[82:83]')


def stamp_flush(a, kidx, ws, wave):
    if STAMP:
        a(f'''s_waitcnt vmcnt(0)
        s_memtime s[80:81]
        s_memrealtime s[84:85]
        s_lshl_b32 s86, s2, 4
        s_add_u32 s86, s86, s{wave}
        s_lshl_b32 s86, s86, 6
        s_add_u32 s86, s86, {STAMPS + kidx * 0x40000}
        s_mov_b64 exec, 1
        v_mov_b32 v0, 0
        s_waitcnt lgkmcnt(0)''')
        for i in range(10):
            a(f'''v_mov_b32 v1, s{66 + 2 * i}
            buffer_store_dword v1, v0, s[{ws}:{ws + 3}], s86 offen offset:{4 * i}''')


def srd(a, d, base, nbytes):
    a(f'''s_mov_b32 s{d}, s{base}
    s_and_b32 s{d + 1}, s{base + 1}, 0xffff
    s_mov_b32 s{d + 2}, {nbytes:#x}
    s_mov_b32 s{d + 3}, 0x20000''')


def swap23(a, dst, src, t):
    a(f'''v_lshrrev_b32 v{t}, 1, v{src}
    v_xor_b32 v{t}, v{t}, v{src}
    v_and_b32 v{t}, 4, v{t}
    v_mul_u32_u24 v{t}, 3, v{t}
    v_xor_b32 v{dst}, v{t}, v{src}''')


def identity_frags(a, dst, vn, vh, t0, t1):
    a(f'''v_and_b32 v{t0}, 1, v{vn}
    v_lshlrev_b32 v{t0}, 4, v{t0}
    v_mov_b32 v{t1}, 0x3f80
    v_lshlrev_b32 v{t0}, v{t0}, v{t1}
    v_lshrrev_b32 v{t1}, 1, v{vn}
    v_lshlrev_b32 v{dst}, 2, v{vh}
    v_sub_u32 v{t1}, v{t1}, v{dst}''')
    for s in range(2):
        for q in range(4):
            a(f'''v_cmp_eq_u32 vcc, {8 * s + q}, v{t1}
            v_cndmask_b32 v{dst + 4 * s + q}, 0, v{t0}, vcc''')


def cvt8(a, dst, src, n=8):
    for i in range(n):
        a(f'v_cvt_pk_bf16_f32 v{dst + i}, v{src + 2 * i}, v{src + 2 * i + 1}')


K1_XR = 98304
K1_AUX = 147456


def k1(a):
    sX, sW, sWS = 28, 32, 36
    sWV, sRB, sCB = 3, 40, 41
    a(f'''s_cmp_ge_u32 s2, 256
    s_cbranch_scc1 K1_END''')
    stamp(a, 0)
    a(f'''s_load_dwordx4 s[4:7], s[0:1], 0
    s_load_dwordx2 s[8:9], s[0:1], 16
    s_load_dwordx8 s[12:19], s[0:1], 32
    s_load_dwordx4 s[20:23], s[0:1], 64
    s_load_dwordx2 s[24:25], s[0:1], 80
    s_load_dwordx2 s[26:27], s[0:1], 104
    v_lshrrev_b32 v1, 6, v0
    v_and_b32 v0, 63, v0
    v_readfirstlane_b32 s{sWV}, v1
    s_and_b32 s42, s2, 7
    s_lshr_b32 s43, s2, 3
    s_lshr_b32 s{sRB}, s42, 1
    s_lshl_b32 s{sRB}, s{sRB}, 2
    s_and_b32 s44, s43, 3
    s_add_u32 s{sRB}, s{sRB}, s44
    s_and_b32 s{sCB}, s42, 1
    s_lshl_b32 s{sCB}, s{sCB}, 3
    s_lshr_b32 s44, s43, 2
    s_add_u32 s{sCB}, s{sCB}, s44
    v_and_b32 v2, 31, v0
    v_lshrrev_b32 v3, 5, v0''')
    swap23(a, 4, 2, 5)
    a(f'''v_lshrrev_b32 v5, 2, v0
    v_mul_u32_u24 v5, 3072, v5
    v_and_b32 v6, 3, v0
    v_lshl_add_u32 v5, v6, 4, v5
    s_lshl_b32 s44, s{sCB}, 6
    s_mul_i32 s45, s{sWV}, 49152
    s_add_u32 s44, s44, s45
    s_mul_i32 s45, s{sWV}, 3072
    s_waitcnt lgkmcnt(0)''')
    srd(a, sX, 4, 0x200000)
    srd(a, sW, 6, 0x180000)
    srd(a, sWS, 26, WS_BYTES)

    def w_dma():
        for i in range(4):
            a(f'''s_add_u32 m0, s45, {i * 24576}
            s_add_u32 s46, s44, {i * 393216}''')
            for s in range(3):
                a(f'buffer_load_dwordx4 v5, s[{sW}:{sW + 3}], s46 offen offset:{s * 1024} lds')

    a(f'''s_cmp_ge_u32 s{sWV}, 4
    s_cbranch_scc1 K1_AUX''')

    w_dma()
    vXD, vXR, vWQ, vWV = 8, 12, 16, 17
    accQ, accK, accV = 32, 48, 64
    FR = (80, 96)
    a(f'''v_lshrrev_b32 v6, 4, v0
    v_and_b32 v7, 7, v0
    v_xor_b32 v6, v6, v7
    v_lshlrev_b32 v6, 4, v6
    v_lshrrev_b32 v7, 3, v0
    v_lshl_add_u32 v{vXD}, v7, 10, v6
    v_xor_b32 v{vXD + 1}, 64, v{vXD}
    v_add_u32 v{vXD + 2}, {2 * 7168}, v{vXD}
    v_add_u32 v{vXD + 3}, {3 * 7168}, v{vXD + 1}
    v_add_u32 v{vXD + 1}, 7168, v{vXD + 1}
    s_lshl_b32 s47, s{sRB}, 2
    s_add_u32 s47, s47, s{sWV}
    s_lshl_b32 s48, s47, 15
    s_mul_i32 s49, s{sWV}, 12288
    s_add_u32 s49, s49, {K1_XR}''')

    def x_dma(c):
        a(f'''s_add_u32 m0, s49, {(c % 3) * 4096}
        s_add_u32 s46, s48, {c * 128}''')
        for q in range(4):
            a(f'buffer_load_dwordx4 v{vXD + q}, s[{sX}:{sX + 3}], s46 offen offset:{q * 1024} lds')

    for c in range(3):
        x_dma(c)
    a(f'''v_bfe_u32 v6, v4, 1, 3
    v_xor_b32 v6, v6, v3
    v_lshlrev_b32 v6, 4, v6
    v_lshl_add_u32 v6, v4, 7, v6
    v_add_u32 v{vXR}, s49, v6
    v_xor_b32 v7, 32, v6
    v_add_u32 v{vXR + 1}, s49, v7
    v_xor_b32 v7, 64, v6
    v_add_u32 v{vXR + 2}, s49, v7
    v_xor_b32 v7, 96, v6
    v_add_u32 v{vXR + 3}, s49, v7
    v_bfe_u32 v6, v0, 2, 2
    v_lshl_add_u32 v6, v3, 3, v6
    v_lshlrev_b32 v6, 6, v6
    v_bfe_u32 v7, v0, 4, 1
    v_lshl_add_u32 v6, v7, 5, v6
    v_and_b32 v7, 3, v0
    v_lshl_add_u32 v{vWV}, v7, 3, v6
    v_bfrev_b32 v7, v7
    v_lshrrev_b32 v7, 30, v7
    v_lshl_add_u32 v{vWQ}, v7, 3, v6''')
    for i in range(48):
        a(f'v_mov_b32 v{accQ + i}, 0')

    def reads(s):
        f = FR[s & 1]
        c = s >> 2
        a(f'ds_read_b128 {vr(f, 4)}, v{vXR + (s & 3)} offset:{(c % 3) * 4096}')
        for seg in range(3):
            base = vWV if seg == 2 else vWQ
            off = (s & 15) * 3072 + seg * 1024
            a(f'''ds_read_b64_tr_b16 {vr(f + 4 + 4 * seg, 2)}, v{base} offset:{off}
            ds_read_b64_tr_b16 {vr(f + 6 + 4 * seg, 2)}, v{base} offset:{off + 256}''')

    stamp(a, 1)
    a('s_waitcnt vmcnt(8)')
    stamp(a, 2)
    a('s_barrier')
    stamp(a, 3)
    reads(0)
    for s in range(32):
        c = s >> 2
        f = FR[s & 1]
        if s + 1 < 32:
            if (s & 3) == 3:
                a(f's_waitcnt vmcnt({4 if c + 2 <= 7 else 0})')
            if s + 1 == 16:
                a(f'''v_add_u32 v{vWQ}, 49152, v{vWQ}
                v_add_u32 v{vWV}, 49152, v{vWV}''')
            reads(s + 1)
            a('s_waitcnt lgkmcnt(7)')
        else:
            a('s_waitcnt lgkmcnt(0)')
        if (s & 3) == 3 and c + 3 <= 7:
            x_dma(c + 3)
        a(f'''{MFMA} {vr(accQ, 16)}, {vr(f + 4, 4)}, {vr(f, 4)}, {vr(accQ, 16)}
        {MFMA} {vr(accK, 16)}, {vr(f + 8, 4)}, {vr(f, 4)}, {vr(accK, 16)}
        {MFMA} {vr(accV, 16)}, {vr(f, 4)}, {vr(f + 12, 4)}, {vr(accV, 16)}''')
    stamp(a, 4)
    a(f'''v_lshl_add_u32 v6, v3, 5, v4
    v_lshlrev_b32 v6, 4, v6
    v_lshrrev_b32 v7, 4, v2
    v_lshlrev_b32 v7, 16, v7
    v_lshl_add_u32 v7, v3, 8, v7
    v_and_b32 v8, 15, v2
    v_lshl_add_u32 v7, v8, 4, v7
    s_lshl_b32 s50, s{sCB}, 17
    s_lshl_b32 s51, s47, 10
    s_add_u32 s50, s50, s51
    s_add_u32 s51, s50, 0x10000
    s_add_u32 s52, s50, {KF}
    s_add_u32 s53, s51, {KF}
    s_add_u32 s54, s50, {VF}
    s_mov_b32 s55, {f32(0.25 * LOG2E)}''')
    for i in range(16):
        a(f'v_mul_f32 v{accQ + i}, s55, v{accQ + i}')
    cvt8(a, 80, accQ)
    a(f'''buffer_store_dwordx4 v[80:83], v6, s[{sWS}:{sWS + 3}], s50 offen
    buffer_store_dwordx4 v[84:87], v6, s[{sWS}:{sWS + 3}], s51 offen''')
    cvt8(a, 88, accK)
    a(f'''buffer_store_dwordx4 v[88:91], v6, s[{sWS}:{sWS + 3}], s52 offen
    buffer_store_dwordx4 v[92:95], v6, s[{sWS}:{sWS + 3}], s53 offen''')
    cvt8(a, 96, accV)
    a(f'''buffer_store_dwordx4 v[96:99], v7, s[{sWS}:{sWS + 3}], s54 offen
    buffer_store_dwordx4 v[100:103], v7, s[{sWS}:{sWS + 3}], s54 offen offset:512''')
    stamp(a, 5)
    stamp_flush(a, 0, sWS, sWV)
    a('s_endpgm')

    sWP, sCH, sMH, sPB, sTP = 47, 48, 49, 50, 51
    vP = 8
    vXT, vGX, vGW, vWO = 12, 20, 28, 32
    vT1, vT2, vPA = 40, 41, 42
    vGA = 44
    vID = 60
    acc = 68
    PR = (84, 100)
    tX, tY, tC, tS = 116, 124, 132, 140
    fA, fB = 148, 152
    a(f'''K1_AUX:
    s_sub_u32 s{sWP}, s{sWV}, 4
    s_lshr_b32 s52, s{sWP}, 1
    s_lshl_b32 s{sCH}, s2, 1
    s_add_u32 s{sCH}, s{sCH}, s52
    s_and_b32 s{sMH}, s{sWP}, 1
    s_lshl_b32 s53, s{sCH}, 8
    s_lshl_b32 s54, s{sMH}, 7
    s_add_u32 s53, s53, s54
    v_lshl_add_u32 v6, v0, 1, s53
    global_load_ushort v{vP}, v6, s[12:13]
    global_load_ushort v{vP + 1}, v6, s[14:15]
    global_load_ushort v{vP + 2}, v6, s[16:17]
    global_load_ushort v{vP + 3}, v6, s[18:19]
    s_lshl_b32 s53, s2, 2
    s_load_dword s56, s[20:21], s53
    s_load_dword s57, s[22:23], s53''')
    w_dma()
    a(f'''s_lshl_b32 s58, s{sRB}, 2
    s_add_u32 s58, s58, s{sWP}
    s_lshl_b32 s53, s58, 15
    s_lshl_b32 s54, s{sCB}, 6
    s_add_u32 s53, s53, s54
    v_lshlrev_b32 v6, 10, v4
    v_lshl_add_u32 v6, v3, 4, v6
    buffer_load_dwordx4 {vr(vXT, 4)}, v6, s[{sX}:{sX + 3}], s53 offen
    buffer_load_dwordx4 {vr(vXT + 4, 4)}, v6, s[{sX}:{sX + 3}], s53 offen offset:32
    s_lshl_b32 s59, s{sRB}, 7
    s_lshl_b32 s54, s{sCB}, 3
    s_add_u32 s59, s59, s54
    s_lshl_b32 s54, s{sWP}, 1
    s_add_u32 s59, s59, s54
    s_lshl_b32 s53, s59, 10
    v_lshlrev_b32 v7, 4, v0
    buffer_load_dwordx4 {vr(vGX, 4)}, v7, s[{sX}:{sX + 3}], s53 offen
    buffer_load_dwordx4 {vr(vGX + 4, 4)}, v7, s[{sX}:{sX + 3}], s53 offen offset:1024
    global_load_dwordx4 {vr(vGW, 4)}, v7, s[24:25]
    s_cmp_lg_u32 s{sWP}, 3
    s_cbranch_scc1 K1_NOWO1
    s_lshr_b32 s53, s2, 4
    s_lshl_b32 s53, s53, 15
    s_and_b32 s54, s2, 15
    s_lshl_b32 s54, s54, 6
    s_add_u32 s53, s53, s54
    v_lshlrev_b32 v6, 10, v2
    v_lshl_add_u32 v6, v3, 4, v6
    v_add_u32 v6, s53, v6
    global_load_dwordx4 {vr(vWO, 4)}, v6, s[8:9]
    global_load_dwordx4 {vr(vWO + 4, 4)}, v6, s[8:9] offset:32
K1_NOWO1:
    s_lshl_b32 s{sPB}, s{sWP}, 12
    s_add_u32 s{sPB}, s{sPB}, {K1_AUX}
    s_lshl_b32 s{sTP}, s52, 13
    s_add_u32 s{sTP}, s{sTP}, {K1_AUX + 1024}''')
    a(f'''v_mov_b32 v6, s{sPB}
    v_mov_b32 v7, 0
    ds_write_b32 v6, v7 offset:4092''')
    a(f'''v_lshlrev_b32 v6, 3, v2
    v_cvt_f32_u32 v{vT2}, v6
    v_lshlrev_b32 v6, 8, v2
    v_subrev_u32 v6, 3072, v6
    v_bfe_u32 v7, v2, 1, 1
    v_lshlrev_b32 v7, 8, v7
    v_and_b32 v{vT1}, 1, v2
    v_lshl_add_u32 v7, v{vT1}, 2, v7
    v_add_u32 v7, 512, v7
    v_cmp_gt_u32 vcc, 16, v2
    v_cndmask_b32 v6, v6, v7, vcc
    v_lshlrev_b32 v7, 1, v2
    v_add_u32 v7, 240, v7
    v_cmp_gt_u32 vcc, 12, v2
    v_cndmask_b32 v6, v6, v7, vcc
    v_cmp_gt_u32 vcc, 8, v2
    v_cndmask_b32 v6, v6, v2, vcc
    v_cvt_f32_u32 v{vT1}, v6
    v_lshl_add_u32 v{vPA}, v3, 6, s{sPB}''')
    identity_frags(a, vID, 2, 3, 6, 7)
    a(f's_sub_u32 s53, s{sTP}, {0x4280 * 4}')
    for r in range(2):
        a(f'''s_lshl_b32 s54, s{sMH}, 10
        s_sub_u32 s54, {2047 - 512 * r}, s54
        v_lshlrev_b32 v6, 3, v0
        v_sub_u32 v{tX}, s54, v6
        v_cvt_f32_u32 v{tY}, v{tX}''')
        for e in range(1, 8):
            a(f'v_add_f32 v{tY + e}, {f32(-float(e))}, v{tY}')
        for e in range(0, 8, 2):
            g = vGA + 8 * r + e
            a(f'''v_cvt_pk_bf16_f32 v6, v{tY + e}, v{tY + e + 1}
            v_and_b32 v7, 0xffff, v6
            v_lshrrev_b32 v6, 16, v6
            v_lshl_add_u32 v{g}, v7, 2, s53
            v_lshl_add_u32 v{g + 1}, v6, 2, s53''')
        if r == 1:
            for e in range(8):
                a(f'''v_subrev_u32 v6, {e}, v{tX}
                v_min_u32 v6, 0x80, v6
                v_lshl_add_u32 v6, v6, 2, s{sTP}
                v_max_i32 v{vGA + 8 + e}, v{vGA + 8 + e}, v6''')
    stamp(a, 1)
    a(f'''s_waitcnt vmcnt(17) lgkmcnt(0)
    s_lshl_b32 s54, s52, 4
    s_lshr_b32 s56, s56, s54
    s_lshl_b32 s56, s56, 16
    s_lshr_b32 s57, s57, s54
    s_lshl_b32 s57, s57, 16
    s_mov_b32 s60, {f32(LOG2E)}
    v_mov_b32 v6, s56
    v_mul_f32 v6, s60, v6
    v_lshlrev_b32 v{vP}, 16, v{vP}
    v_mul_f32 v{vP}, s60, v{vP}
    v_exp_f32 v6, v6
    v_exp_f32 v{vP}, v{vP}
    v_lshlrev_b32 v{vP + 1}, 16, v{vP + 1}
    v_cvt_pk_bf16_f32 v6, v6, v{vP}
    v_and_b32 v{vP}, 0xffff0000, v6
    v_lshlrev_b32 v6, 16, v6
    v_mul_f32 v{vP}, v{vP}, v6
    v_mul_f32 v{vP}, {f32(-LOG2E)}, v{vP}
    v_mul_f32 v{vP + 1}, v{vP + 1}, v6
    v_mul_f32 v{vP + 1}, 0.15915494, v{vP + 1}''')
    a(f'''v_add_f32 v6, v6, v6
    v_lshlrev_b32 v{vP + 2}, 16, v{vP + 2}
    v_lshlrev_b32 v{vP + 3}, 16, v{vP + 3}
    v_mul_f32 v{vP + 2}, v{vP + 2}, v6
    v_mul_f32 v{vP + 3}, v{vP + 3}, v6
    v_lshl_add_u32 v6, v0, 4, s{sPB}
    ds_write_b128 v6, {vr(vP, 4)}''')
    for i in range(16):
        a(f'v_mov_b32 v{acc + i}, 0')
    a('s_waitcnt lgkmcnt(0)')

    def pread(q):
        for e in range(4):
            a(f'ds_read_b128 {vr(PR[q & 1] + 4 * e, 4)}, v{vPA} offset:{q * 128 + e * 16}')

    def kstep(q):
        p = PR[q & 1]
        if q + 1 < 8:
            pread(q + 1)
            a('s_waitcnt lgkmcnt(4)')
        else:
            a('s_waitcnt lgkmcnt(0)')
        T = lambda k: vT1 if k < 4 else vT2
        for k in range(8):
            a(f'''v_mul_f32 v{tX + k}, v{p + 4 * (k & 3)}, v{T(k)}
            v_mul_f32 v{tY + k}, v{p + 4 * (k & 3) + 1}, v{T(k)}''')
        for k in range(8):
            a(f'''v_exp_f32 v{tX + k}, v{tX + k}
            v_fract_f32 v{tY + k}, v{tY + k}''')
        for k in range(8):
            a(f'''v_cos_f32 v{tC + k}, v{tY + k}
            v_sin_f32 v{tS + k}, v{tY + k}''')
        for k in range(4, 8):
            a(f'''v_mul_f32 v{tC + k}, v{tX + k}, v{tC + k}
            v_mul_f32 v{tS + k}, v{tX + k}, v{tS + k}''')
        for k in range(4):
            a(f'''v_mul_f32 v{tY + k}, v{tX + k}, v{p + 4 * k + 3}
            v_mul_f32 v{tX + k}, v{tX + k}, v{p + 4 * k + 2}''')
        for k in range(4):
            a(f'''v_cvt_pk_bf16_f32 v{fB + k}, v{tC + 4 + k}, v{tS + 4 + k}
            v_mul_f32 v{tX + 4 + k}, v{tX + k}, v{tC + k}
            v_mul_f32 v{tY + 4 + k}, v{tX + k}, v{tS + k}''')
        for k in range(4):
            a(f'''v_fma_f32 v{tX + 4 + k}, -v{tY + k}, v{tS + k}, v{tX + 4 + k}
            v_fma_f32 v{tY + 4 + k}, -v{tY + k}, v{tC + k}, -v{tY + 4 + k}''')
        for k in range(4):
            a(f'v_cvt_pk_bf16_f32 v{fA + k}, v{tX + 4 + k}, v{tY + 4 + k}')
        a(f'{MFMA} {vr(acc, 16)}, {vr(fA, 4)}, {vr(fB, 4)}, {vr(acc, 16)}')

    stamp(a, 2)
    pread(0)
    for q in range(K1_PRE):
        kstep(q)
    stamp(a, 3)
    a('''s_waitcnt vmcnt(0)
    s_barrier''')
    stamp(a, 4)
    D2 = 160
    a(f'''{MFMA} {vr(D2, 16)}, {vr(vXT, 4)}, {vr(vID, 4)}, 0
    {MFMA} {vr(D2, 16)}, {vr(vXT + 4, 4)}, {vr(vID + 4, 4)}, {vr(D2, 16)}
    v_mov_b32 v6, 0
    v_mov_b32 v7, 0''')
    for i in range(4):
        a(f'''v_dot2_f32_bf16 v6, v{vGX + i}, v{vGW + i}, v6
        v_dot2_f32_bf16 v7, v{vGX + 4 + i}, v{vGW + i}, v7''')
    a('s_nop 2')
    for d in ('row_shr:1', 'row_shr:2', 'row_shr:4', 'row_shr:8', 'row_bcast:15 row_mask:0xa', 'row_bcast:31 row_mask:0xc'):
        a(f'''v_add_f32_dpp v6, v6, v6 {d}
        v_add_f32_dpp v7, v7, v7 {d}''')
    a(f'''v_mul_f32 v6, {f32(-LOG2E)}, v6
    v_mul_f32 v7, {f32(-LOG2E)}, v7
    v_exp_f32 v6, v6
    v_exp_f32 v7, v7
    v_add_f32 v6, 1.0, v6
    v_add_f32 v7, 1.0, v7
    v_rcp_f32 v6, v6
    v_rcp_f32 v7, v7
    s_lshl_b32 s53, s59, 2
    s_add_u32 s53, s53, {GG}
    v_mov_b32 v{tX}, 0
    s_mov_b32 exec_lo, 0
    s_brev_b32 exec_hi, 1
    buffer_store_dwordx2 v[6:7], v{tX}, s[{sWS}:{sWS + 3}], s53 offen
    s_mov_b64 exec, -1''')
    cvt8(a, vXT, D2)
    a(f'''v_lshlrev_b32 v{tX}, 12, v2
    v_lshl_add_u32 v{tX}, v3, 4, v{tX}
    s_lshl_b32 s53, s{sCB}, 17
    s_lshl_b32 s54, s58, 6
    s_add_u32 s53, s53, s54
    s_add_u32 s53, s53, {XT}
    buffer_store_dwordx4 {vr(vXT, 4)}, v{tX}, s[{sWS}:{sWS + 3}], s53 offen
    buffer_store_dwordx4 {vr(vXT + 4, 4)}, v{tX}, s[{sWS}:{sWS + 3}], s53 offen offset:32
    s_cmp_lg_u32 s{sWP}, 3
    s_cbranch_scc1 K1_NOWO2
    {MFMA} {vr(D2, 16)}, {vr(vWO, 4)}, {vr(vID, 4)}, 0
    {MFMA} {vr(D2, 16)}, {vr(vWO + 4, 4)}, {vr(vID + 4, 4)}, {vr(D2, 16)}
    v_lshl_add_u32 v{tX}, v3, 5, v4
    v_lshlrev_b32 v{tX}, 4, v{tX}
    s_and_b32 s53, s2, 15
    s_lshl_b32 s53, s53, 15
    s_lshr_b32 s54, s2, 4
    s_lshl_b32 s54, s54, 11
    s_add_u32 s53, s53, s54
    s_add_u32 s53, s53, {WOF}''')
    cvt8(a, vWO, D2)
    a(f'''buffer_store_dwordx4 {vr(vWO, 4)}, v{tX}, s[{sWS}:{sWS + 3}], s53 offen
    buffer_store_dwordx4 {vr(vWO + 4, 4)}, v{tX}, s[{sWS}:{sWS + 3}], s53 offen offset:1024
K1_NOWO2:
    s_nop 1''')
    for q in range(K1_PRE, 8):
        kstep(q)
    stamp(a, 5)
    a(f'''v_lshlrev_b32 v6, 3, v2
    v_lshl_add_u32 v6, v3, 2, v6
    v_lshl_add_u32 v{tX}, v6, 2, s{sPB}
    v_lshlrev_b32 v6, 2, v2
    v_add_u32 v6, 256, v6
    v_lshlrev_b32 v7, 1, v2
    v_add_u32 v7, 384, v7
    v_cmp_eq_u32 vcc, 1, v3
    v_cndmask_b32 v6, v6, v7, vcc
    v_lshl_add_u32 v{tX + 1}, v6, 2, s{sPB}
    v_cndmask_b32 v7, 2, 64, vcc
    v_lshl_add_u32 v{tX + 2}, v7, 2, v{tX + 1}
    v_lshl_add_u32 v6, v3, 7, v2
    v_lshl_add_u32 v{tX + 3}, v6, 2, s{sPB}''')
    for jj in range(4):
        a(f'ds_write_b32 v{tX}, v{acc + jj} offset:{1024 + jj * 4}')
    for jj in range(4):
        a(f'ds_write_b32 v{tX + 1 + (jj >> 1)}, v{acc + 4 + jj} offset:{1024 + (jj & 1) * 4}')
    a(f'''ds_write_b32 v{tX + 3}, v{acc + 8} offset:{1024 + 2048}
    s_mov_b32 exec_hi, 0''')
    for jj in range(1, 4):
        a(f'ds_write_b32 v{tX + 3}, v{acc + 8 + jj} offset:{1024 + 2048 + jj * 128}')
    a(f'''s_mov_b64 exec, -1
    v_mov_b32 v6, s{sPB}
    v_mov_b32 v7, 1
    s_waitcnt lgkmcnt(0)
    ds_write_b32 v6, v7 offset:4092
    v_xor_b32 v6, 0x1000, v6
K1_POLL:
    ds_read_b32 v7, v6 offset:4092
    s_waitcnt lgkmcnt(0)
    v_readfirstlane_b32 s53, v7
    s_cmp_eq_u32 s53, 1
    s_cbranch_scc0 K1_POLL''')
    G0 = 176
    for k in range(16):
        a(f'ds_read2st64_b32 {vr(G0 + 2 * k, 2)}, v{vGA + k} offset0:0 offset1:16')
        if k == 7:
            a('s_waitcnt lgkmcnt(0)')
    a(f'''v_mov_b32 v6, s57
    v_lshl_add_u32 v7, v0, 1, s{sMH}
    v_cmp_eq_u32 vcc, 0x7f, v7
    v_cndmask_b32 v6, 0, v6, vcc
    s_waitcnt lgkmcnt(0)''')
    for k in range(16):
        a(f'v_add_f32 v{tX + k}, v{G0 + 2 * k}, v{G0 + 2 * k + 1}')
    a(f'v_add_f32 v{tX + 15}, v{tX + 15}, v6')
    cvt8(a, tC, tX)
    a(f'''s_mul_i32 s53, s{sCH}, {KCS}
    s_add_u32 s53, s53, {KC}
    s_lshl_b32 s54, s{sMH}, 11
    s_add_u32 s54, s54, s53
    v_lshlrev_b32 v6, 4, v0
    buffer_store_dwordx4 {vr(tC, 4)}, v6, s[{sWS}:{sWS + 3}], s54 offen
    buffer_store_dwordx4 {vr(tC + 4, 4)}, v6, s[{sWS}:{sWS + 3}], s54 offen offset:1024
    s_cmp_lg_u32 s{sMH}, 0
    s_cbranch_scc1 K1_FIN
    s_add_u32 s53, s53, 4096
    v_mov_b32 v8, 0
    v_mov_b32 v9, 0
    v_mov_b32 v10, 0
    v_mov_b32 v11, 0
    s_mov_b64 exec, 0xff
    buffer_store_dwordx4 v[8:11], v6, s[{sWS}:{sWS + 3}], s53 offen
K1_FIN:''')
    stamp(a, 6)
    stamp_flush(a, 0, sWS, sWV)
    a('''K1_END:
    s_endpgm''')


K1_PRE = 3

K2_V = 65536
VT = 1040
K2_CV = K2_V + 64 * VT
K2_CVS = 15360
K2_LDS = K2_CV + 2 * K2_CVS
K2_B1 = 12
K2_PRIO_DROP = 56


def k2(a):
    sWS, sWV, sH, sQT = 8, 3, 12, 13
    a(f'''s_cmp_ge_u32 s2, 256
    s_cbranch_scc1 K2_END''')
    stamp(a, 0)
    a(f'''s_load_dwordx2 s[4:5], s[0:1], 104
    v_lshrrev_b32 v1, 6, v0
    v_and_b32 v0, 63, v0
    v_readfirstlane_b32 s{sWV}, v1
    v_lshlrev_b32 v1, 4, v0
    v_and_b32 v2, 31, v0
    v_lshrrev_b32 v3, 5, v0
    s_and_b32 s{sH}, s2, 31
    s_lshr_b32 s{sQT}, s2, 5
    s_lshl_b32 s{sQT}, s{sQT}, 3
    s_add_u32 s{sQT}, s{sQT}, s{sWV}
    s_waitcnt lgkmcnt(0)''')
    srd(a, sWS, 4, WS_BYTES)
    W = f's[{sWS}:{sWS + 3}]'
    a(f'''s_cmp_ge_u32 s{sWV}, 8
    s_cbranch_scc1 K2_CONV''')

    Q, Kf, V0, V1 = 4, 8, 12, 16
    V0B = (12, 92)
    vIX, vK, vV0, vV1 = 20, 21, 22, 23
    S = (24, 40)
    O, M = 56, 72
    a(f'''s_lshl_b32 s14, s{sH}, 16
    s_lshl_b32 s15, s{sQT}, 10
    s_add_u32 s15, s15, s14
    s_add_u32 s16, s14, {KF}
    buffer_load_dwordx4 {vr(Q, 4)}, v1, {W}, s15 offen
    buffer_load_dwordx4 {vr(Kf, 4)}, v1, {W}, s16 offen
    s_and_b32 s17, s{sWV}, 1
    s_lshr_b32 s18, s{sWV}, 1
    s_lshl_b32 s19, s17, 21
    s_add_u32 s16, s16, s19
    s_lshl_b32 s19, s18, 10
    s_add_u32 s16, s16, s19
    s_lshl_b32 s19, s17, 4
    s_add_u32 s19, s19, 1024
    s_mul_i32 s20, s18, s19
    s_lshl_b32 s21, s17, 16
    s_add_u32 s20, s20, s21
    s_lshl_b32 s19, s19, 2''')
    for i in range(16):
        a(f'''s_mov_b32 m0, s20
        s_add_u32 s20, s20, s19
        buffer_load_dwordx4 v1, {W}, s16 offen lds
        s_add_u32 s16, s16, 4096''')
    a(f'''s_cmp_lg_u32 s{sWV}, 0
    s_cbranch_scc1 K2_NOONES
    v_mov_b32 v24, 0x3f803f80
    v_mov_b32 v25, 0x3f803f80
    v_mov_b32 v26, 0x3f803f80
    v_mov_b32 v27, 0x3f803f80
    v_mul_u32_u24 v28, {VT}, v0
    v_add_u32 v28, {K2_V + 1024}, v28
    ds_write_b128 v28, v[24:27]
K2_NOONES:
    v_mov_b32 v{vIX}, 0xdddd
    v_mov_b32 v{vK}, v1
    v_lshlrev_b32 v24, 8, v3
    v_and_b32 v25, 15, v2
    v_lshl_add_u32 v25, v25, 4, v24
    v_cmp_gt_u32 vcc, 16, v2
    v_cndmask_b32 v24, v24, v25, vcc
    v_add_u32 v25, 512, v24
    v_add_u32 v26, 4, v2
    v_bfe_u32 v26, v26, 3, 2
    v_cmp_eq_u32 vcc, 3, v26
    v_cmp_gt_u32 s[22:23], 16, v2
    s_or_b64 vcc, vcc, s[22:23]
    v_mov_b32 v26, 1024
    v_cndmask_b32 v24, v26, v24, vcc
    v_cndmask_b32 v25, v26, v25, vcc
    v_add_u32 v{vV0}, {K2_V}, v24
    v_add_u32 v{vV1}, {K2_V}, v25''')
    for i in range(16):
        a(f'v_mov_b32 v{O + i}, 0')
    a(f'''s_cmp_ge_u32 s{sWV}, 4
    s_cbranch_scc0 K2_NOPRIO
    s_setprio 1
K2_NOPRIO:
    s_waitcnt vmcnt(16)
    {MFMA} {vr(S[1], 16)}, {vr(Kf, 4)}, {vr(Q, 4)}, 0''')

    def rowmax(src, dst, t):
        a(f'v_max3_f32 v{dst}, v{src}, v{src + 1}, v{src + 2}')
        for i in range(3, 15, 2):
            a(f'v_max3_f32 v{dst}, v{dst}, v{src + i}, v{src + i + 1}')
        a(f'v_max_f32 v{dst}, v{dst}, v{src + 15}')

    def set_m(mx, t):
        a(f'''v_mov_b32 v{t}, v{mx}
        v_permlane32_swap_b32 v{mx}, v{t}
        v_max_f32 v{mx}, v{mx}, v{t}
        v_sub_f32 v{M}, 0, v{mx}''')
        for i in range(1, 16):
            a(f'v_mov_b32 v{M + i}, v{M}')

    stamp(a, 1)
    rowmax(S[1], 88, 89)
    set_m(88, 89)
    a(f'''{MFMA} {vr(S[0], 16)}, {vr(Kf, 4)}, {vr(Q, 4)}, {vr(M, 16)}
    s_waitcnt vmcnt({16 - K2_B1 // 4}) lgkmcnt(0)
    s_barrier
    ds_read_b128 {vr(Kf, 4)}, v{vK} offset:1024
    ds_read_b128 {vr(V0, 4)}, v{vV0}''')
    stamp(a, 2)
    for t in range(64):
        s, sn = S[t & 1], S[(t + 1) & 1]
        e = lambda i: a(f'v_exp_f32 v{s + i}, v{s + i}')
        if t == K2_B1 - 2:
            stamp(a, 3)
            a('''s_waitcnt vmcnt(0)
            s_barrier''')
            stamp(a, 4)
        if t == 37:
            stamp(a, 5)
        if t == K2_PRIO_DROP:
            a('s_setprio 0')
        e(0)
        a('s_waitcnt lgkmcnt(0)')
        e(1)
        if t > 0:
            a(f'{SMF} {vr(O, 16)}, {vr(V1, 4)}, {vr(sn + 8, 8)}, v{vIX}')
        a(f'ds_read_b128 {vr(V1, 4)}, v{vV1} offset:{t * VT}')
        for i in range(2, 6):
            e(i)
        if t + 1 < 64:
            a(f'{MFMA} {vr(sn, 16)}, {vr(Kf, 4)}, {vr(Q, 4)}, {vr(M, 16)}')
        if t + 2 < 64:
            a(f'ds_read_b128 {vr(Kf, 4)}, v{vK} offset:{(t + 2) * 1024}')
        if t + 1 < 64:
            a(f'ds_read_b128 {vr(V0B[(t + 1) & 1], 4)}, v{vV0} offset:{(t + 1) * VT}')
        for i in range(6, 11):
            e(i)
        a(f'{SMF} {vr(O, 16)}, {vr(V0B[t & 1], 4)}, {vr(s, 8)}, v{vIX}')
        for i in range(11, 16):
            e(i)
    a(f'''s_waitcnt lgkmcnt(0)
    s_nop 0
    {SMF} {vr(O, 16)}, {vr(V1, 4)}, {vr(S[1] + 8, 8)}, v{vIX}
    s_mov_b32 s24, 0
K2_FIN:
    s_lshl_b32 s14, s{sQT}, 5
    s_add_u32 s14, s14, s{sH}
    s_lshl_b32 s14, s14, 10
    s_add_u32 s14, s14, {OF}
    v_cmp_eq_u32 vcc, 1, v3
    s_mov_b32 s15, {f32(2.0 ** 30)}
    s_nop 6
    v_cndmask_b32 v88, v{O + 8}, v{O + 12}, vcc
    v_cmp_nlt_f32 vcc, v88, s15
    v_rcp_f32 v89, v88
    s_cmp_eq_u32 s24, 0
    s_cselect_b64 s[26:27], vcc, 0
    s_cmp_lg_u64 s[26:27], 0
    s_cbranch_scc1 K2_REDO''')
    for i in range(8):
        a(f'v_mul_f32 v{O + i}, v{O + i}, v89')
    cvt8(a, 24, O, 4)
    a(f'buffer_store_dwordx4 v[24:27], v1, {W}, s14 offen')
    stamp(a, 6)
    stamp_flush(a, 1, sWS, sWV)
    a('s_endpgm')
    a(f'''K2_REDO:
    s_mov_b32 s24, 1
    v_mov_b32 v88, 0xff800000
    v_mov_b32 v90, v1
    s_mov_b32 s25, 64
K2_R1:
    ds_read_b128 {vr(Kf, 4)}, v90
    v_add_u32 v90, 1024, v90
    s_waitcnt lgkmcnt(0)
    {MFMA} {vr(S[0], 16)}, {vr(Kf, 4)}, {vr(Q, 4)}, 0''')
    rowmax(S[0], 89, 91)
    a('''v_max_f32 v88, v88, v89
    s_sub_u32 s25, s25, 1
    s_cmp_lg_u32 s25, 0
    s_cbranch_scc1 K2_R1''')
    set_m(88, 89)
    for i in range(16):
        a(f'v_mov_b32 v{O + i}, 0')
    a(f'''v_mov_b32 v90, v1
    v_mov_b32 v91, v{vV0}
    v_mov_b32 v93, v{vV1}
    s_mov_b32 s25, 64
K2_R2:
    ds_read_b128 {vr(Kf, 4)}, v90
    ds_read_b128 {vr(V0, 4)}, v91
    ds_read_b128 {vr(V1, 4)}, v93
    v_add_u32 v90, 1024, v90
    v_add_u32 v91, {VT}, v91
    v_add_u32 v93, {VT}, v93
    s_waitcnt lgkmcnt(0)
    {MFMA} {vr(S[0], 16)}, {vr(Kf, 4)}, {vr(Q, 4)}, {vr(M, 16)}''')
    for i in range(16):
        a(f'v_exp_f32 v{S[0] + i}, v{S[0] + i}')
    a(f'''{SMF} {vr(O, 16)}, {vr(V0, 4)}, {vr(S[0], 8)}, v{vIX}
    {SMF} {vr(O, 16)}, {vr(V1, 4)}, {vr(S[0] + 8, 8)}, v{vIX}
    s_sub_u32 s25, s25, 1
    s_cmp_lg_u32 s25, 0
    s_cbranch_scc1 K2_R2
    s_branch K2_FIN''')

    sCI, sT, sCH, sLB = 14, 15, 16, 17
    vA, vB = 4, 5
    acc = 8
    FA, FB = (24, 32), (28, 36)
    a(f'''K2_CONV:
    s_setprio 2
    s_sub_u32 s18, s{sWV}, 8
    s_lshr_b32 s{sCI}, s18, 1
    s_and_b32 s{sT}, s18, 1
    s_lshl_b32 s{sCH}, s2, 1
    s_add_u32 s{sCH}, s{sCH}, s{sCI}
    s_mul_i32 s{sLB}, s{sCI}, {K2_CVS}
    s_add_u32 s{sLB}, s{sLB}, {K2_CV}''')
    swap23(a, 6, 2, 7)
    a(f'''v_and_b32 v7, 1, v6
    v_cmp_eq_u32 vcc, 0, v7
    v_mov_b32 v7, 4158
    v_cndmask_b32 v7, 0, v7, vcc
    v_lshlrev_b32 v6, 1, v6
    v_sub_u32 v7, v7, v6
    v_lshl_add_u32 v7, v3, 4, v7
    v_add_u32 v7, {4094 - 32 * 14}, v7
    v_add_u32 v{vA}, s{sLB}, v7
    v_mul_u32_u24 v7, 96, v3
    v_add_u32 v7, v7, v2
    s_lshl_b32 s19, s{sT}, 9
    s_add_u32 s19, s19, s{sLB}
    s_add_u32 s19, s19, {9216 + (32 - 7) * 16}
    v_lshl_add_u32 v{vB}, v7, 4, s19''')
    for i in range(16):
        a(f'v_mov_b32 v{acc + i}, 0')
    a(f'''s_cmp_eq_u32 s{sT}, 0
    s_cbranch_scc1 K2_CU
    s_mul_i32 s20, s{sCH}, {KCS}
    s_add_u32 s20, s20, {KC}
    v_add_u32 v6, {4096 - 4158}, v1
    v_add_u32 v7, 4096, v1
    v_cmp_gt_u32 vcc, 4, v0
    v_cndmask_b32 v6, v6, v7, vcc
    v_add_u32 v7, {5120 - 4158}, v1
    s_barrier
    s_mov_b32 m0, s{sLB}
    s_nop 0''')
    for q in range(4):
        a(f'buffer_load_dwordx4 v1, {W}, s20 offen offset:{q * 1024} lds')
    a(f'''s_add_u32 m0, s{sLB}, 4096
    s_nop 0
    buffer_load_dwordx4 v6, {W}, s20 offen lds
    s_add_u32 m0, s{sLB}, 5120
    s_nop 0''')
    for q in range(4):
        a(f'buffer_load_dwordx4 v7, {W}, s20 offen offset:{q * 1024} lds')
    a(f'''s_branch K2_CW
K2_CU:
    s_lshl_b32 s20, s{sCH}, 12
    s_add_u32 s20, s20, {XT}
    s_mov_b32 s21, 683''')
    for q in range(6):
        r = 40 + q
        a(f'''v_add_u32 v6, {64 * q}, v0
        v_mul_u32_u24 v7, s21, v6
        v_lshrrev_b32 v7, 16, v7
        v_mul_u32_u24 v{r}, 96, v7
        v_sub_u32 v6, v6, v{r}
        v_subrev_u32 v{r}, 32, v6
        v_lshlrev_b32 v{r}, 6, v{r}
        v_lshl_add_u32 v{r}, v7, 4, v{r}
        v_cmp_gt_u32 vcc, 32, v6
        v_mov_b32 v7, 0x7fff0000
        v_cndmask_b32 v{r}, v{r}, v7, vcc''')
    a('s_barrier')
    for q in range(6):
        a(f'''s_add_u32 m0, s{sLB}, {9216 + q * 1024}
        s_nop 0
        buffer_load_dwordx4 v{40 + q}, {W}, s20 offen lds''')
    a(f'''K2_CW:
    s_lshl_b32 s22, s{sT}, 2
    s_add_u32 s22, s22, 4
    s_waitcnt vmcnt(0)''')
    stamp(a, 3)
    a('s_barrier')
    stamp(a, 4)
    a('K2_CL:')

    def creads(k):
        f = k & 1
        oa = (15 - k) * 8
        ob = (7 - (k >> 1)) * 16 + (3072 if (k & 1) == 0 else 0)
        a(f'''ds_read2_b32 {vr(FA[f], 2)}, v{vA} offset0:{oa} offset1:{oa + 1}
        ds_read2_b32 {vr(FA[f] + 2, 2)}, v{vA} offset0:{oa + 2} offset1:{oa + 3}
        ds_read_b128 {vr(FB[f], 4)}, v{vB} offset:{ob}''')

    creads(0)
    for k in range(16):
        if k + 1 < 16:
            creads(k + 1)
            a('s_waitcnt lgkmcnt(3)')
        else:
            a(f'''v_subrev_u32 v{vA}, 512, v{vA}
            v_subrev_u32 v{vB}, 128, v{vB}
            s_sub_u32 s22, s22, 1
            s_cmp_lg_u32 s22, 0
            s_waitcnt lgkmcnt(0)''')
        a(f'{MFMA} {vr(acc, 16)}, {vr(FA[k & 1], 4)}, {vr(FB[k & 1], 4)}, {vr(acc, 16)}')
    a(f'''s_cbranch_scc1 K2_CL
    s_lshl_b32 s20, s{sCH}, 12
    s_lshl_b32 s21, s{sT}, 11
    s_add_u32 s20, s20, s21
    s_add_u32 s20, s20, {BT}
    v_lshlrev_b32 v6, 6, v2
    v_lshl_add_u32 v6, v3, 4, v6''')
    cvt8(a, 24, acc)
    a(f'''buffer_store_dwordx4 v[24:27], v6, {W}, s20 offen
    buffer_store_dwordx4 v[28:31], v6, {W}, s20 offen offset:32''')
    stamp(a, 6)
    stamp_flush(a, 1, sWS, sWV)
    a('''K2_END:
    s_endpgm''')


K3_CH = (0, 10, 20, 27, 32)


def k3(a):
    sWS, sOUT, sWV, sTB, sCB = 8, 12, 3, 16, 17
    a(f'''s_cmp_ge_u32 s2, 256
    s_cbranch_scc1 K3_END''')
    stamp(a, 0)
    a(f'''s_load_dwordx2 s[4:5], s[0:1], 104
    s_load_dwordx2 s[6:7], s[0:1], 88
    v_lshrrev_b32 v1, 6, v0
    v_and_b32 v0, 63, v0
    v_readfirstlane_b32 s{sWV}, v1
    v_lshlrev_b32 v1, 4, v0
    v_and_b32 v2, 31, v0
    v_lshrrev_b32 v3, 5, v0
    s_and_b32 s{sTB}, s2, 31
    s_lshr_b32 s{sCB}, s2, 5
    s_and_b32 s18, s{sWV}, 1
    s_lshr_b32 s19, s{sWV}, 1
    s_lshl_b32 s20, s{sTB}, 1
    s_add_u32 s20, s20, s18
    s_lshl_b32 s21, s{sCB}, 1
    s_add_u32 s22, s21, s18
    s_add_u32 s21, s21, s19
    s_lshl_b32 s23, s20, 15
    s_add_u32 s23, s23, {OF}
    s_lshl_b32 s22, s22, 15
    s_add_u32 s22, s22, {WOF}
    s_cmp_eq_u32 s19, 0
    s_cselect_b32 s22, s23, s22
    s_lshl_b32 s23, s{sWV}, 15
    s_waitcnt lgkmcnt(0)''')
    srd(a, sWS, 4, WS_BYTES)
    srd(a, sOUT, 6, 0x200000)
    W = f's[{sWS}:{sWS + 3}]'
    vBT, vG, vID, vAo, vAw = 8, 16, 20, 28, 29
    acc, accb = 32, 48
    FR = (64, 72)
    swap23(a, 4, 2, 5)
    a(f'''v_lshlrev_b32 v5, 12, v4
    v_lshl_add_u32 v5, v3, 4, v5
    s_lshl_b32 s24, s21, 17
    s_lshl_b32 s25, s20, 6
    s_add_u32 s24, s24, s25
    s_add_u32 s24, s24, {BT}
    s_lshl_b32 s25, s20, 7
    s_add_u32 s25, s25, {GG}
    v_lshlrev_b32 v6, 2, v2''')
    for k in range(0, 32, 4):
        a(f'''s_add_u32 m0, s23, {k * 1024}
        s_add_u32 s26, s22, {k * 1024}''')
        for q in range(4):
            a(f'buffer_load_dwordx4 v1, {W}, s26 offen offset:{q * 1024} lds')
    a(f'''buffer_load_dwordx4 {vr(vBT, 4)}, v5, {W}, s24 offen
    buffer_load_dwordx4 {vr(vBT + 4, 4)}, v5, {W}, s24 offen offset:32
    buffer_load_dword v{vG}, v6, {W}, s25 offen
    s_lshl_b32 s26, s18, 15
    v_add_u32 v{vAo}, s26, v1
    s_lshl_b32 s26, s19, 15
    s_add_u32 s26, s26, 65536
    v_add_u32 v{vAw}, s26, v1''')
    identity_frags(a, vID, 2, 3, 6, 7)
    for i in range(16):
        a(f'v_mov_b32 v{acc + i}, 0')

    def reads(k):
        f = FR[k & 1]
        a(f'''ds_read_b128 {vr(f, 4)}, v{vAw} offset:{k * 1024}
        ds_read_b128 {vr(f + 4, 4)}, v{vAo} offset:{k * 1024}''')

    for c in range(len(K3_CH) - 1):
        k0, k1_ = K3_CH[c], K3_CH[c + 1]
        a(f'''s_waitcnt vmcnt({35 - k1_})
        s_barrier''')
        stamp(a, 1 + c)
        reads(k0)
        for k in range(k0, k1_):
            if k + 1 < k1_:
                reads(k + 1)
                a('s_waitcnt lgkmcnt(2)')
            else:
                a('s_waitcnt lgkmcnt(0)')
            a(f'{MFMA} {vr(acc, 16)}, {vr(FR[k & 1], 4)}, {vr(FR[k & 1] + 4, 4)}, {vr(acc, 16)}')
    a(f'''s_waitcnt vmcnt(0)
    {MFMA} {vr(accb, 16)}, {vr(vBT, 4)}, {vr(vID, 4)}, 0
    {MFMA} {vr(accb, 16)}, {vr(vBT + 4, 4)}, {vr(vID + 4, 4)}, {vr(accb, 16)}
    v_lshlrev_b32 v5, 10, v2
    v_lshl_add_u32 v5, v3, 4, v5
    s_lshl_b32 s24, s20, 15
    s_lshl_b32 s25, s21, 6
    s_add_u32 s24, s24, s25''')
    for i in range(16):
        a(f'v_sub_f32 v{acc + i}, v{acc + i}, v{accb + i}')
    for i in range(16):
        a(f'v_fma_f32 v{acc + i}, v{vG}, v{acc + i}, v{accb + i}')
    cvt8(a, 64, acc)
    a(f'''buffer_store_dwordx4 v[64:67], v5, s[{sOUT}:{sOUT + 3}], s24 offen
    buffer_store_dwordx4 v[68:71], v5, s[{sOUT}:{sOUT + 3}], s24 offen offset:32''')
    stamp(a, 6)
    stamp_flush(a, 2, sWS, sWV)
    a('''K3_END:
    s_endpgm''')


KERNELS = [
    ('gm_qkv_kernel', k1, 512, 163840, 208),
    ('gm_attn_kernel', k2, 768, K2_LDS, 96),
    ('gm_out_kernel', k3, 256, 131072, 80),
]


def build():
    here = os.path.dirname(os.path.abspath(__file__))
    ref = open(os.path.join(here, '..', 'cdna_kernels', NAME + '.s.ref')).read().split('\n')
    head = [l for l in ref if l.startswith(';') and 'launch' not in l.lower() and 'lds=0' not in l]
    out = '\n'.join(head) + '\n'
    for name, _, blk, lds, _ in KERNELS:
        out += f'; @launch kernel={name} grid=(256,1,1) block=({blk},1,1) lds={lds}\n'
    out += '.amdgcn_target "amdgcn-amd-amdhsa--gfx950"\n.text\n'
    for name, fn, _, _, _ in KERNELS:
        a = Asm()
        fn(a)
        bad = a.check_branches()
        if bad:
            for b in bad:
                print('BRANCH HAZARD', name, b, file=sys.stderr)
            sys.exit(1)
        if os.environ.get('SHOWPAD'):
            for p in a.padded:
                print('pad', name, p, file=sys.stderr)
        out += f'.globl {name}\n.p2align 8\n.type {name},@function\n{name}:\n' + a.text()
    out += '.section .rodata,"a"\n'
    for name, _, _, _, nv in KERNELS:
        out += f'''.p2align 6
.amdhsa_kernel {name}
  .amdhsa_next_free_vgpr {nv}
  .amdhsa_next_free_sgpr 96
  .amdhsa_accum_offset {nv}
  .amdhsa_group_segment_fixed_size 0
  .amdhsa_kernarg_size 112
  .amdhsa_user_sgpr_count 2
  .amdhsa_user_sgpr_kernarg_segment_ptr 1
  .amdhsa_system_sgpr_workgroup_id_x 1
.end_amdhsa_kernel
'''
    return out


if __name__ == '__main__':
    dst = sys.argv[1] if len(sys.argv) > 1 else os.path.join(os.path.dirname(os.path.abspath(__file__)), '..', 'cdna_kernels', NAME + '.s')
    open(dst, 'w').write(build())
    print('wrote', dst)
```

```python
import sys, subprocess, os
sys.path.insert(0, 'gen')
os.environ['STAMP'] = '1'
import gen as G
MULT = 4
def reduce_code(k, nw, slot, op, dst, tag):
    init = '-1' if op == 'min' else '0'
    return f'''
    v_mov_b32 v10, {init}
    v_lshlrev_b32 v2, 6, v0
    v_and_b32 v3, 15, v0
    v_cmp_gt_u32 vcc, {nw}, v3
    s_mov_b32 s20, {G.STAMPS + k * 0x40000}
    s_mov_b32 s21, 64
    s_mov_b64 exec, vcc
L_{tag}:
    buffer_load_dword v4, v2, s[8:11], s20 offen offset:{4 * slot}
    s_waitcnt vmcnt(0)
    v_subrev_u32 v4, s30, v4
    v_{op}_u32 v10, v10, v4
    s_add_u32 s20, s20, 4096
    s_sub_u32 s21, s21, 1
    s_cmp_lg_u32 s21, 0
    s_cbranch_scc1 L_{tag}
    s_mov_b64 exec, -1
    s_mov_b32 s{dst}, {init}
''' + ''.join(f'    v_readlane_b32 s22, v10, {l}\n    s_nop 3\n    s_{op}_u32 s{dst}, s{dst}, s22\n' for l in range(64))
def make(a, b, name):
    src = G.build()
    nws = [k[2] // 64 for k in G.KERNELS]
    code = '''.globl gm_diag_kernel
.p2align 8
.type gm_diag_kernel,@function
gm_diag_kernel:
    s_cmp_ge_u32 s2, 1
    s_cbranch_scc1 D_END
    s_load_dwordx2 s[4:5], s[0:1], 104
    s_memrealtime s[30:31]
    s_waitcnt lgkmcnt(0)
    s_sub_u32 s30, s30, 1000000
    s_mov_b32 s8, s4
    s_and_b32 s9, s5, 0xffff
    s_mov_b32 s10, 0x1000000
    s_mov_b32 s11, 0x20000
'''
    for (k, w), d, tag in ((a, 40, 'a'), (b, 41, 'b')):
        code += reduce_code(k, nws[k], 8 if w == 's' else 9, 'min' if w == 's' else 'max', d, tag)
    code += f'''    s_sub_u32 s40, s41, s40
    s_and_b32 s40, s40, 0xfff
    s_mul_i32 s40, s40, {MULT}
    s_memrealtime s[32:33]
    s_waitcnt lgkmcnt(0)
D_SPIN:
    s_memrealtime s[34:35]
    s_waitcnt lgkmcnt(0)
    s_sub_u32 s34, s34, s32
    s_cmp_lt_u32 s34, s40
    s_cbranch_scc1 D_SPIN
D_END:
    s_endpgm
.section .rodata,"a"
.p2align 6
.amdhsa_kernel gm_diag_kernel
  .amdhsa_next_free_vgpr 16
  .amdhsa_next_free_sgpr 64
  .amdhsa_accum_offset 16
  .amdhsa_group_segment_fixed_size 0
  .amdhsa_kernarg_size 112
  .amdhsa_user_sgpr_count 2
  .amdhsa_user_sgpr_kernarg_segment_ptr 1
  .amdhsa_system_sgpr_workgroup_id_x 1
.end_amdhsa_kernel'''
    src = src.replace('.section .rodata,"a"', code, 1)
    src = src.replace('.amdgcn_target', '; @launch kernel=gm_diag_kernel grid=(1,1,1) block=(64,1,1) lds=0\n.amdgcn_target', 1)
    open(f'exp/{name}.s', 'w').write(src)
n = len(G.KERNELS)
make((0, 's'), (0, 's'), 'dg_base')
for k in range(n):
    make((k, 's'), (k, 'e'), f'dg_dur{k}')
for k in range(n - 1):
    make((k, 'e'), (k + 1, 's'), f'dg_gap{k}')
```

```python
import sys, os, struct
sys.path.insert(0, os.path.dirname(os.path.abspath(__file__)))
from asmlib import Asm, vr, sr

NAME = 'gated_mix__softmax_full_mha__ssm_conv_s4d__prompt'
ENV = os.environ.get
STAMP = bool(ENV('STAMP'))

RSTRIDE = 0x210000
QF, KF, VF, OF, XT, BT, WOF = (0x10000 + i * RSTRIDE for i in range(7))
GG = WOF + 0x80000
FRAGT = True
FS = 0x1100
FX = GG + 0x10000
FQ, FB, FW, FO = FX + 16 * FS, FX + 32 * FS, FX + 36 * FS, FX + 37 * FS
STAMPS = 0xF20000
WS_BYTES = 0x1200000 if STAMP else 0xE00000
TOUCH = int(ENV('TOUCH', 0))

SLOT = 28672
L_CX = 12288
L_T = 122880
L_V = 65536
L_CV = 131072
CVS = 16128
EROW = 144
L_U = 8320
L_SY = L_CV + 2 * CVS
SY_LD, SY_PR, SY_NONCE, SY_FREE, SY_K0, SY_K1, SY_K2 = 0, 16, 32, 36, 40, 48, 56
SY_X, SY_Q, SY_B, SY_W, SY_XOK, SY_QOK, SY_WOK = 64, 68, 72, 76, 80, 84, 88
LDS_BYTES = 163840

LOG2E = 1.4426950408889634
MFMA = 'v_mfma_f32_32x32x16_bf16'
SMF = 'v_smfmac_f32_32x32x32_bf16'
SPIN = 0x40000
SPIN_G = 0x8000

sWV, sX, sW, sWS, sOUT, sRB, sCB, sNON, sR = 3, 32, 36, 40, 44, 48, 49, 50, 10
X_, W_, WS_, OUT_ = (f's[{b}:{b + 3}]' for b in (sX, sW, sWS, sOUT))

KV_G = [int(x) for x in ENV('KVG', '4,12,24').split(',')]
PWIN = int(ENV('PWIN', 4))
CONV_PRIO = int(ENV('CPRIO', 0))
GEMM_PRIO = int(ENV('GPRIO', 1))
ROT = int(ENV('ROT', 3))
PSLEEP = int(ENV('PSLEEP', 4))
DBG = ENV('DBG', '')
OSLEEP = int(ENV('OSLEEP', 1))
KGEN_PRIO = int(ENV('KPRIO', 0))
CONV_WAIT = int(ENV('CWAIT', 1))
XFLAG_STEP = int(ENV('XFS', 7))
LAG = int(ENV('LAG', 2))


def f32(x):
    return '0x%08x' % struct.unpack('<I', struct.pack('<f', x))[0]


class Gen(Asm):
    def __init__(self):
        super().__init__()
        self.nlab = 0

    def lab(self, p):
        self.nlab += 1
        return f'{p}_{self.nlab}'


def stamp(a, i):
    if STAMP:
        a(f's_memtime s[{66 + 2 * i}:{67 + 2 * i}]')
        if i == 0:
            a('s_memrealtime s[92:93]')


def stamp_flush(a):
    if STAMP:
        a(f'''s_waitcnt vmcnt(0)
        s_memtime s[90:91]
        s_memrealtime s[94:95]
        s_lshl_b32 s96, s2, 4
        s_add_u32 s96, s96, s{sWV}
        s_lshl_b32 s96, s96, 6
        s_add_u32 s96, s96, {STAMPS}
        s_mov_b64 exec, 1
        v_mov_b32 v0, 0
        s_waitcnt lgkmcnt(0)''')
        for i in range(15):
            a(f'''v_mov_b32 v1, s{66 + 2 * i}
            buffer_store_dword v1, v0, {WS_}, s96 offen offset:{4 * i}''')


def srd(a, d, base, nbytes):
    a(f'''s_mov_b32 s{d}, s{base}
    s_and_b32 s{d + 1}, s{base + 1}, 0xffff
    s_mov_b32 s{d + 2}, {nbytes:#x}
    s_mov_b32 s{d + 3}, 0x20000''')


def swap23(a, dst, src, t):
    a(f'''v_lshrrev_b32 v{t}, 1, v{src}
    v_xor_b32 v{t}, v{t}, v{src}
    v_and_b32 v{t}, 4, v{t}
    v_mul_u32_u24 v{t}, 3, v{t}
    v_xor_b32 v{dst}, v{t}, v{src}''')


def identity_frags(a, dst, vn, vh, t0, t1):
    a(f'''v_and_b32 v{t0}, 1, v{vn}
    v_lshlrev_b32 v{t0}, 4, v{t0}
    v_mov_b32 v{t1}, 0x3f80
    v_lshlrev_b32 v{t0}, v{t0}, v{t1}
    v_lshrrev_b32 v{t1}, 1, v{vn}
    v_lshlrev_b32 v{dst}, 2, v{vh}
    v_sub_u32 v{t1}, v{t1}, v{dst}''')
    for k in range(8):
        a(f'v_cmp_eq_u32 s[{56 + 2 * (k & 3)}:{57 + 2 * (k & 3)}], {8 * (k >> 2) + (k & 3)}, v{t1}')
        if (k & 3) == 3:
            for j in range(k - 3, k + 1):
                a(f'v_cndmask_b32 v{dst + j}, 0, v{t0}, s[{56 + 2 * (j & 3)}:{57 + 2 * (j & 3)}]')


def cvt8(a, dst, src, n=8):
    for i in range(n):
        a(f'v_cvt_pk_bf16_f32 v{dst + i}, v{src + 2 * i}, v{src + 2 * i + 1}')


def lds_add(a, off, t0, t1):
    a(f'''v_mov_b32 v{t0}, {L_SY + off}
    v_mov_b32 v{t1}, 1
    s_mov_b64 exec, 1
    ds_add_u32 v{t0}, v{t1}
    s_mov_b64 exec, -1''')


def lds_wait(a, addr, target, t, sleep=False, dst=64):
    l0, l1 = a.lab('LW'), a.lab('LWD')
    a(f'''s_mov_b32 s65, {SPIN}
{l0}:
    ds_read_b32 v{t}, v{addr}
    s_waitcnt lgkmcnt(0)
    v_readfirstlane_b32 s{dst}, v{t}
    s_sub_u32 s65, s65, 1
    s_cbranch_scc1 {l1}''')
    if target is None:
        a(f's_cmp_eq_u32 s{dst}, 0')
    else:
        a(f's_cmp_lt_u32 s{dst}, {target}')
    if sleep:
        a(f'''s_cbranch_scc0 {l1}
        s_sleep 1
        s_branch {l0}''')
    else:
        a(f's_cbranch_scc1 {l0}')
    a(f'{l1}:')


def get_nonce(a, t0, t1):
    a(f'v_mov_b32 v{t0}, {L_SY + SY_NONCE}')
    lds_wait(a, t0, None, t1, sleep=True, dst=sNON)


def flag_wait(a, voff, soff, t, n=1, sleep=None):
    l0, l1 = a.lab('FW'), a.lab('FWD')
    a(f'''s_mov_b32 s65, {SPIN_G}
{l0}:''')
    if n == 1:
        a(f'buffer_load_dword v{t}, v{voff}, {WS_}, s{soff} offen sc1')
    else:
        for i in range(n // 4):
            a(f'buffer_load_dwordx4 {vr(t + 4 * i, 4)}, v{voff}, {WS_}, s{soff} offen offset:{1024 * i} sc1')
    a('s_waitcnt vmcnt(0)')
    for i in range(n):
        a(f'v_xor_b32 v{t + i}, s{sNON}, v{t + i}')
    for i in range(1, n):
        a(f'v_or_b32 v{t}, v{t}, v{t + i}')
    a(f'''v_cmp_ne_u32 vcc, 0, v{t}
    s_sub_u32 s65, s65, 1
    s_cbranch_scc1 {l1}
    s_cmp_eq_u64 vcc, 0
    s_cbranch_scc1 {l1}
    s_sleep {sleep or PSLEEP}
    s_branch {l0}
{l1}:''')


def flag_set(a, soff, t0, t1):
    a(f'''v_mov_b32 v{t0}, 0
    v_mov_b32 v{t1}, s{sNON}
    s_waitcnt vmcnt(0)
    s_mov_b64 exec, 1
    buffer_store_dword v{t1}, v{t0}, {WS_}, s{soff} offen sc1
    s_mov_b64 exec, -1''')


def group_flag_set(a, cnt, soff, t0, t1):
    l = a.lab('GF')
    a(f'''v_mov_b32 v{t0}, {L_SY + cnt}
    v_mov_b32 v{t1}, 1
    s_waitcnt vmcnt(0)
    s_mov_b64 exec, 1
    ds_add_rtn_u32 v{t1}, v{t0}, v{t1}
    s_waitcnt lgkmcnt(0)
    v_readfirstlane_b32 s64, v{t1}
    v_mov_b32 v{t0}, 0
    v_mov_b32 v{t1}, s{sNON}
    s_cmp_lg_u32 s64, 3
    s_cbranch_scc1 {l}
    buffer_store_dword v{t1}, v{t0}, {WS_}, s{soff} offen sc1
{l}:
    s_mov_b64 exec, -1''')


def relay_wait(a, leader, ok, polls, t0, t1):
    l0, l1 = a.lab('RL'), a.lab('RLD')
    a(f'''v_mov_b32 v{t0}, {L_SY + ok}
    s_cmp_lg_u32 s{sWV}, {leader}
    s_cbranch_scc1 {l0}''')
    polls()
    a(f'''v_mov_b32 v{t1}, 1
    ds_write_b32 v{t0}, v{t1}
    s_branch {l1}
{l0}:''')
    lds_wait(a, t0, 1, t1, sleep=True)
    a(f'{l1}:')


class VM:
    def __init__(self, a):
        self.a, self.q = a, []

    def issue(self, tag, text):
        self.a(text)
        self.q.append(tag)

    def wait(self, *tags):
        last = max(i for i, t in enumerate(self.q) if t in tags)
        self.a(f's_waitcnt vmcnt({len(self.q) - 1 - last})')


def prologue(a):
    a('''s_cmp_ge_u32 s2, 256
    s_cbranch_scc1 L_END''')
    stamp(a, 0)
    a(f'''s_load_dwordx4 s[4:7], s[0:1], 0
    s_load_dwordx2 s[8:9], s[0:1], 16
    s_load_dwordx8 s[12:19], s[0:1], 32
    s_load_dwordx4 s[20:23], s[0:1], 64
    s_load_dwordx2 s[24:25], s[0:1], 80
    s_load_dwordx4 s[28:31], s[0:1], 88
    s_load_dwordx2 s[26:27], s[0:1], 104
    v_lshrrev_b32 v1, 6, v0
    v_and_b32 v0, 63, v0
    v_readfirstlane_b32 s{sWV}, v1
    v_lshlrev_b32 v1, 4, v0
    v_mov_b32 v8, 0
    v_mov_b32 v9, 0
    v_mov_b32 v10, 0
    v_mov_b32 v11, 0
    v_add_u32 v5, {L_SY}, v1
    s_mov_b64 exec, 0xff
    ds_write_b128 v5, v[8:11]
    s_mov_b64 exec, -1
    s_and_b32 s51, s2, 7
    s_lshr_b32 s52, s2, 3
    s_lshr_b32 s{sRB}, s51, 1
    s_lshl_b32 s{sRB}, s{sRB}, 2
    s_and_b32 s53, s52, 3
    s_add_u32 s{sRB}, s{sRB}, s53
    s_and_b32 s{sCB}, s51, 1
    s_lshl_b32 s{sCB}, s{sCB}, 3
    s_lshr_b32 s53, s52, 2
    s_add_u32 s{sCB}, s{sCB}, s53
    s_lshl_b32 s{sR}, s{sRB}, 1
    s_add_u32 s{sR}, s{sR}, s{sCB}
    s_and_b32 s{sR}, s{sR}, 7
    v_and_b32 v2, 31, v0
    v_lshrrev_b32 v3, 5, v0''')
    swap23(a, 4, 2, 5)
    a('''s_waitcnt lgkmcnt(0)
    s_barrier''')
    srd(a, sX, 4, 0x200000)
    srd(a, sWS, 26, WS_BYTES)
    a(f'''s_cmp_ge_u32 s{sWV}, 8
    s_cbranch_scc1 L_AUX
    s_cmp_ge_u32 s{sWV}, 4
    s_cbranch_scc1 L_KGEN''')


def min4_wait(a, addr, f, target, fresh=True):
    l0, l1, l2 = a.lab('MW'), a.lab('MWD'), a.lab('MWC')
    a(f's_mov_b32 s65, {SPIN}')
    if not fresh:
        a(f's_branch {l2}')
    a(f"""{l0}:
    ds_read_b128 {vr(f, 4)}, v{addr}
    s_waitcnt lgkmcnt(0)
{l2}:
    v_min3_u32 v{f}, v{f}, v{f + 1}, v{f + 2}
    v_min_u32 v{f}, v{f}, v{f + 3}
    s_sub_u32 s65, s65, 1
    s_cbranch_scc1 {l1}
    v_readfirstlane_b32 s64, v{f}
    s_cmp_ge_u32 s64, {target}
    s_cbranch_scc1 {l1}
    s_sleep 1
    s_branch {l0}
{l1}:""")


def gemm(a):
    vXR, vWQ, vWV = (8, 14), (12, 18), (13, 19)
    vLD, vPR, vF, vID = 20, 21, 24, 112
    accQ, accK, accV, accT = 32, 48, 64, 120
    FR = (80, 96, 136)
    sTT = 51
    a(f"""s_cmp_lg_u32 s{sWV}, 0
    s_cbranch_scc1 L_NONCE_SKIP
    v_mov_b32 v22, 0
    s_cmp_lg_u32 s2, 0
    s_cbranch_scc1 L_NONCE_ASK
    s_memrealtime s[54:55]
    s_waitcnt lgkmcnt(0)
    s_mul_i32 s54, s54, 0x9e3779b1
    s_or_b32 s54, s54, 1
    v_mov_b32 v23, s54
    s_mov_b64 exec, 1
    global_store_dword v22, v23, s[30:31] sc1
    s_mov_b64 exec, -1
    s_branch L_NONCE_SKIP
L_NONCE_ASK:
    global_load_dword v23, v22, s[30:31] sc1
L_NONCE_SKIP:""")
    if TOUCH:
        a(f"""s_cmp_lg_u32 s{sWV}, 1
        s_cbranch_scc1 L_TOUCH_DONE
        s_mov_b32 s52, {RSTRIDE}
        v_mul_lo_u32 v6, s52, v0
        v_mov_b32 v7, 0
        s_mov_b64 exec, 0x7f
        buffer_load_dword v8, v6, {WS_}, 0 offen
        s_mov_b64 exec, 1
        global_load_dword v9, v7, s[8:9]
        global_load_dword v10, v7, s[24:25]
        global_load_dword v11, v7, s[28:29]
        s_mov_b64 exec, -1
        s_waitcnt vmcnt(0)
L_TOUCH_DONE:""")
    a(f"""
    s_lshl_b32 s{sTT}, s{sRB}, 2
    s_add_u32 s{sTT}, s{sTT}, s{sWV}
    s_lshl_b32 s52, s{sWV}, 12
    s_add_u32 s52, s52, 12288
    v_bfe_u32 v6, v4, 1, 3
    v_xor_b32 v6, v6, v3
    v_lshlrev_b32 v6, 4, v6
    v_lshl_add_u32 v6, v4, 7, v6
    v_add_u32 v{vXR[0]}, s52, v6
    v_xor_b32 v7, 32, v6
    v_add_u32 v{vXR[0] + 1}, s52, v7
    v_xor_b32 v7, 64, v6
    v_add_u32 v{vXR[0] + 2}, s52, v7
    v_xor_b32 v7, 96, v6
    v_add_u32 v{vXR[0] + 3}, s52, v7
    v_bfe_u32 v6, v0, 2, 2
    v_lshl_add_u32 v6, v3, 3, v6
    v_lshlrev_b32 v6, 6, v6
    v_bfe_u32 v7, v0, 4, 1
    v_lshl_add_u32 v6, v7, 5, v6
    v_and_b32 v7, 3, v0
    v_lshl_add_u32 v{vWV[0]}, v7, 3, v6
    v_bfrev_b32 v7, v7
    v_lshrrev_b32 v7, 30, v7
    v_lshl_add_u32 v{vWQ[0]}, v7, 3, v6
    v_mov_b32 v{vLD}, {L_SY + SY_LD}
    s_lshl_b32 s52, s{sWV}, 2
    s_add_u32 s52, s52, {L_SY + SY_PR}
    v_mov_b32 v{vPR}, s52""")
    for i in range(6):
        a(f'v_add_u32 v{vXR[1] + i}, {2 * SLOT}, v{vXR[0] + i}')
    identity_frags(a, vID, 2, 3, 6, 7)
    for i in range(48):
        a(f'v_mov_b32 v{accQ + i}, 0')
    a(f"""s_lshr_b32 s53, s{sCB}, 3
    s_lshl_b32 s57, s{sR}, 1
    s_add_u32 s57, s57, s53
    s_lshl_b32 s54, s57, 17
    s_lshl_b32 s55, s{sTT}, 11
    s_add_u32 s54, s54, s55
    s_add_u32 s54, s54, {XT}
    s_lshl_b32 s56, s{sRB}, 2
    s_mul_i32 s55, s57, {FS}
    s_add_u32 s55, s55, s56
    s_add_u32 s55, s55, {FX}
    s_mul_i32 s57, s{sCB}, {FS}
    s_add_u32 s56, s56, s57
    s_add_u32 s56, s56, {FQ}""")

    def rd(s, part):
        f = FR[s % 3]
        sl = (s >> 2) & 3
        hi, o = sl >> 1, (sl & 1) * SLOT
        if part == 0:
            a(f'ds_read_b128 {vr(f, 4)}, v{vXR[hi] + (s & 3)} offset:{o}')
        seg = (1, 2, 0)[part]
        base = vWV[hi] if seg == 2 else vWQ[hi]
        off = o + (s & 3) * 3072 + seg * 1024
        a(f"""ds_read_b64_tr_b16 {vr(f + 4 + 4 * seg, 2)}, v{base} offset:{off}
        ds_read_b64_tr_b16 {vr(f + 6 + 4 * seg, 2)}, v{base} offset:{off + 256}""")

    stamp(a, 1)
    min4_wait(a, vLD, vF, 1)
    stamp(a, 2)
    a(f's_setprio {GEMM_PRIO}')
    for s in range(2):
        for p in range(3):
            rd(s, p)
    for s in range(32):
        c = s >> 2
        f = FR[s % 3]
        n = s + 2
        if (s & 3) == 1 and c < 7:
            a(f"""ds_read_b128 {vr(vF, 4)}, v{vLD}
            s_waitcnt lgkmcnt(8)""")
        elif (s & 3) == 2 and c < 7:
            a('s_waitcnt lgkmcnt(7)')
            min4_wait(a, vLD, vF, c + 2, fresh=False)
            if c in (1, 3):
                stamp(a, 5 + (c >> 1))
        elif s < 31:
            a('s_waitcnt lgkmcnt(7)')
        else:
            a('s_waitcnt lgkmcnt(0)')
        if (s & 3) == 3:
            if c < 4:
                a(f"""v_mov_b32 v6, {c + 1}
                ds_write_b32 v{vPR}, v6""")
            if c == 7:
                lds_add(a, SY_FREE, 6, 7)
        if s < 4:
            l = a.lab('XT')
            cin = '0' if (s & 1) == 0 else vr(accT, 16)
            a(f"""s_cmp_lg_u32 s53, {s >> 1}
            s_cbranch_scc1 {l}
            {MFMA} {vr(accT, 16)}, {vr(f, 4)}, {vr(vID + 4 * (s & 1), 4)}, {cin}
{l}:""")
        a(f'{MFMA} {vr(accK, 16)}, {vr(f + 8, 4)}, {vr(f, 4)}, {vr(accK, 16)}')
        if n < 32:
            rd(n, 0)
        a(f'{MFMA} {vr(accV, 16)}, {vr(f, 4)}, {vr(f + 12, 4)}, {vr(accV, 16)}')
        if n < 32:
            rd(n, 1)
        a(f'{MFMA} {vr(accQ, 16)}, {vr(f + 4, 4)}, {vr(f, 4)}, {vr(accQ, 16)}')
        if n < 32:
            rd(n, 2)
        if s == 4:
            cvt8(a, vID, accT)
            if 'noxt' not in DBG:
                a(f"""buffer_store_dwordx4 {vr(vID, 4)}, v1, {WS_}, s54 offen sc1
                buffer_store_dwordx4 {vr(vID + 4, 4)}, v1, {WS_}, s54 offen offset:1024 sc1""")
        if s == XFLAG_STEP:
            a(f"""s_cmp_lg_u32 s{sWV}, 0
            s_cbranch_scc1 L_NONCE_DONE
            s_mov_b32 s65, {SPIN_G}
L_NONCE_P1:
            s_waitcnt vmcnt(0)
            v_readfirstlane_b32 s{sNON}, v23
            s_sub_u32 s65, s65, 1
            s_cbranch_scc1 L_NONCE_PUT
            s_cmp_lg_u32 s{sNON}, 0
            s_cbranch_scc1 L_NONCE_PUT
            global_load_dword v23, v22, s[30:31] sc1
            s_branch L_NONCE_P1
L_NONCE_PUT:
            s_or_b32 s{sNON}, s{sNON}, 1
            v_mov_b32 v6, {L_SY + SY_NONCE}
            v_mov_b32 v7, s{sNON}
            ds_write_b32 v6, v7
L_NONCE_DONE:""")
            get_nonce(a, 6, 7)
            group_flag_set(a, SY_X, 55, 6, 7)
    stamp(a, 3)
    a(f"""v_lshl_add_u32 v6, v3, 5, v4
    v_lshlrev_b32 v6, 4, v6
    v_lshrrev_b32 v7, 4, v2
    v_lshlrev_b32 v7, 16, v7
    v_lshl_add_u32 v7, v3, 8, v7
    v_and_b32 v8, 15, v2
    v_lshl_add_u32 v7, v8, 4, v7
    s_lshl_b32 s57, s{sCB}, 17
    s_lshl_b32 s58, s{sTT}, 10
    s_add_u32 s57, s57, s58
    s_add_u32 s59, s57, {KF}
    s_add_u32 s60, s59, 0x10000
    s_add_u32 s61, s57, {VF}
    s_add_u32 s57, s57, {QF}
    s_add_u32 s58, s57, 0x10000
    s_mov_b32 s62, {f32(0.25 * LOG2E)}""")
    cvt8(a, 88, accK)
    a(f"""buffer_store_dwordx4 v[88:91], v6, {WS_}, s59 offen sc1
    buffer_store_dwordx4 v[92:95], v6, {WS_}, s60 offen sc1""")
    cvt8(a, 96, accV)
    a(f"""buffer_store_dwordx4 v[96:99], v7, {WS_}, s61 offen sc1
    buffer_store_dwordx4 v[100:103], v7, {WS_}, s61 offen offset:512 sc1""")
    for i in range(16):
        a(f'v_mul_f32 v{accQ + i}, s62, v{accQ + i}')
    cvt8(a, 80, accQ)
    a(f"""buffer_store_dwordx4 v[80:83], v6, {WS_}, s57 offen sc1
    buffer_store_dwordx4 v[84:87], v6, {WS_}, s58 offen sc1""")
    group_flag_set(a, SY_Q, 56, 8, 9)
    stamp(a, 4)
    a('s_setprio 0')


def cexp(a, dst, lr, li, tau, t, conj=False):
    return [
        [f'v_mul_f32 v{t}, v{lr}, {tau}', f'v_mul_f32 v{t + 1}, v{li}, {tau}'],
        [f'v_exp_f32 v{t}, v{t}', f'v_fract_f32 v{t + 1}, v{t + 1}'],
        [f'v_cos_f32 v{dst}, v{t + 1}', f'v_sin_f32 v{dst + 1}, v{t + 1}'],
        [f'v_mul_f32 v{dst}, v{t}, v{dst}', f'v_mul_f32 v{dst + 1}, {"-" if conj else ""}v{t}, v{dst + 1}'],
    ]


def cmul(dst, x, s, t):
    return [f'v_pk_mul_f32 {vr(t, 2)}, {vr(x, 2)}, {vr(s, 2)} op_sel:[0,0] op_sel_hi:[0,1]',
            f'v_pk_fma_f32 {vr(dst, 2)}, {vr(x, 2)}, {vr(s, 2)}, {vr(t, 2)} op_sel:[1,1,0] op_sel_hi:[1,0,1] neg_lo:[1,0,0]']


def kgen_conv(a):
    sCI, sMH, sCH, sRG, sE, sT = 51, 52, 53, 54, 55, 56
    P = (8, 12)
    vTS, vTX, vTY, vTB = 16, 17, 18, 19
    vEX, vEY, vEB, vRA = 20, 21, 128, 23
    vSC = 24
    vGA = 30
    acc = 48
    SG, SY2, XV, YV, BV, BS = 64, 66, 68, 70, 72, 74
    t0 = 76
    a(f'''L_KGEN:
    s_setprio 2
    s_bfe_u32 s{sCI}, s{sWV}, 0x10001
    s_and_b32 s{sMH}, s{sWV}, 1
    s_and_b32 s{sCH}, s2, 7
    s_lshl_b32 s{sCH}, s{sCH}, 5
    s_lshr_b32 s57, s2, 3
    s_add_u32 s{sCH}, s{sCH}, s57
    s_lshl_b32 s59, s{sCH}, 2
    s_lshl_b32 s{sCH}, s{sCH}, 1
    s_add_u32 s{sCH}, s{sCH}, s{sCI}
    s_lshl_b32 s57, s{sCH}, 8
    s_lshl_b32 s58, s{sMH}, 7
    s_add_u32 s57, s57, s58
    v_lshl_add_u32 v6, v0, 1, s57
    global_load_ushort v8, v6, s[12:13]
    global_load_ushort v9, v6, s[14:15]
    global_load_ushort v10, v6, s[16:17]
    global_load_ushort v11, v6, s[18:19]
    s_load_dword s62, s[20:21], s59
    s_load_dword s63, s[22:23], s59
    s_setprio {KGEN_PRIO}
    s_mul_i32 s{sRG}, s{sCI}, {CVS}
    s_add_u32 s{sRG}, s{sRG}, {L_CV}
    s_mul_i32 s{sE}, s{sMH}, {CVS // 2}
    s_add_u32 s{sE}, s{sE}, s{sRG}
    s_mul_i32 s{sT}, s{sCI}, 2688
    s_add_u32 s{sT}, s{sT}, {L_T}
    s_mov_b32 s60, 0
    s_mov_b32 s61, -1
    v_mov_b32 v6, {f32(256.0)}
    v_cndmask_b32 v{vTS}, 1.0, v6, s[60:61]
    v_mov_b32 v7, {f32(516.0)}
    v_cndmask_b32 v{vTY}, v6, v7, s[60:61]
    v_cvt_f32_u32 v6, v3
    v_mul_f32 v{vTX}, {f32(512.0)}, v6
    v_mul_f32 v{vTB}, {f32(128.0)}, v6
    v_lshl_add_u32 v6, v2, 2, s{sE}
    v_mul_u32_u24 v7, {4 * EROW}, v3
    v_lshl_add_u32 v{vEX}, v7, 1, v6
    v_add_u32 v{vEY}, v7, v6
    v_add_u32 v{vEY}, {16 * EROW}, v{vEY}
    v_lshl_add_u32 v{vEB}, v7, 2, v6
    v_add_u32 v{vEB + 1}, {32 * EROW}, v{vEB}
    v_add_u32 v{vEB}, {24 * EROW}, v{vEB}
    v_mul_u32_u24 v6, {EROW}, v2
    v_lshl_add_u32 v6, v3, 4, v6
    v_add_u32 v{vRA}, s{sE}, v6''')
    a(f'''v_lshlrev_b32 v6, 3, v2
    v_lshl_add_u32 v6, v3, 2, v6
    v_lshl_add_u32 v{vSC}, v6, 2, s{sT}
    v_lshlrev_b32 v6, 1, v2
    v_add_u32 v7, 384, v6
    v_add_u32 v{t0}, 576, v2
    v_cndmask_b32 v7, v7, v{t0}, s[60:61]
    v_lshl_add_u32 v{vSC + 1}, v7, 2, s{sT}
    v_cndmask_b32 v7, 64, 32, s[60:61]
    v_lshl_add_u32 v{vSC + 2}, v7, 2, v{vSC + 1}
    v_lshl_add_u32 v7, v3, 7, v2
    v_add_u32 v7, 512, v7
    v_lshl_add_u32 v{vSC + 3}, v7, 2, s{sT}
    v_add_u32 v6, 385, v6
    v_lshlrev_b32 v7, 2, v2
    v_add_u32 v7, 256, v7
    v_cndmask_b32 v7, v7, v6, s[60:61]
    v_lshl_add_u32 v{vSC + 4}, v7, 2, s{sT}
    v_cndmask_b32 v7, 1, 64, s[60:61]
    v_lshl_add_u32 v{vSC + 5}, v7, 2, v{vSC + 4}''')
    a(f's_sub_u32 s57, s{sT}, {0x4280 * 4}')
    for r in range(2):
        a(f'''s_lshl_b32 s58, s{sMH}, 10
        s_sub_u32 s58, {2047 - 512 * r}, s58
        v_lshlrev_b32 v6, 3, v0
        v_sub_u32 v{t0}, s58, v6
        v_cvt_f32_u32 v{t0 + 1}, v{t0}''')
        for e in range(1, 9):
            a(f'v_add_f32 v{t0 + 1 + e}, {f32(-float(e))}, v{t0 + 1}')
        a(f'v_max_f32 v{t0 + 9}, 0, v{t0 + 9}')
        for e in range(0, 9, 2):
            g = vGA + 9 * r + e
            a(f'''v_cvt_pk_bf16_f32 v6, v{t0 + 1 + e}, v{t0 + 2 + e}
            v_and_b32 v7, 0xffff, v6
            v_lshl_add_u32 v{g}, v7, 2, s57''')
            if e < 8:
                a(f'''v_lshrrev_b32 v6, 16, v6
                v_lshl_add_u32 v{g + 1}, v6, 2, s57''')
        if r == 1:
            for e in range(9):
                a(f'v_subrev_u32 v6, {e}, v{t0}')
                if e == 8:
                    a('v_max_i32 v6, 0, v6')
                a(f'''v_min_u32 v6, 0x80, v6
                v_lshl_add_u32 v6, v6, 2, s{sT}
                v_max_i32 v{vGA + 9 + e}, v{vGA + 9 + e}, v6''')
    for i in range(16):
        a(f'v_mov_b32 v{acc + i}, 0')
    stamp(a, 1)
    a(f'''s_waitcnt vmcnt(0) lgkmcnt(0)
    s_lshl_b32 s58, s{sCI}, 4
    s_lshr_b32 s62, s62, s58
    s_lshl_b32 s62, s62, 16
    s_lshr_b32 s63, s63, s58
    s_lshl_b32 s63, s63, 16
    s_mov_b32 s59, {f32(LOG2E)}
    v_mov_b32 v6, s62
    v_mul_f32 v6, s59, v6
    v_lshlrev_b32 v8, 16, v8
    v_mul_f32 v8, s59, v8
    v_exp_f32 v6, v6
    v_exp_f32 v8, v8
    v_lshlrev_b32 v9, 16, v9
    v_lshlrev_b32 v10, 16, v10
    v_cvt_pk_bf16_f32 v6, v6, v8
    v_and_b32 v8, 0xffff0000, v6
    v_lshlrev_b32 v6, 16, v6
    v_mul_f32 v8, v8, v6
    v_mul_f32 v8, {f32(-LOG2E)}, v8
    v_mul_f32 v9, v9, v6
    v_mul_f32 v9, 0.15915494, v9
    v_add_f32 v6, v6, v6
    v_lshlrev_b32 v11, 16, v11
    v_mul_f32 v10, v10, v6
    v_mul_f32 v11, -v11, v6
    v_mov_b32 v12, v8
    v_mov_b32 v13, v9
    v_mov_b32 v14, v10
    v_mov_b32 v15, v11
    s_mov_b32 s59, {f32(8.0)}
    v_permlane32_swap_b32 v8, v12
    v_permlane32_swap_b32 v9, v13
    v_permlane32_swap_b32 v10, v14
    v_permlane32_swap_b32 v11, v15''')
    stamp(a, 2)
    FA, FBf = 96, 112
    a('''s_mov_b32 s62, 2
L_KP:''')
    if 'kp' in DBG:
        stamp(a, 1)
    for ps in range(1):
        p = P[ps]
        ev = [cexp(a, SG, p, p + 1, f'v{vTS}', t0, True), cexp(a, XV, p, p + 1, f'v{vTX}', t0 + 2, True),
              cexp(a, YV, p, p + 1, f'v{vTY}', t0 + 4, True), cexp(a, BV, p, p + 1, f'v{vTB}', t0 + 6),
              cexp(a, BS, p, p + 1, 's59', t0 + 8)]
        for st in range(4):
            for e in ev:
                for l in e[st]:
                    if ', s59' in l:
                        l = l.replace(f'v{p}, s59', f's59, v{p}').replace(f'v{p + 1}, s59', f's59, v{p + 1}')
                    a(l)
        m = [cmul(XV, XV, p + 2, t0), cmul(YV, YV, p + 2, t0 + 2), cmul(SY2, SG, SG, t0 + 4)]
        for st in range(2):
            for e in m:
                a(e[st])
        a(f'''v_cndmask_b32 v{SY2}, v{SY2}, v{SG}, s[60:61]
        v_cndmask_b32 v{SY2 + 1}, v{SY2 + 1}, v{SG + 1}, s[60:61]''')
        for k in range(16):
            ch = [(BV, BS, vEB + (k >> 3), k & 7, k < 15, 0)]
            if k < 8:
                ch.append((XV, SG, vEX, k, k < 7, 1))
            elif k < 12:
                ch.append((YV, SY2, vEY, k - 8, k < 11, 1))
            for v, s, ad, row, more, j in ch:
                a(f'v_cvt_pk_bf16_f32 v{t0 + 10 + 4 * j + (k & 3)}, v{v}, v{v + 1}')
                if more:
                    a(cmul(v, v, s, t0 + 2 * j)[0])
            for v, s, ad, row, more, j in ch:
                if more:
                    a(cmul(v, v, s, t0 + 2 * j)[1])
                if k & 1:
                    r = t0 + 10 + 4 * j + (k & 3)
                    a(f'ds_write2_b32 v{ad}, v{r - 1}, v{r} offset0:{(row - 1) * EROW // 4} offset1:{row * EROW // 4}')
        a('s_waitcnt lgkmcnt(0)')
        for q in range(4):
            a(f'''ds_read_b128 {vr(FA + 4 * q, 4)}, v{vRA} offset:{q * 32}
            ds_read_b128 {vr(FBf + 4 * q, 4)}, v{vRA} offset:{24 * EROW + q * 32}''')
        for i in range(4):
            a(f'v_mov_b32 v{P[0] + i}, v{P[1] + i}')
        a('''s_sub_u32 s62, s62, 1
        s_cmp_lg_u32 s62, 0''')
        for q in range(4):
            a(f'''s_waitcnt lgkmcnt({6 - 2 * q})
            {MFMA} {vr(acc, 16)}, {vr(FA + 4 * q, 4)}, {vr(FBf + 4 * q, 4)}, {vr(acc, 16)}''')
        a('s_cbranch_scc1 L_KP')
    stamp(a, 3)
    vA, vB, vA2, vUD = 20, 21, 19, 64
    a(f'''v_and_b32 v7, 1, v4
    v_cmp_eq_u32 vcc, 0, v7
    v_mov_b32 v7, 4158
    v_lshlrev_b32 v6, 1, v4
    v_cndmask_b32 v7, 0, v7, vcc
    v_sub_u32 v7, v7, v6
    v_lshl_add_u32 v7, v3, 4, v7
    v_add_u32 v7, {4094 - 32 * 6}, v7
    s_lshl_b32 s57, s{sMH}, 10
    s_sub_u32 s57, s{sRG}, s57
    v_add_u32 v{vA}, s57, v7
    v_subrev_u32 v{vA2}, 2048, v{vA}
    v_mul_u32_u24 v7, 96, v3
    v_add_u32 v7, v7, v2
    s_lshl_b32 s57, s{sMH}, 8
    s_sub_u32 s57, s{sRG}, s57
    s_add_u32 s57, s57, {L_U + (32 - 3) * 16}
    v_lshl_add_u32 v{vB}, v7, 4, s57''')
    a(f'''s_lshl_b32 s57, s{sCI}, 2
    v_mov_b32 v22, {L_SY + SY_K0}
    v_add_u32 v22, s57, v22
    s_add_u32 s57, s{sRG}, {CVS // 2}
    v_add_u32 v23, s57, v1
    s_cmp_eq_u32 s{sMH}, 0
    s_cbranch_scc1 L_KSUM''')
    for i in range(3):
        a(f'ds_write_b128 v23, {vr(acc + 4 * i, 4)} offset:{i * 1024}')
    a('''s_branch L_KSIG
L_KSUM:''')
    lds_wait(a, 22, 1, 6)
    for i in range(3):
        a(f'ds_read_b128 {vr(FA + 4 * i, 4)}, v23 offset:{i * 1024}')
    a('s_waitcnt lgkmcnt(0)')
    for i in range(12):
        a(f'v_add_f32 v{acc + i}, v{acc + i}, v{FA + i}')
    for jj in range(4):
        a(f'ds_write_b32 v{vSC}, v{acc + jj} offset:{jj * 4}')
    a(f'''ds_write_b32 v{vSC + 1}, v{acc + 4}
    ds_write_b32 v{vSC + 2}, v{acc + 5}
    ds_write_b32 v{vSC + 3}, v{acc + 6}
    ds_write_b32 v{vSC + 4}, v{acc + 8}
    ds_write_b32 v{vSC + 5}, v{acc + 9}
    s_mov_b32 exec_hi, 0
    ds_write_b32 v{vSC + 3}, v{acc + 7} offset:128
    ds_write_b32 v{vSC + 4}, v{acc + 10} offset:8
    ds_write_b32 v{vSC + 4}, v{acc + 11} offset:12
    s_mov_b64 exec, -1
L_KSIG:
    v_mov_b32 v7, 1
    s_waitcnt lgkmcnt(0)
    s_mov_b64 exec, 1
    ds_add_u32 v22, v7
    s_mov_b64 exec, -1
    s_mul_i32 s57, s{sMH}, 192
    s_mov_b32 s58, 683''')
    for q in range(3):
        r = vUD + q
        a(f'''v_add_u32 v6, s57, v0
        v_add_u32 v6, {64 * q}, v6
        v_mul_u32_u24 v7, s58, v6
        v_lshrrev_b32 v7, 16, v7
        v_mul_u32_u24 v{r}, 96, v7
        v_sub_u32 v6, v6, v{r}
        v_cmp_gt_u32 vcc, 32, v6
        v_subrev_u32 v{r}, 32, v6
        v_lshlrev_b32 v{r}, 11, v{r}
        v_lshl_add_u32 v{r}, v7, 9, v{r}
        v_mov_b32 v7, 0x7fff0000
        v_cndmask_b32 v{r}, v{r}, v7, vcc''')
    get_nonce(a, 6, 7)
    a(f'''s_lshr_b32 s57, s{sCH}, 5
    s_mul_i32 s57, s57, {FS}
    s_add_u32 s57, s57, {FX}
    v_and_b32 v23, 15, v0
    v_lshlrev_b32 v23, 2, v23''')

    def poll_x():
        a(f'v_mov_b32 v25, {L_SY + SY_X}')
        lds_wait(a, 25, 4, 7, sleep=True)
        flag_wait(a, 23, 57, 7)

    lds_wait(a, 22, 2, 6)
    G0 = 68
    for k in range(18):
        a(f'ds_read_b32 v{G0 + k}, v{vGA + k}')
        if k == 8:
            a('s_waitcnt lgkmcnt(4)')
    a(f'''v_lshl_add_u32 v7, v0, 1, s{sMH}
    v_cmp_eq_u32 vcc, 0x7f, v7
    v_mov_b32 v6, s63
    s_lshl_b32 s57, s{sMH}, 11
    s_add_u32 s57, s57, s{sRG}
    v_cndmask_b32 v6, 0, v6, vcc
    v_add_u32 v24, s57, v1
    s_waitcnt lgkmcnt(0)
    v_add_f32 v{G0 + 16}, v{G0 + 16}, v6
    v_cndmask_b32 v{G0 + 17}, v{G0 + 17}, 0, vcc''')
    lds_add(a, SY_FREE, 6, 7)
    for r in range(2):
        for c in range(2):
            d = 88 + 8 * r + 4 * c
            for i in range(4):
                a(f'v_cvt_pk_bf16_f32 v{d + i}, v{G0 + 9 * r + c + 2 * i}, v{G0 + 9 * r + c + 2 * i + 1}')
            a(f'ds_write_b128 v24, {vr(d, 4)} offset:{r * 1024 + c * 4160}')
    for i in range(16):
        a(f'v_mov_b32 v{acc + i}, 0')
    a(f'''v_bfe_u32 v6, v0, 2, 1
    v_mul_u32_u24 v6, {4160 - 64}, v6
    v_add_u32 v6, v6, v1
    v_add_u32 v6, s{sRG}, v6
    s_mov_b64 exec, 0xff
    ds_write_b128 v6, {vr(acc, 4)} offset:4096
    s_mov_b64 exec, -1
    s_lshr_b32 s57, s{sCH}, 5
    s_mul_i32 s57, s57, {FS}
    s_add_u32 s57, s57, {FX}''')
    if 'nofx' not in DBG:
        relay_wait(a, 4, SY_XOK, poll_x, 6, 7)
    stamp(a, 4)
    a(f'''s_lshr_b32 s62, s{sCH}, 5
    s_lshl_b32 s62, s62, 17
    s_and_b32 s58, s{sCH}, 31
    s_lshl_b32 s58, s58, 4
    s_add_u32 s62, s62, s58
    s_add_u32 s62, s62, {XT}
    s_mul_i32 s58, s{sMH}, 3072
    s_add_u32 s58, s58, s{sRG}''')
    for q in range(3 if 'nou' not in DBG else 0):
        a(f'''s_add_u32 m0, s58, {L_U + q * 1024}
        s_nop 0
        buffer_load_dwordx4 v{vUD + q}, {WS_}, s62 offen sc1 lds''')
    a(f'''v_add_u32 v22, {SY_K1 - SY_K0}, v22
    v_mov_b32 v7, 1
    s_waitcnt vmcnt(0) lgkmcnt(0)
    s_mov_b64 exec, 1
    ds_add_u32 v22, v7
    s_mov_b64 exec, -1''')
    lds_wait(a, 22, 2, 6)
    stamp(a, 5)
    CF = (64, 80)
    ac1 = 32
    for i in range(16):
        a(f'v_mov_b32 v{ac1 + i}, 0')
    if CONV_WAIT:
        a(f'v_mov_b32 v6, {L_SY + SY_FREE}')
        lds_wait(a, 6, 8, 7, sleep=True)
    a(f"""s_mov_b32 s59, 4
    s_setprio {CONV_PRIO}""")

    def creads(k, f):
        oa = (7 - k) * 8
        ob = (3 - (k >> 1)) * 16 + (3072 if (k & 1) == 0 else 0)
        a(f"""ds_read2_b32 {vr(f, 2)}, v{vA} offset0:{oa} offset1:{oa + 1}
        ds_read2_b32 {vr(f + 2, 2)}, v{vA} offset0:{oa + 2} offset1:{oa + 3}
        ds_read_b128 {vr(f + 4, 4)}, v{vB} offset:{ob}
        ds_read_b128 {vr(f + 8, 4)}, v{vB} offset:{ob + 512}
        ds_read2_b32 {vr(f + 12, 2)}, v{vA2} offset0:{oa} offset1:{oa + 1}
        ds_read2_b32 {vr(f + 14, 2)}, v{vA2} offset0:{oa + 2} offset1:{oa + 3}""")

    creads(0, CF[0])
    a('L_CL:')
    if 'kp' in DBG:
        stamp(a, 4)
    for k in range(8):
        f = CF[k & 1]
        if k == 7:
            a(f"""v_subrev_u32 v{vA}, 256, v{vA}
            v_subrev_u32 v{vA2}, 256, v{vA2}
            v_subrev_u32 v{vB}, 64, v{vB}
            s_sub_u32 s59, s59, 1
            s_cmp_lg_u32 s59, 0""")
        creads((k + 1) & 7, CF[(k + 1) & 1])
        a(f"""s_waitcnt lgkmcnt(6)
        {MFMA} {vr(acc, 16)}, {vr(f, 4)}, {vr(f + 4, 4)}, {vr(acc, 16)}
        {MFMA} {vr(ac1, 16)}, {vr(f, 4)}, {vr(f + 8, 4)}, {vr(ac1, 16)}
        {MFMA} {vr(ac1, 16)}, {vr(f + 12, 4)}, {vr(f + 4, 4)}, {vr(ac1, 16)}""")
    a(f"""s_cbranch_scc1 L_CL
    s_setprio 0
    v_mov_b32 v6, {L_SY + SY_FREE}
    s_and_b32 s57, s{sWV}, 3
    s_lshl_b32 s57, s57, 12
    s_add_u32 s58, s57, {L_CX}
    v_add_u32 v23, s58, v1
    s_xor_b32 s57, s57, 4096
    s_add_u32 s58, s57, {L_CX}
    v_add_u32 v24, s58, v1
    v_add_u32 v22, {SY_K2 - SY_K1}, v22""")
    lds_wait(a, 6, 8, 7, sleep=True)
    a(f"""s_cmp_eq_u32 s{sMH}, 0
    s_cbranch_scc1 L_CG0""")
    for i in range(4):
        a(f'ds_write_b128 v23, {vr(acc + 4 * i, 4)} offset:{i * 1024}')
    for i in range(16):
        a(f'v_mov_b32 v{acc + i}, v{ac1 + i}')
    a("""s_branch L_CG1
L_CG0:""")
    for i in range(4):
        a(f'ds_write_b128 v23, {vr(ac1 + 4 * i, 4)} offset:{i * 1024}')
    a(f"""L_CG1:
    v_mov_b32 v7, 1
    s_waitcnt lgkmcnt(0)
    s_mov_b64 exec, 1
    ds_add_u32 v22, v7
    s_mov_b64 exec, -1
    s_lshl_b32 s57, s{sCH}, 12
    s_lshl_b32 s58, s{sMH}, 11
    s_add_u32 s57, s57, s58
    s_add_u32 s57, s57, {BT}
    s_lshr_b32 s63, s{sCH}, 7
    s_mul_i32 s63, s63, {FS}
    s_bfe_u32 s58, s{sCH}, 0x60001
    s_lshl_b32 s58, s58, 2
    s_add_u32 s63, s63, s58
    s_add_u32 s63, s63, {FB}""")
    lds_wait(a, 22, 2, 6)
    for i in range(4):
        a(f'ds_read_b128 {vr(CF[0] + 4 * i, 4)}, v24 offset:{i * 1024}')
    a('s_waitcnt lgkmcnt(0)')
    for i in range(16):
        a(f'v_add_f32 v{acc + i}, v{acc + i}, v{CF[0] + i}')
    cvt8(a, 24, acc)
    a(f"""buffer_store_dwordx4 v[24:27], v1, {WS_}, s57 offen sc1
    buffer_store_dwordx4 v[28:31], v1, {WS_}, s57 offen offset:1024 sc1""")
    stamp(a, 6)


Q, Kf, V1 = (4, 8), 12, 16
V0 = (20, 24)
vIX, vK, vV = 28, 29, 30
S = (32, 48)
O, M = (64, 80), (96, 112)
T0 = 128
sQT, sKH, sH = 51, 52, 53


def rowmax(a, src, dst):
    a(f'v_max3_f32 v{dst}, v{src}, v{src + 1}, v{src + 2}')
    for i in range(3, 15, 2):
        a(f'v_max3_f32 v{dst}, v{dst}, v{src + i}, v{src + i + 1}')
    a(f'v_max_f32 v{dst}, v{dst}, v{src + 15}')


def set_m(a, mx, t, m):
    a(f'''v_mov_b32 v{t}, v{mx}
    v_permlane32_swap_b32 v{mx}, v{t}
    v_max_f32 v{mx}, v{mx}, v{t}
    v_sub_f32 v{m}, 0, v{mx}''')
    for i in range(1, 16):
        a(f'v_mov_b32 v{m + i}, v{m}')


def attn_loop(a, young):
    a(f'''s_and_b32 s{sH}, s2, 31
    s_lshr_b32 s{sQT}, s2, 5
    s_lshl_b32 s{sQT}, s{sQT}, 2
    s_and_b32 s54, s{sWV}, 3
    s_add_u32 s{sQT}, s{sQT}, s54
    s_lshl_b32 s{sQT}, s{sQT}, 1
    s_lshr_b32 s{sKH}, s{sWV}, 2
    s_lshl_b32 s55, s{sKH}, 15
    s_lshl_b32 s54, s54, 11
    s_add_u32 s54, s54, {L_T}
    v_mov_b32 v{vIX}, 0xdddd
    v_add_u32 v{vK}, s55, v1
    v_and_b32 v{T0}, 15, v2
    v_lshlrev_b32 v{T0}, 4, v{T0}
    v_lshl_add_u32 v{T0}, v3, 8, v{T0}
    s_add_u32 s55, s55, {L_V}
    v_add_u32 v{vV}, s55, v{T0}
    v_cmp_eq_u32 vcc, 16, v2
    v_mov_b32 v{T0}, 0x3f803f80
    s_mov_b32 s60, 0xffff
    s_mov_b32 s61, 0xffff
    v_cndmask_b32 v{V1}, 0, v{T0}, vcc
    v_add_u32 v{T0}, s54, v1''')
    for i in range(1, 12):
        a(f'v_mov_b32 v{V1 + i}, v{V1}')
    for i in range(32):
        a(f'v_mov_b32 v{O[0] + i}, 0')
    if young:
        group_flag_set(a, SY_B, 63, T0 + 1, T0 + 2)
    stamp(a, 7)
    a(f'''s_barrier
    ds_read_b128 {vr(Kf, 4)}, v{vK}
    ds_read_b128 {vr(Q[0], 4)}, v{T0}
    ds_read_b128 {vr(Q[1], 4)}, v{T0} offset:1024
    s_mov_b64 exec, s[60:61]
    ds_read_b128 {vr(V0[0], 4)}, v{vV}
    s_mov_b64 exec, -1''')
    stamp(a, 8)
    a(f'''s_waitcnt lgkmcnt(2)
    {MFMA} {vr(S[0], 16)}, {vr(Kf, 4)}, {vr(Q[0], 4)}, 0
    s_waitcnt lgkmcnt(0)
    {MFMA} {vr(S[1], 16)}, {vr(Kf, 4)}, {vr(Q[1], 4)}, 0''')
    rowmax(a, S[0], T0)
    rowmax(a, S[1], T0 + 1)
    set_m(a, T0, T0 + 2, M[0])
    a(f'{MFMA} {vr(S[0], 16)}, {vr(Kf, 4)}, {vr(Q[0], 4)}, {vr(M[0], 16)}')
    set_m(a, T0 + 1, T0 + 2, M[1])
    if young:
        a('s_setprio 1')
    NT = 32
    for u in range(2 * NT):
        t, q = u >> 1, u & 1
        s, sn = S[q], S[q ^ 1]

        def e(i):
            if young and q == 1 and i == 11 and PWIN:
                a('s_setprio 0')
            a(f'v_exp_f32 v{s + i}, v{s + i}')
            if young and q == 1 and i == 10 + PWIN and PWIN:
                a('s_setprio 1')

        if q == 0 and t + 1 in KV_G[:2]:
            a('s_barrier')
            if t + 1 == KV_G[1]:
                stamp(a, 9)
        e(0)
        if q == 1:
            a('s_waitcnt lgkmcnt(0)')
        e(1)
        if u > 0:
            a(f'{SMF} {vr(O[q ^ 1], 16)}, {vr(V1, 4)}, {vr(sn + 8, 8)}, v{vIX}')
        if q == 0:
            a(f'''s_mov_b64 exec, s[60:61]
            ds_read_b128 {vr(V1, 4)}, v{vV} offset:{t * 1024 + 512}''')
            if t + 1 < NT:
                a(f'ds_read_b128 {vr(V0[(t + 1) & 1], 4)}, v{vV} offset:{(t + 1) * 1024}')
            a('s_mov_b64 exec, -1')
        nq = 6 if (q == 0 and t + 1 < NT) else 5
        for i in range(2, nq):
            e(i)
        if u + 1 < 2 * NT:
            a(f'{MFMA} {vr(sn, 16)}, {vr(Kf, 4)}, {vr(Q[q ^ 1], 4)}, {vr(M[q ^ 1], 16)}')
        if q == 0 and t + 1 < NT:
            a(f'ds_read_b128 {vr(Kf, 4)}, v{vK} offset:{(t + 1) * 1024}')
        for i in range(nq, 11):
            e(i)
        a(f'{SMF} {vr(O[q], 16)}, {vr(V0[t & 1], 4)}, {vr(s, 8)}, v{vIX}')
        for i in range(11, 16):
            e(i)
    keep = 1 if young else 0
    give = keep ^ 1
    a(f'''s_mul_i32 s54, s{sWV}, 3072
    s_add_u32 s54, s54, {L_CV}
    {SMF} {vr(O[1], 16)}, {vr(V1, 4)}, {vr(S[1] + 8, 8)}, v{vIX}
    v_add_u32 v{T0}, s54, v1
    s_xor_b32 s54, s{sWV}, 4
    s_mul_i32 s54, s54, 3072
    s_add_u32 s54, s54, {L_CV}
    v_add_u32 v{T0 + 1}, s54, v1
    s_add_u32 s{sQT}, s{sQT}, s{sKH}
    s_lshl_b32 s54, s{sQT}, 5
    s_add_u32 s54, s54, s{sH}
    s_mul_i32 s55, s{sQT}, {FS}
    s_lshl_b32 s56, s{sH}, 2
    s_add_u32 s55, s55, s56
    s_add_u32 s55, s55, {FO}
    s_lshl_b32 s54, s54, 10
    s_add_u32 s54, s54, {OF}
    s_setprio 0''')
    stamp(a, 10)
    a(f'''v_mov_b32 v{O[give] + 9}, v{M[give]}
    ds_write_b128 v{T0}, {vr(O[give], 4)}
    ds_write_b128 v{T0}, {vr(O[give] + 4, 4)} offset:1024
    ds_write_b128 v{T0}, {vr(O[give] + 8, 4)} offset:2048''')
    if young:
        for i in range(9):
            a(f'v_mov_b32 v{O[0] + i}, v{O[1] + i}')
        for i in range(4):
            a(f'v_mov_b32 v{Q[0] + i}, v{Q[1] + i}')
        a(f'v_mov_b32 v{M[0]}, v{M[1]}')


def attn_tail(a):
    X = S[0]
    Oo, Mo = O[0], M[0]
    a(f'''L_ATT_X:
    s_waitcnt lgkmcnt(0)
    s_barrier
    ds_read_b128 {vr(X + 8, 4)}, v{T0 + 1} offset:2048
    ds_read_b128 {vr(X, 4)}, v{T0 + 1}
    ds_read_b128 {vr(X + 4, 4)}, v{T0 + 1} offset:1024
    s_mov_b32 s56, {f32(2.0 ** 30)}
    s_waitcnt lgkmcnt(2)
    v_min_f32 v{T0}, v{Mo}, v{X + 9}
    v_sub_f32 v{T0 + 2}, v{T0}, v{Mo}
    v_sub_f32 v{T0 + 3}, v{T0}, v{X + 9}
    v_exp_f32 v{T0 + 2}, v{T0 + 2}
    v_exp_f32 v{T0 + 3}, v{T0 + 3}
    v_cmp_nlt_f32 vcc, v{Oo + 8}, s56
    v_cmp_nlt_f32 s[58:59], v{X + 8}, s56
    v_mul_f32 v{T0}, v{Oo + 8}, v{T0 + 2}
    v_fma_f32 v{T0}, v{X + 8}, v{T0 + 3}, v{T0}
    s_or_b32 s58, s58, vcc_lo
    v_mov_b32 v{T0 + 1}, v{T0}
    s_cmp_lg_u32 s58, 0
    s_cbranch_scc1 L_REDO
    v_permlane32_swap_b32 v{T0}, v{T0 + 1}
    v_rcp_f32 v{T0}, v{T0}
    s_waitcnt lgkmcnt(0)
    v_mul_f32 v{T0 + 2}, v{T0 + 2}, v{T0}
    v_mul_f32 v{T0 + 3}, v{T0 + 3}, v{T0}''')
    for i in range(8):
        a(f'v_mul_f32 v{Oo + i}, v{Oo + i}, v{T0 + 2}')
    for i in range(8):
        a(f'v_fma_f32 v{Oo + i}, v{X + i}, v{T0 + 3}, v{Oo + i}')
    a('L_FIN:')
    cvt8(a, X, Oo, 4)
    a(f'buffer_store_dwordx4 {vr(X, 4)}, v1, {WS_}, s54 offen sc1')
    flag_set(a, 55, T0, T0 + 1)
    stamp(a, 11)
    stamp_flush(a)
    a('s_endpgm')
    a(f'''L_REDO:
    s_waitcnt lgkmcnt(0)
    v_mov_b32 v{T0}, 0xff800000
    v_mov_b32 v{T0 + 2}, v1
    s_mov_b32 s57, 64
L_R1:
    ds_read_b128 {vr(Kf, 4)}, v{T0 + 2}
    v_add_u32 v{T0 + 2}, 1024, v{T0 + 2}
    s_waitcnt lgkmcnt(0)
    {MFMA} {vr(S[0], 16)}, {vr(Kf, 4)}, {vr(Q[0], 4)}, 0''')
    rowmax(a, S[0], T0 + 1)
    a(f'''v_max_f32 v{T0}, v{T0}, v{T0 + 1}
    s_sub_u32 s57, s57, 1
    s_cmp_lg_u32 s57, 0
    s_cbranch_scc1 L_R1''')
    set_m(a, T0, T0 + 1, Mo)
    for i in range(16):
        a(f'v_mov_b32 v{Oo + i}, 0')
    a(f'''v_mov_b32 v{T0 + 2}, v1
    v_and_b32 v{T0 + 3}, 0x7fff, v{vV}
    v_add_u32 v{T0 + 3}, {L_V}, v{T0 + 3}
    s_mov_b32 s57, 64
L_R2:
    ds_read_b128 {vr(Kf, 4)}, v{T0 + 2}
    s_mov_b64 exec, s[60:61]
    ds_read_b128 {vr(V0[0], 4)}, v{T0 + 3}
    ds_read_b128 {vr(V1, 4)}, v{T0 + 3} offset:512
    s_mov_b64 exec, -1
    v_add_u32 v{T0 + 2}, 1024, v{T0 + 2}
    v_add_u32 v{T0 + 3}, 1024, v{T0 + 3}
    s_waitcnt lgkmcnt(0)
    {MFMA} {vr(S[0], 16)}, {vr(Kf, 4)}, {vr(Q[0], 4)}, {vr(Mo, 16)}''')
    for i in range(16):
        a(f'v_exp_f32 v{S[0] + i}, v{S[0] + i}')
    a(f'''{SMF} {vr(Oo, 16)}, {vr(V0[0], 4)}, {vr(S[0], 8)}, v{vIX}
    {SMF} {vr(Oo, 16)}, {vr(V1, 4)}, {vr(S[0] + 8, 8)}, v{vIX}
    s_sub_u32 s57, s57, 1
    s_cmp_lg_u32 s57, 0
    s_cbranch_scc1 L_R2
    s_nop 9
    v_mov_b32 v{T0}, v{Oo + 8}
    v_mov_b32 v{T0 + 1}, v{Oo + 8}
    v_permlane32_swap_b32 v{T0}, v{T0 + 1}
    v_rcp_f32 v{T0}, v{T0}''')
    for i in range(8):
        a(f'v_mul_f32 v{Oo + i}, v{Oo + i}, v{T0}')
    a('s_branch L_FIN')


def aux(a):
    sC, sROW = 51, 53
    vGX, vGW, vWO, vID, D2 = 16, 24, 28, 36, 44
    vWD, vXD, vLD, vPR, vF = 5, 8, 12, 13, 60
    vm = VM(a)
    a(f"""L_AUX:
    s_setprio 2
    s_and_b32 s{sC}, s{sWV}, 3
    v_lshrrev_b32 v{vWD}, 2, v0
    v_mul_u32_u24 v{vWD}, 3072, v{vWD}
    v_and_b32 v6, 3, v0
    v_lshl_add_u32 v{vWD}, v6, 4, v{vWD}
    s_lshl_b32 s54, s{sCB}, 6
    s_mul_i32 s55, s{sC}, 49152
    s_add_u32 s54, s54, s55
    s_mul_i32 s55, s{sC}, 3072
    s_lshl_b32 s56, s{sRB}, 2
    s_add_u32 s56, s56, s{sC}
    s_lshl_b32 s56, s56, 15
    s_lshl_b32 s57, s{sC}, 12
    s_add_u32 s57, s57, 12288
    s_mov_b32 s58, s{sR}
    v_lshrrev_b32 v6, 4, v0
    v_and_b32 v7, 7, v0
    v_xor_b32 v6, v6, v7
    v_lshlrev_b32 v6, 4, v6
    v_lshrrev_b32 v7, 3, v0
    v_lshl_add_u32 v{vXD}, v7, 10, v6
    v_xor_b32 v{vXD + 1}, 64, v{vXD}
    v_add_u32 v{vXD + 2}, {2 * 7168}, v{vXD}
    v_add_u32 v{vXD + 3}, {3 * 7168}, v{vXD + 1}
    v_add_u32 v{vXD + 1}, 7168, v{vXD + 1}""")
    srd(a, sW, 6, 0x180000)

    def landed(st):
        vm.wait(st)
        a(f"""v_mov_b32 v6, {st + 1}
        ds_write_b32 v{vLD}, v6""")

    for st in range(8):
        if st == 1:
            a(f"""s_lshl_b32 s59, s{sC}, 2
            s_add_u32 s59, s59, {L_SY + SY_LD}
            v_mov_b32 v{vLD}, s59
            v_mov_b32 v{vPR}, {L_SY + SY_PR}""")
        if st >= 4 and 'nopr' not in DBG:
            min4_wait(a, vPR, vF, st - 3)
        a(f"""s_mul_i32 s59, s58, 196608
        s_add_u32 s59, s59, s54
        s_add_u32 m0, s55, {(st & 3) * SLOT}
        s_lshl_b32 s60, s58, 7""")
        for sg in range(3):
            vm.issue(st, f'buffer_load_dwordx4 v{vWD}, {W_}, s59 offen offset:{sg * 1024} lds')
        a(f"""s_add_u32 m0, s57, {(st & 3) * SLOT}
        s_add_u32 s60, s60, s56""")
        for q in range(4):
            vm.issue(st, f'buffer_load_dwordx4 v{vXD + q}, {X_}, s60 offen offset:{q * 1024} lds')
        a("""s_add_u32 s58, s58, 1
        s_and_b32 s58, s58, 7""")
        for k in {2: [0], 3: [1, 2]}.get(st, [st - 1] if st >= 4 else []):
            landed(k)
    landed(7)
    a('s_setprio 0')
    stamp(a, 1)
    get_nonce(a, 60, 61)
    identity_frags(a, vID, 2, 3, 6, 7)
    a(f'''s_lshl_b32 s{sROW}, s{sRB}, 7
    s_lshl_b32 s54, s{sCB}, 3
    s_add_u32 s{sROW}, s{sROW}, s54
    s_lshl_b32 s54, s{sC}, 1
    s_add_u32 s{sROW}, s{sROW}, s54
    s_lshl_b32 s54, s{sROW}, 10
    buffer_load_dwordx4 {vr(vGX, 4)}, v1, {X_}, s54 offen
    buffer_load_dwordx4 {vr(vGX + 4, 4)}, v1, {X_}, s54 offen offset:1024
    global_load_dwordx4 {vr(vGW, 4)}, v1, s[24:25]
    s_cmp_lg_u32 s{sC}, 3
    s_cbranch_scc1 L_NOWO
    s_lshr_b32 s54, s2, 4
    s_lshl_b32 s54, s54, 15
    s_and_b32 s55, s2, 15
    s_lshl_b32 s55, s55, 6
    s_add_u32 s54, s54, s55
    v_lshlrev_b32 v6, 10, v2
    v_lshl_add_u32 v6, v3, 4, v6
    v_add_u32 v6, s54, v6
    global_load_dwordx4 {vr(vWO, 4)}, v6, s[8:9]
    global_load_dwordx4 {vr(vWO + 4, 4)}, v6, s[8:9] offset:32
    v_lshl_add_u32 v6, v3, 5, v4
    v_lshlrev_b32 v6, 4, v6
    s_and_b32 s54, s2, 15
    s_lshl_b32 s54, s54, 15
    s_lshr_b32 s55, s2, 4
    s_lshl_b32 s55, s55, 11
    s_add_u32 s54, s54, s55
    s_add_u32 s54, s54, {WOF}
    s_waitcnt vmcnt(0)
    {MFMA} {vr(D2, 16)}, {vr(vWO, 4)}, {vr(vID, 4)}, 0
    {MFMA} {vr(D2, 16)}, {vr(vWO + 4, 4)}, {vr(vID + 4, 4)}, {vr(D2, 16)}''')
    cvt8(a, vWO, D2)
    a(f'''buffer_store_dwordx4 {vr(vWO, 4)}, v6, {WS_}, s54 offen sc1
    buffer_store_dwordx4 {vr(vWO + 4, 4)}, v6, {WS_}, s54 offen offset:1024 sc1
L_NOWO:
    v_mov_b32 v6, 0
    v_mov_b32 v7, 0
    s_waitcnt vmcnt(0)''')
    for i in range(4):
        a(f'''v_dot2_f32_bf16 v6, v{vGX + i}, v{vGW + i}, v6
        v_dot2_f32_bf16 v7, v{vGX + 4 + i}, v{vGW + i}, v7''')
    a('s_nop 2')
    for d in ('row_shr:1', 'row_shr:2', 'row_shr:4', 'row_shr:8', 'row_bcast:15 row_mask:0xa', 'row_bcast:31 row_mask:0xc'):
        a(f'''v_add_f32_dpp v6, v6, v6 {d}
        v_add_f32_dpp v7, v7, v7 {d}''')
    a(f'''v_mul_f32 v6, {f32(-LOG2E)}, v6
    v_mul_f32 v7, {f32(-LOG2E)}, v7
    v_exp_f32 v6, v6
    v_exp_f32 v7, v7
    v_add_f32 v6, 1.0, v6
    v_add_f32 v7, 1.0, v7
    v_rcp_f32 v6, v6
    v_rcp_f32 v7, v7
    s_lshl_b32 s54, s{sROW}, 2
    s_add_u32 s54, s54, {GG}
    v_mov_b32 v60, 0
    s_mov_b32 exec_lo, 0
    s_brev_b32 exec_hi, 1
    buffer_store_dwordx2 v[6:7], v60, {WS_}, s54 offen sc1
    s_mov_b64 exec, -1
    s_lshl_b32 s54, s2, 2
    s_add_u32 s54, s54, {FW}''')
    group_flag_set(a, SY_W, 54, 60, 61)

    stamp(a, 2)
    sG, sL = 54, 55
    vm = VM(a)
    a(f'''s_and_b32 s56, s2, 31
    s_lshr_b32 s57, s56, 1
    s_mul_i32 s57, s57, {FS}
    s_add_u32 s57, s57, {FQ}
    s_lshl_b32 s56, s56, 16
    s_lshr_b32 s58, s{sC}, 1
    s_lshl_b32 s58, s58, 15
    s_and_b32 s59, s{sC}, 1
    s_lshl_b32 s{sL}, s59, 16
    s_add_u32 s{sL}, s{sL}, s58
    s_mul_i32 s{sG}, s59, {VF - KF}
    s_add_u32 s{sG}, s{sG}, s58
    s_add_u32 s{sG}, s{sG}, s56
    s_add_u32 s{sG}, s{sG}, {KF}
    s_lshr_b32 s58, s2, 5
    s_lshl_b32 s58, s58, 2
    s_add_u32 s58, s58, s{sC}
    s_lshl_b32 s58, s58, 11
    s_add_u32 s56, s56, s58
    s_add_u32 s56, s56, {QF}
    v_mov_b32 v6, {L_SY + SY_FREE}
    v_and_b32 v5, 15, v0
    v_lshlrev_b32 v5, 2, v5''')
    lds_wait(a, 6, 8, 7, sleep=True)
    stamp(a, 3)

    def poll_q():
        a(f'v_mov_b32 v8, {L_SY + SY_Q}')
        lds_wait(a, 8, 4, 7, sleep=True)
        flag_wait(a, 5, 57, 7)

    relay_wait(a, 8, SY_QOK, poll_q, 6, 7)
    stamp(a, 4)
    a(f'''s_lshl_b32 s58, s{sC}, 11
    s_add_u32 m0, s58, {L_T}
    s_nop 0''')
    for i in range(2):
        vm.issue('q', f'buffer_load_dwordx4 v1, {WS_}, s56 offen offset:{i * 1024} sc1 lds')

    def kv(t0, t1):
        for t in range(t0, t1):
            if t == t0 or t % 4 == 0:
                a(f'''s_add_u32 m0, s{sL}, {(t & ~3) * 1024}
                s_add_u32 s58, s{sG}, {(t & ~3) * 1024}''')
            vm.issue(t, f'buffer_load_dwordx4 v1, {WS_}, s58 offen offset:{(t & 3) * 1024} sc1 lds')

    kv(0, KV_G[1])
    vm.wait(KV_G[0] - 1)
    a('s_barrier')
    stamp(a, 5)
    kv(KV_G[1], KV_G[2])
    vm.wait(KV_G[1] - 1)
    a('s_barrier')
    kv(KV_G[2], 32)
    a('''s_waitcnt vmcnt(0)
    s_barrier''')
    stamp(a, 6)

    sT3, sC3 = 52, 53
    vG, vOA, BTM, acc, FR, WO = 5, 6, 8, 16, (32, 36), 40
    a(f'''s_setprio 3
    s_and_b32 s{sT3}, s2, 7
    s_lshl_b32 s{sT3}, s{sT3}, 3
    s_bfe_u32 s54, s2, 0x30003
    s_add_u32 s{sT3}, s{sT3}, s54
    s_lshr_b32 s{sC3}, s2, 6
    s_mov_b32 s54, {FW}
    s_mul_i32 s55, s{sC3}, {FS}
    s_add_u32 s55, s55, {FB}
    v_lshlrev_b32 v5, 2, v0''')

    def poll_w():
        flag_wait(a, 1, 54, acc, n=4, sleep=8)
        flag_wait(a, 5, 55, acc, sleep=8)

    relay_wait(a, 8, SY_WOK, poll_w, 6, 7)
    vBT, vI3, accb = FR[0], BTM, acc
    a(f"""s_lshl_b32 s{sC3}, s{sC3}, 2
    s_add_u32 s{sC3}, s{sC3}, s{sC}
    v_lshlrev_b32 v6, 12, v4
    v_lshl_add_u32 v6, v3, 9, v6
    s_lshl_b32 s54, s{sC3}, 17
    s_lshr_b32 s55, s{sT3}, 5
    s_lshl_b32 s55, s55, 11
    s_add_u32 s54, s54, s55
    s_and_b32 s55, s{sT3}, 31
    s_lshl_b32 s55, s55, 4
    s_add_u32 s54, s54, s55
    s_add_u32 s54, s54, {BT}
    s_lshl_b32 s55, s{sT3}, 7
    s_add_u32 s55, s55, {GG}
    v_lshlrev_b32 v7, 2, v2
    buffer_load_dwordx4 {vr(vBT, 4)}, v6, {WS_}, s54 offen sc1
    buffer_load_dwordx4 {vr(vBT + 4, 4)}, v6, {WS_}, s54 offen offset:1024 sc1
    buffer_load_dword v{vG}, v7, {WS_}, s55 offen sc1
    s_lshl_b32 s54, s{sC3}, 15
    s_add_u32 s54, s54, {WOF}""")
    for k in range(32):
        if k and k % 4 == 0:
            a('s_add_u32 s54, s54, 4096')
        a(f'buffer_load_dwordx4 {vr(WO + 4 * k, 4)}, v1, {WS_}, s54 offen offset:{(k & 3) * 1024} sc1')
    identity_frags(a, vI3, 2, 3, 6, 7)
    a(f"""s_waitcnt vmcnt(32)
    {MFMA} {vr(accb, 16)}, {vr(vBT, 4)}, {vr(vI3, 4)}, 0
    {MFMA} {vr(accb, 16)}, {vr(vBT + 4, 4)}, {vr(vI3 + 4, 4)}, {vr(accb, 16)}
    v_sub_f32 v7, 1.0, v{vG}
    v_lshlrev_b32 v{vOA}, 10, v2
    v_lshl_add_u32 v{vOA}, v3, 4, v{vOA}""")
    for i in range(16):
        a(f'v_mul_f32 v{accb + i}, v7, v{accb + i}')
    cvt8(a, BTM, accb)
    for i in range(16):
        a(f'v_mov_b32 v{acc + i}, 0')
    a(f'''s_mul_i32 s54, s{sT3}, {FS}
    s_add_u32 s54, s54, {FO}
    s_lshl_b32 s55, s{sT3}, 15
    s_add_u32 s55, s55, {OF}
    s_lshl_b32 s56, s{sC}, 10
    s_add_u32 s55, s55, s56
    s_lshl_b32 s57, s{sT3}, 15
    s_lshl_b32 s58, s{sC3}, 6
    s_add_u32 s57, s57, s58
    v_lshlrev_b32 v7, 2, v2''')
    srd(a, sOUT, 28, 0x200000)
    stamp(a, 7)
    a('''s_barrier
    s_barrier''')
    stamp(a, 8)
    a(f'''s_cmp_lg_u32 s{sWV}, 8
    s_cbranch_scc1 L_OWAIT''')
    flag_wait(a, 7, 54, FR[0], n=1, sleep=OSLEEP)
    a('''L_OWAIT:
    s_waitcnt vmcnt(0)
    s_barrier''')
    stamp(a, 9)
    for i in range(8):
        a(f'''s_add_u32 m0, s56, {i * 4096}
        s_nop 0
        buffer_load_dwordx4 v1, {WS_}, s55 offen sc1 lds
        s_add_u32 s55, s55, 4096''')
    for c in range(4):
        a(f'''s_waitcnt vmcnt({6 - 2 * c})
        s_barrier
        ds_read_b128 {vr(FR[0], 4)}, v1 offset:{8 * c * 1024}''')
        for k in range(8 * c, 8 * c + 8):
            if k + 1 < 8 * c + 8:
                a(f'''ds_read_b128 {vr(FR[(k + 1) & 1], 4)}, v1 offset:{(k + 1) * 1024}
                s_waitcnt lgkmcnt(1)''')
            else:
                a('s_waitcnt lgkmcnt(0)')
            a(f'{MFMA} {vr(acc, 16)}, {vr(WO + 4 * k, 4)}, {vr(FR[k & 1], 4)}, {vr(acc, 16)}')
    stamp(a, 10)
    for i in range(8):
        a(f'''v_lshlrev_b32 v{WO + 2 * i}, 16, v{BTM + i}
        v_and_b32 v{WO + 2 * i + 1}, 0xffff0000, v{BTM + i}''')
    for i in range(16):
        a(f'v_fma_f32 v{acc + i}, v{vG}, v{acc + i}, v{WO + i}')
    cvt8(a, BTM, acc)
    a(f'''buffer_store_dwordx4 {vr(BTM, 4)}, v{vOA}, {OUT_}, s57 offen
    buffer_store_dwordx4 {vr(BTM + 4, 4)}, v{vOA}, {OUT_}, s57 offen offset:32''')
    stamp(a, 11)
    stamp_flush(a)
    a('''L_END:
    s_endpgm''')


def kernel(a):
    prologue(a)
    gemm(a)
    attn_loop(a, False)
    a('s_branch L_ATT_X')
    kgen_conv(a)
    attn_loop(a, True)
    attn_tail(a)
    aux(a)


def build():
    here = os.path.dirname(os.path.abspath(__file__))
    ref = open(os.path.join(here, '..', 'cdna_kernels', NAME + '.s.ref')).read().split('\n')
    head = [l for l in ref if l.startswith(';') and 'launch' not in l.lower() and 'lds=0' not in l]
    out = '\n'.join(head) + '\n'
    name = NAME + '_kernel'
    out += f'; @launch grid=(256,1,1) block=(768,1,1) lds={LDS_BYTES}\n'
    out += '.amdgcn_target "amdgcn-amd-amdhsa--gfx950"\n.text\n'
    a = Gen()
    kernel(a)
    bad = a.check_branches()
    if bad:
        for b in bad:
            print('BRANCH HAZARD', b, file=sys.stderr)
        sys.exit(1)
    if ENV('SHOWPAD'):
        for p in a.padded:
            print('pad', p, file=sys.stderr)
    out += f'.globl {name}\n.p2align 8\n.type {name},@function\n{name}:\n' + a.text()
    out += f'''.section .rodata,"a"
.p2align 6
.amdhsa_kernel {name}
  .amdhsa_next_free_vgpr 168
  .amdhsa_next_free_sgpr 100
  .amdhsa_accum_offset 168
  .amdhsa_group_segment_fixed_size 0
  .amdhsa_kernarg_size 112
  .amdhsa_user_sgpr_count 2
  .amdhsa_user_sgpr_kernarg_segment_ptr 1
  .amdhsa_system_sgpr_workgroup_id_x 1
.end_amdhsa_kernel
'''
    return out


if __name__ == '__main__':
    dst = sys.argv[1] if len(sys.argv) > 1 else os.path.join(os.path.dirname(os.path.abspath(__file__)), '..', 'cdna_kernels', NAME + '.s')
    open(dst, 'w').write(build())
    print('wrote', dst)
```

```python
import sys, os, struct
sys.path.insert(0, os.path.dirname(os.path.abspath(__file__)))
from asmlib import Asm, vr, sr

NAME = 'gated_mix__softmax_full_mha__ssm_conv_s4d__prompt'
ENV = os.environ.get
STAMP = bool(ENV('STAMP'))

RSTRIDE = 0x210000
QF, KF, VF, OF, XT, BT, WOF = (0x10000 + i * RSTRIDE for i in range(7))
GG = WOF + 0x80000
FRAGT = True
FS = 0x1100
FX = GG + 0x10000
FQ, FB, FW, FO = FX + 16 * FS, FX + 32 * FS, FX + 36 * FS, FX + 37 * FS
STAMPS = 0xF20000
WS_BYTES = 0x1200000 if STAMP else 0xE00000
TOUCH = int(ENV('TOUCH', 0))

SLOT = 28672
L_XS = 114688
L_CX = 12288
L_T = 122880
L_V = 65536
L_CV = 131072
CVS = 16128
EROW = 144
L_U = 8320
L_SY = L_CV + 2 * CVS
SY_LD, SY_PR, SY_NONCE, SY_FREE, SY_K0, SY_K1, SY_K2 = 0, 16, 32, 36, 40, 48, 56
SY_X, SY_Q, SY_B, SY_W, SY_XOK, SY_QOK, SY_WOK, SY_XS = 64, 68, 72, 76, 80, 84, 88, 96
LDS_BYTES = 163840

LOG2E = 1.4426950408889634
MFMA = 'v_mfma_f32_32x32x16_bf16'
SMF = 'v_smfmac_f32_32x32x32_bf16'
SPIN = 0x40000
SPIN_G = 0x8000

sWV, sX, sW, sWS, sOUT, sRB, sCB, sNON, sR = 3, 32, 36, 40, 44, 48, 49, 50, 10
X_, W_, WS_, OUT_ = (f's[{b}:{b + 3}]' for b in (sX, sW, sWS, sOUT))

KV_G = [int(x) for x in ENV('KVG', '2,10,22').split(',')]
PWIN = int(ENV('PWIN', 4))
CONV_PRIO = int(ENV('CPRIO', 0))
GEMM_PRIO = int(ENV('GPRIO', 1))
ROT = int(ENV('ROT', 3))
PSLEEP = int(ENV('PSLEEP', 4))
DBG = ENV('DBG', '')
OUTF = ENV('OUTF', '')
DRY = int(ENV('DRY', 0))
DEFER = int(ENV('DEFER', 1))
TAIL_PRIO = int(ENV('TPRIO', 2))
RELAY_PRIO = int(ENV('RPRIO', 2))
XPOLL = int(ENV('XPOLL', 8))
RSLEEP = int(ENV('RSLEEP', 2))
LATE_W = int(ENV('LATEW', 1))
TAG_ST = (1, 2, 4)
LOAD_PRIO = int(ENV('LPRIO', 2))
OSLEEP = int(ENV('OSLEEP', 1))
KGEN_PRIO = int(ENV('KPRIO', 2))
CONV_WAIT = int(ENV('CWAIT', 1))
XFLAG_STAGE = int(ENV('XFS', 5))
LAG = int(ENV('LAG', 1))


def f32(x):
    return '0x%08x' % struct.unpack('<I', struct.pack('<f', x))[0]


class Gen(Asm):
    def __init__(self):
        super().__init__()
        self.nlab = 0
        self.deferred = []

    def lab(self, p):
        self.nlab += 1
        return f'{p}_{self.nlab}'


def stamp(a, i, force=False):
    if STAMP and (force or not ('gs' in DBG or 'ks' in DBG or 'ws' in DBG) or i < 5):
        a(f's_mem{"real" if ENV("RT") else ""}time s[{66 + 2 * i}:{67 + 2 * i}]')
        if i == 0:
            a('s_memrealtime s[92:93]')


def stamp_flush(a):
    if STAMP:
        a(f'''s_waitcnt vmcnt(0)
        s_mem{"real" if ENV("RT") else ""}time s[90:91]
        s_memrealtime s[94:95]
        s_lshl_b32 s96, s2, 4
        s_add_u32 s96, s96, s{sWV}
        s_lshl_b32 s96, s96, 6
        s_add_u32 s96, s96, {STAMPS}
        s_mov_b64 exec, 1
        v_mov_b32 v0, 0
        s_waitcnt lgkmcnt(0)''')
        for i in range(15):
            a(f'''v_mov_b32 v1, s{66 + 2 * i}
            buffer_store_dword v1, v0, {WS_}, s96 offen offset:{4 * i}''')


def srd(a, d, base, nbytes):
    a(f'''s_mov_b32 s{d}, s{base}
    s_and_b32 s{d + 1}, s{base + 1}, 0xffff
    s_mov_b32 s{d + 2}, {nbytes:#x}
    s_mov_b32 s{d + 3}, 0x20000''')


def swap23(a, dst, src, t):
    a(f'''v_lshrrev_b32 v{t}, 1, v{src}
    v_xor_b32 v{t}, v{t}, v{src}
    v_and_b32 v{t}, 4, v{t}
    v_mul_u32_u24 v{t}, 3, v{t}
    v_xor_b32 v{dst}, v{t}, v{src}''')


def identity_frags(a, dst, vn, vh, t0, t1, sb=56):
    a(f'''v_and_b32 v{t0}, 1, v{vn}
    v_lshlrev_b32 v{t0}, 4, v{t0}
    v_mov_b32 v{t1}, 0x3f80
    v_lshlrev_b32 v{t0}, v{t0}, v{t1}
    v_lshrrev_b32 v{t1}, 1, v{vn}
    v_lshlrev_b32 v{dst}, 2, v{vh}
    v_sub_u32 v{t1}, v{t1}, v{dst}''')
    for k in range(8):
        a(f'v_cmp_eq_u32 s[{sb + 2 * (k & 3)}:{sb + 1 + 2 * (k & 3)}], {8 * (k >> 2) + (k & 3)}, v{t1}')
        if (k & 3) == 3:
            for j in range(k - 3, k + 1):
                a(f'v_cndmask_b32 v{dst + j}, 0, v{t0}, s[{sb + 2 * (j & 3)}:{sb + 1 + 2 * (j & 3)}]')


def cvt8(a, dst, src, n=8):
    for i in range(n):
        a(f'v_cvt_pk_bf16_f32 v{dst + i}, v{src + 2 * i}, v{src + 2 * i + 1}')


def lds_add(a, off, t0, t1):
    a(f'''v_mov_b32 v{t0}, {L_SY + off}
    v_mov_b32 v{t1}, 1
    s_mov_b64 exec, 1
    ds_add_u32 v{t0}, v{t1}
    s_mov_b64 exec, -1''')


def lds_wait(a, addr, target, t, sleep=False, dst=64):
    l0, l1 = a.lab('LW'), a.lab('LWD')
    a(f'''s_mov_b32 s65, {SPIN}
{l0}:
    ds_read_b32 v{t}, v{addr}
    s_waitcnt lgkmcnt(0)
    v_readfirstlane_b32 s{dst}, v{t}
    s_sub_u32 s65, s65, 1
    s_cbranch_scc1 {l1}''')
    if target is None:
        a(f's_cmp_eq_u32 s{dst}, 0')
    else:
        a(f's_cmp_lt_u32 s{dst}, {target}')
    if sleep:
        a(f'''s_cbranch_scc0 {l1}
        s_sleep {int(sleep)}
        s_branch {l0}''')
    else:
        a(f's_cbranch_scc1 {l0}')
    a(f'{l1}:')


def get_nonce(a, t0, t1):
    a(f'v_mov_b32 v{t0}, {L_SY + SY_NONCE}')
    lds_wait(a, t0, None, t1, sleep=True, dst=sNON)


def flag_wait(a, voff, soff, t, n=1, sleep=None):
    l0, l1 = a.lab('FW'), a.lab('FWD')
    a(f'''s_mov_b32 s65, {SPIN_G}
{l0}:''')
    if n == 1:
        a(f'buffer_load_dword v{t}, v{voff}, {WS_}, s{soff} offen sc1')
    else:
        for i in range(n // 4):
            a(f'buffer_load_dwordx4 {vr(t + 4 * i, 4)}, v{voff}, {WS_}, s{soff} offen offset:{1024 * i} sc1')
    a('s_waitcnt vmcnt(0)')
    for i in range(n):
        a(f'v_xor_b32 v{t + i}, s{sNON}, v{t + i}')
    for i in range(1, n):
        a(f'v_or_b32 v{t}, v{t}, v{t + i}')
    a(f'''v_cmp_ne_u32 vcc, 0, v{t}
    s_sub_u32 s65, s65, 1
    s_cbranch_scc1 {l1}
    s_cmp_eq_u64 vcc, 0
    s_cbranch_scc1 {l1}
    s_sleep {sleep or PSLEEP}
    s_branch {l0}
{l1}:''')


def flag_set(a, soff, t0, t1):
    a(f'''v_mov_b32 v{t0}, 0
    v_mov_b32 v{t1}, s{sNON}
    s_waitcnt vmcnt(0)
    s_mov_b64 exec, 1
    buffer_store_dword v{t1}, v{t0}, {WS_}, s{soff} offen sc1
    s_mov_b64 exec, -1''')


def group_flag_set(a, cnt, soff, t0, t1, n=4):
    l = a.lab('GF')
    a(f'''v_mov_b32 v{t0}, {L_SY + cnt}
    v_mov_b32 v{t1}, 1
    s_waitcnt vmcnt(0)
    s_mov_b64 exec, 1
    ds_add_rtn_u32 v{t1}, v{t0}, v{t1}
    s_waitcnt lgkmcnt(0)
    v_readfirstlane_b32 s64, v{t1}
    v_mov_b32 v{t0}, 0
    v_mov_b32 v{t1}, s{sNON}
    s_cmp_lg_u32 s64, {n - 1}
    s_cbranch_scc1 {l}
    buffer_store_dword v{t1}, v{t0}, {WS_}, s{soff} offen sc1
{l}:
    s_mov_b64 exec, -1''')


def relay_wait(a, leader, ok, polls, t0, t1):
    l0, l1 = a.lab('RL'), a.lab('RLD')
    a(f'''v_mov_b32 v{t0}, {L_SY + ok}
    s_cmp_lg_u32 s{sWV}, {leader}
    s_cbranch_scc1 {l0}''')
    polls()
    a(f'''v_mov_b32 v{t1}, 1
    ds_write_b32 v{t0}, v{t1}
    s_branch {l1}
{l0}:''')
    lds_wait(a, t0, 1, t1, sleep=RSLEEP)
    a(f'{l1}:')


class VM:
    def __init__(self, a):
        self.a, self.q = a, []

    def issue(self, tag, text):
        self.a(text)
        self.q.append(tag)

    def wait(self, *tags):
        last = max(i for i, t in enumerate(self.q) if t in tags)
        self.a(f's_waitcnt vmcnt({len(self.q) - 1 - last})')


def prologue(a):
    a('''s_cmp_ge_u32 s2, 256
    s_cbranch_scc1 L_END''')
    stamp(a, 0)
    a(f'''s_load_dwordx4 s[4:7], s[0:1], 0
    s_load_dwordx2 s[8:9], s[0:1], 16
    s_load_dwordx8 s[12:19], s[0:1], 32
    s_load_dwordx4 s[20:23], s[0:1], 64
    s_load_dwordx2 s[24:25], s[0:1], 80
    s_load_dwordx4 s[28:31], s[0:1], 88
    s_load_dwordx2 s[26:27], s[0:1], 104
    v_lshrrev_b32 v1, 6, v0
    v_and_b32 v0, 63, v0
    v_readfirstlane_b32 s{sWV}, v1
    v_lshlrev_b32 v1, 4, v0
    v_mov_b32 v8, 0
    v_mov_b32 v9, 0
    v_mov_b32 v10, 0
    v_mov_b32 v11, 0
    v_add_u32 v5, {L_SY}, v1
    s_mov_b64 exec, 0xff
    ds_write_b128 v5, v[8:11]
    s_mov_b64 exec, -1
    s_and_b32 s51, s2, 7
    s_lshr_b32 s52, s2, 3
    s_lshr_b32 s{sRB}, s51, 1
    s_lshl_b32 s{sRB}, s{sRB}, 2
    s_and_b32 s53, s52, 3
    s_add_u32 s{sRB}, s{sRB}, s53
    s_and_b32 s{sCB}, s51, 1
    s_lshl_b32 s{sCB}, s{sCB}, 3
    s_lshr_b32 s53, s52, 2
    s_add_u32 s{sCB}, s{sCB}, s53
    s_lshl_b32 s{sR}, s{sRB}, 1
    s_add_u32 s{sR}, s{sR}, s{sCB}
    s_and_b32 s{sR}, s{sR}, 7
    v_and_b32 v2, 31, v0
    v_lshrrev_b32 v3, 5, v0''')
    swap23(a, 4, 2, 5)
    a('''s_waitcnt lgkmcnt(0)
    s_barrier''')
    srd(a, sX, 4, 0x200000)
    srd(a, sWS, 26, WS_BYTES)
    a(f'''s_cmp_ge_u32 s{sWV}, 8
    s_cbranch_scc1 L_AUX
    s_cmp_ge_u32 s{sWV}, 4
    s_cbranch_scc1 L_KGEN''')


def min4_wait(a, addr, f, target, fresh=True, sleep=1):
    l0, l1, l2 = a.lab('MW'), a.lab('MWD'), a.lab('MWC')
    a(f's_mov_b32 s65, {SPIN}')
    if not fresh:
        a(f's_branch {l2}')
    a(f"""{l0}:
    ds_read_b128 {vr(f, 4)}, v{addr}
    s_waitcnt lgkmcnt(0)
{l2}:
    v_min3_u32 v{f}, v{f}, v{f + 1}, v{f + 2}
    v_min_u32 v{f}, v{f}, v{f + 3}
    s_sub_u32 s65, s65, 1
    s_cbranch_scc1 {l1}
    v_readfirstlane_b32 s64, v{f}
    s_cmp_ge_u32 s64, {target}
    s_cbranch_scc1 {l1}
    s_sleep {sleep}
    s_branch {l0}
{l1}:""")


def gemm(a):
    vXR, vWQ, vWV = (8, 14), (12, 18), (13, 19)
    vLD, vPR, vF, vID, vIT, vXS = 20, 21, 24, 160, 28, 29
    accQ, accK, accV, accT = 32, 48, 64, 144
    FR = (80, 96, 112, 128)
    sTT = 51
    if TOUCH:
        a(f"""s_cmp_lg_u32 s{sWV}, 1
        s_cbranch_scc1 L_TOUCH_DONE
        s_mov_b32 s52, {RSTRIDE}
        v_mul_lo_u32 v6, s52, v0
        v_mov_b32 v7, 0
        s_mov_b64 exec, 0x7f
        buffer_load_dword v8, v6, {WS_}, 0 offen
        s_mov_b64 exec, 1
        global_load_dword v9, v7, s[8:9]
        global_load_dword v10, v7, s[24:25]
        global_load_dword v11, v7, s[28:29]
        s_mov_b64 exec, -1
        s_waitcnt vmcnt(0)
L_TOUCH_DONE:""")
    a(f"""
    s_lshl_b32 s{sTT}, s{sRB}, 2
    s_add_u32 s{sTT}, s{sTT}, s{sWV}
    s_lshl_b32 s52, s{sWV}, 12
    s_add_u32 s52, s52, 12288
    v_bfe_u32 v6, v4, 1, 3
    v_xor_b32 v6, v6, v3
    v_lshlrev_b32 v6, 4, v6
    v_lshl_add_u32 v6, v4, 7, v6
    v_add_u32 v{vXR[0]}, s52, v6
    v_xor_b32 v7, 32, v6
    v_add_u32 v{vXR[0] + 1}, s52, v7
    v_xor_b32 v7, 64, v6
    v_add_u32 v{vXR[0] + 2}, s52, v7
    v_xor_b32 v7, 96, v6
    v_add_u32 v{vXR[0] + 3}, s52, v7
    v_bfe_u32 v6, v0, 2, 2
    v_lshl_add_u32 v6, v3, 3, v6
    v_lshlrev_b32 v6, 6, v6
    v_bfe_u32 v7, v0, 4, 1
    v_lshl_add_u32 v6, v7, 5, v6
    v_and_b32 v7, 3, v0
    v_lshl_add_u32 v{vWV[0]}, v7, 3, v6
    v_bfrev_b32 v7, v7
    v_lshrrev_b32 v7, 30, v7
    v_lshl_add_u32 v{vWQ[0]}, v7, 3, v6
    v_mov_b32 v{vLD}, {L_SY + SY_LD}
    s_lshl_b32 s52, s{sWV}, 2
    s_add_u32 s52, s52, {L_SY + SY_PR}
    v_mov_b32 v{vPR}, s52""")
    for i in range(6):
        a(f'v_add_u32 v{vXR[1] + i}, {2 * SLOT}, v{vXR[0] + i}')
    identity_frags(a, vID, 2, 3, 6, 7)
    a(f"""s_lshr_b32 s53, s{sCB}, 3
    s_lshl_b32 s56, s{sRB}, 2
    s_mul_i32 s57, s{sCB}, {FS}
    s_add_u32 s56, s56, s57
    s_add_u32 s56, s56, {FQ}
    s_lshl_b32 s57, s{sWV}, 11
    s_add_u32 s57, s57, {L_XS}
    v_add_u32 v{vXS}, s57, v1""")

    sIT, sTG, sXP = 57, 58, 59
    slow = []

    def rd(st, k, part):
        f = FR[k]
        hi, o = (st & 3) >> 1, (st & 1) * SLOT
        L = []
        if part == 0:
            L.append(f'ds_read_b128 {vr(f, 4)}, v{vXR[hi] + k} offset:{o}')
        seg = (1, 2, 0)[part]
        base = vWV[hi] if seg == 2 else vWQ[hi]
        off = o + k * 3072 + seg * 1024
        L.append(f'ds_read_b64_tr_b16 {vr(f + 4 + 4 * seg, 2)}, v{base} offset:{off}')
        L.append(f'ds_read_b64_tr_b16 {vr(f + 6 + 4 * seg, 2)}, v{base} offset:{off + 256}')
        return '\n'.join(L)

    def stage(st):
        for k in range(4):
            f = FR[k]
            fill = ['', '', '']
            a(f's_waitcnt lgkmcnt({8 if k == 0 else 7})')
            if k == 0:
                fill[0] = f'ds_read_b128 {vr(vF, 4)}, v{vLD}'
                fill[2] = f's_add_u32 s{sTG}, s{sIT}, {st + 2}\ns_min_u32 s{sTG}, s{sTG}, s63'
            if k == 1:
                lb, ls = a.lab('GB'), a.lab('GSL')
                fill[0] = f'v_min3_u32 v{vF}, v{vF}, v{vF + 1}, v{vF + 2}\nv_min_u32 v{vF}, v{vF}, v{vF + 3}'
                fill[1] = f'v_readfirstlane_b32 s64, v{vF}\nv_add_u32 v6, {st + 1}, v{vIT}'
                fill[2] = f's_cmp_lt_u32 s64, s{sTG}\ns_cbranch_scc1 {ls}\n{lb}:'
                slow.append((ls, lb))
            if k == 3:
                fill[0] = f'ds_write_b32 v{vPR}, v6'
            if st == 0:
                l = a.lab('XT')
                cin = '0' if (k & 1) == 0 else vr(accT, 16)
                a(f"""s_cmp_lg_u32 s{sXP}, {k >> 1}
                s_cbranch_scc1 {l}
                {MFMA} {vr(accT, 16)}, {vr(f, 4)}, {vr(vID + 4 * (k & 1), 4)}, {cin}
{l}:""")
            n, ns = (k + 2) & 3, st + (k >> 1)
            mf = [f'{MFMA} {vr(accK, 16)}, {vr(f + 8, 4)}, {vr(f, 4)}, {vr(accK, 16)}',
                  f'{MFMA} {vr(accV, 16)}, {vr(f, 4)}, {vr(f + 12, 4)}, {vr(accV, 16)}',
                  f'{MFMA} {vr(accQ, 16)}, {vr(f + 4, 4)}, {vr(f, 4)}, {vr(accQ, 16)}']
            for p in range(3):
                a(mf[p])
                if k in (0, 3) and p == 0:
                    a(fill[p])
                    a(rd(ns, n, p))
                else:
                    a(rd(ns, n, p))
                    a(fill[p])

    if DRY:
        a(f"""s_mov_b32 s{sIT}, 8
        s_mov_b32 s63, 0
        s_mov_b32 s{sXP}, 2
        s_mov_b64 exec, 0
        s_branch L_GS
L_GS_GO:
        s_mov_b64 exec, -1
        s_waitcnt lgkmcnt(0)
        s_nop 7""")
    for i in range(48):
        a(f'v_mov_b32 v{accQ + i}, 0')
    stamp(a, 1)
    a(f's_setprio {GEMM_PRIO}')
    min4_wait(a, vLD, vF, 1)
    stamp(a, 2)
    a(f"""s_mov_b32 s{sIT}, 0
    s_mov_b32 s63, 8
    v_mov_b32 v{vIT}, 0
    s_mov_b32 s{sXP}, s53""")
    for k in range(2):
        for p in range(3):
            a(rd(0, k, p))
    a(f"""ds_write_b32 v{vPR}, v{vIT}
L_GS:""")
    for st in range(4):
        stage(st)
        if st == 0:
            a(f"""s_cmp_lg_u32 s{sIT}, 0
            s_cbranch_scc0 L_GS_XT
L_GS_XTB:""")
    a(f"""s_add_u32 s{sIT}, s{sIT}, 4
    v_mov_b32 v{vIT}, 4
    s_mov_b32 s{sXP}, 2
    s_cmp_lt_u32 s{sIT}, 8
    s_cbranch_scc1 L_GS""")
    if DRY:
        a(f"""s_cmp_eq_u32 s{sIT}, 12
        s_cbranch_scc1 L_GS_GO""")

    def out_of_line():
        for ls, lb in slow:
            a(f'{ls}:')
            min4_wait(a, vLD, vF, f's{sTG}')
            a(f's_branch {lb}')
        a('L_GS_XT:')
        cvt8(a, vID, accT)
        a(f"""ds_write_b128 v{vXS}, {vr(vID, 4)}
        ds_write_b128 v{vXS}, {vr(vID + 4, 4)} offset:1024
        ds_write_b32 v{vPR}, v{vPR} offset:{SY_XS - SY_PR}""")
        stamp(a, 5)
        a('s_branch L_GS_XTB')

    a.deferred.append(out_of_line)
    lds_add(a, SY_FREE, 6, 7)
    a('s_waitcnt lgkmcnt(0)')
    stamp(a, 3)
    a(f"""v_lshl_add_u32 v6, v3, 5, v4
    v_lshlrev_b32 v6, 4, v6
    v_lshrrev_b32 v7, 4, v2
    v_lshlrev_b32 v7, 16, v7
    v_lshl_add_u32 v7, v3, 8, v7
    v_and_b32 v8, 15, v2
    v_lshl_add_u32 v7, v8, 4, v7
    s_lshl_b32 s57, s{sCB}, 17
    s_lshl_b32 s58, s{sTT}, 10
    s_add_u32 s57, s57, s58
    s_add_u32 s59, s57, {KF}
    s_add_u32 s60, s59, 0x10000
    s_add_u32 s61, s57, {VF}
    s_add_u32 s57, s57, {QF}
    s_add_u32 s58, s57, 0x10000
    s_mov_b32 s62, {f32(0.25 * LOG2E)}""")
    cvt8(a, 88, accK)
    a(f"""buffer_store_dwordx4 v[88:91], v6, {WS_}, s59 offen sc1
    buffer_store_dwordx4 v[92:95], v6, {WS_}, s60 offen sc1""")
    cvt8(a, 96, accV)
    a(f"""buffer_store_dwordx4 v[96:99], v7, {WS_}, s61 offen sc1
    buffer_store_dwordx4 v[100:103], v7, {WS_}, s61 offen offset:512 sc1""")
    for i in range(16):
        a(f'v_mul_f32 v{accQ + i}, s62, v{accQ + i}')
    cvt8(a, 80, accQ)
    a(f"""buffer_store_dwordx4 v[80:83], v6, {WS_}, s57 offen sc1
    buffer_store_dwordx4 v[84:87], v6, {WS_}, s58 offen sc1""")
    get_nonce(a, 8, 9)
    group_flag_set(a, SY_Q, 56, 8, 9)
    stamp(a, 4)
    a('s_setprio 0')


CK, CG, CXW, CXR = 136, 152, 132, 133


def cexp(a, dst, lr, li, tau, t, conj=False):
    return [
        [f'v_mul_f32 v{t}, v{lr}, {tau}', f'v_mul_f32 v{t + 1}, v{li}, {tau}'],
        [f'v_exp_f32 v{t}, v{t}', f'v_fract_f32 v{t + 1}, v{t + 1}'],
        [f'v_cos_f32 v{dst}, v{t + 1}', f'v_sin_f32 v{dst + 1}, v{t + 1}'],
        [f'v_mul_f32 v{dst}, v{t}, v{dst}', f'v_mul_f32 v{dst + 1}, {"-" if conj else ""}v{t}, v{dst + 1}'],
    ]


def cmul(dst, x, s, t):
    return [f'v_pk_mul_f32 {vr(t, 2)}, {vr(x, 2)}, {vr(s, 2)} op_sel:[0,0] op_sel_hi:[0,1]',
            f'v_pk_fma_f32 {vr(dst, 2)}, {vr(x, 2)}, {vr(s, 2)}, {vr(t, 2)} op_sel:[1,1,0] op_sel_hi:[1,0,1] neg_lo:[1,0,0]']


def kgen_conv(a):
    sCI, sMH, sCH, sRG, sE, sT = 51, 52, 53, 54, 55, 56
    P = (8, 12)
    vTS, vTX, vTY, vTB = 16, 17, 18, 19
    vEX, vEY, vEB, vRA = 20, 21, 162, 23
    vSC = 24
    vGA = 144
    acc = 48
    SG, SY2, XV, YV, BV, BS = 64, 66, 68, 70, 72, 74
    t0 = 76
    a(f'''L_KGEN:
    s_setprio 2
    s_bfe_u32 s{sCI}, s{sWV}, 0x10001
    s_and_b32 s{sMH}, s{sWV}, 1
    s_and_b32 s{sCH}, s2, 7
    s_lshl_b32 s{sCH}, s{sCH}, 5
    s_lshr_b32 s57, s2, 3
    s_add_u32 s{sCH}, s{sCH}, s57
    s_lshl_b32 s59, s{sCH}, 2
    s_lshl_b32 s{sCH}, s{sCH}, 1
    s_add_u32 s{sCH}, s{sCH}, s{sCI}
    s_lshl_b32 s57, s{sCH}, 8
    s_lshl_b32 s58, s{sMH}, 7
    s_add_u32 s57, s57, s58
    v_lshl_add_u32 v6, v0, 1, s57
    global_load_ushort v8, v6, s[12:13]
    global_load_ushort v9, v6, s[14:15]
    global_load_ushort v10, v6, s[16:17]
    global_load_ushort v11, v6, s[18:19]
    s_load_dword s62, s[20:21], s59
    s_load_dword s63, s[22:23], s59''')
    a(f'''s_setprio {KGEN_PRIO}
    s_mul_i32 s{sRG}, s{sCI}, {CVS}
    s_add_u32 s{sRG}, s{sRG}, {L_CV}
    s_mul_i32 s{sE}, s{sMH}, {CVS // 2}
    s_add_u32 s{sE}, s{sE}, s{sRG}
    s_mul_i32 s{sT}, s{sCI}, 2688
    s_add_u32 s{sT}, s{sT}, {L_T}
    s_mov_b32 s60, 0
    s_mov_b32 s61, -1
    v_mov_b32 v6, {f32(256.0)}
    v_cndmask_b32 v{vTS}, 1.0, v6, s[60:61]
    v_mov_b32 v7, {f32(516.0)}
    v_cndmask_b32 v{vTY}, v6, v7, s[60:61]
    v_cvt_f32_u32 v6, v3
    v_mul_f32 v{vTX}, {f32(512.0)}, v6
    v_mul_f32 v{vTB}, {f32(128.0)}, v6
    v_lshl_add_u32 v6, v2, 2, s{sE}
    v_mul_u32_u24 v7, {4 * EROW}, v3
    v_lshl_add_u32 v{vEX}, v7, 1, v6
    v_add_u32 v{vEY}, v7, v6
    v_add_u32 v{vEY}, {16 * EROW}, v{vEY}
    v_lshl_add_u32 v{vEB}, v7, 2, v6
    v_add_u32 v{vEB + 1}, {32 * EROW}, v{vEB}
    v_add_u32 v{vEB}, {24 * EROW}, v{vEB}
    v_mul_u32_u24 v6, {EROW}, v2
    v_lshl_add_u32 v6, v3, 4, v6
    v_add_u32 v{vRA}, s{sE}, v6''')
    a(f'''v_lshlrev_b32 v6, 3, v2
    v_lshl_add_u32 v6, v3, 2, v6
    v_lshl_add_u32 v{vSC}, v6, 2, s{sT}
    v_lshlrev_b32 v6, 1, v2
    v_add_u32 v7, 384, v6
    v_add_u32 v{t0}, 576, v2
    v_cndmask_b32 v7, v7, v{t0}, s[60:61]
    v_lshl_add_u32 v{vSC + 1}, v7, 2, s{sT}
    v_cndmask_b32 v7, 64, 32, s[60:61]
    v_lshl_add_u32 v{vSC + 2}, v7, 2, v{vSC + 1}
    v_lshl_add_u32 v7, v3, 7, v2
    v_add_u32 v7, 512, v7
    v_lshl_add_u32 v{vSC + 3}, v7, 2, s{sT}
    v_add_u32 v6, 385, v6
    v_lshlrev_b32 v7, 2, v2
    v_add_u32 v7, 256, v7
    v_cndmask_b32 v7, v7, v6, s[60:61]
    v_lshl_add_u32 v{vSC + 4}, v7, 2, s{sT}''')
    a(f's_sub_u32 s57, s{sT}, {0x4280 * 4}')
    for r in range(2):
        a(f'''s_lshl_b32 s58, s{sMH}, 10
        s_sub_u32 s58, {2047 - 512 * r}, s58
        v_lshlrev_b32 v6, 3, v0
        v_sub_u32 v{t0}, s58, v6
        v_cvt_f32_u32 v{t0 + 1}, v{t0}''')
        for e in range(1, 9):
            a(f'v_add_f32 v{t0 + 1 + e}, {f32(-float(e))}, v{t0 + 1}')
        a(f'v_max_f32 v{t0 + 9}, 0, v{t0 + 9}')
        for e in range(0, 9, 2):
            g = vGA + 9 * r + e
            a(f'''v_cvt_pk_bf16_f32 v6, v{t0 + 1 + e}, v{t0 + 2 + e}
            v_and_b32 v7, 0xffff, v6
            v_lshl_add_u32 v{g}, v7, 2, s57''')
            if e < 8:
                a(f'''v_lshrrev_b32 v6, 16, v6
                v_lshl_add_u32 v{g + 1}, v6, 2, s57''')
        if r == 1:
            for e in range(9):
                a(f'v_subrev_u32 v6, {e}, v{t0}')
                if e == 8:
                    a('v_max_i32 v6, 0, v6')
                a(f'''v_min_u32 v6, 0x80, v6
                v_lshl_add_u32 v6, v6, 2, s{sT}
                v_max_i32 v{vGA + 9 + e}, v{vGA + 9 + e}, v6''')
    vA, vB, vA2 = 129, 130, 131
    a(f'''v_and_b32 v7, 1, v4
    v_cmp_eq_u32 vcc, 0, v7
    v_mov_b32 v7, 4158
    v_lshlrev_b32 v6, 1, v4
    v_cndmask_b32 v7, 0, v7, vcc
    v_sub_u32 v7, v7, v6
    v_lshl_add_u32 v7, v3, 4, v7
    v_add_u32 v7, {4094 - 32 * 6}, v7
    s_lshl_b32 s57, s{sMH}, 10
    s_sub_u32 s57, s{sRG}, s57
    v_add_u32 v{vA}, s57, v7
    v_subrev_u32 v{vA2}, 2048, v{vA}
    v_mul_u32_u24 v7, 96, v3
    v_add_u32 v7, v7, v2
    s_lshl_b32 s57, s{sMH}, 8
    s_sub_u32 s57, s{sRG}, s57
    s_add_u32 s57, s57, {L_U + (32 - 3) * 16}
    v_lshl_add_u32 v{vB}, v7, 4, s57''')
    for i in range(16):
        a(f'v_mov_b32 v{acc + i}, 0')
    stamp(a, 1)
    a(f'''s_waitcnt vmcnt(0) lgkmcnt(0)
    s_lshl_b32 s58, s{sCI}, 4
    s_lshr_b32 s62, s62, s58
    s_lshl_b32 s62, s62, 16
    s_lshr_b32 s63, s63, s58
    s_lshl_b32 s63, s63, 16
    s_mov_b32 s59, {f32(LOG2E)}
    v_mov_b32 v6, s62
    v_mul_f32 v6, s59, v6
    v_lshlrev_b32 v8, 16, v8
    v_mul_f32 v8, s59, v8
    v_exp_f32 v6, v6
    v_exp_f32 v8, v8
    v_lshlrev_b32 v9, 16, v9
    v_lshlrev_b32 v10, 16, v10
    v_cvt_pk_bf16_f32 v6, v6, v8
    v_and_b32 v8, 0xffff0000, v6
    v_lshlrev_b32 v6, 16, v6
    v_mul_f32 v8, v8, v6
    v_mul_f32 v8, {f32(-LOG2E)}, v8
    v_mul_f32 v9, v9, v6
    v_mul_f32 v9, 0.15915494, v9
    v_add_f32 v6, v6, v6
    v_lshlrev_b32 v11, 16, v11
    v_mul_f32 v10, v10, v6
    v_mul_f32 v11, -v11, v6
    v_mov_b32 v12, v8
    v_mov_b32 v13, v9
    v_mov_b32 v14, v10
    v_mov_b32 v15, v11
    s_mov_b32 s59, {f32(8.0)}
    v_permlane32_swap_b32 v8, v12
    v_permlane32_swap_b32 v9, v13
    v_permlane32_swap_b32 v10, v14
    v_permlane32_swap_b32 v11, v15''')
    stamp(a, 2)
    if 'park' in DBG:
        a(f'v_mov_b32 v6, {L_SY + SY_FREE}')
        lds_wait(a, 6, 4, 7, sleep=True)
    FA, FBf = 96, 112
    a('''s_mov_b32 s62, 2
L_KP:''')
    if 'kp' in DBG:
        stamp(a, 1)
    for ps in range(1):
        p = P[ps]
        ev = [cexp(a, SG, p, p + 1, f'v{vTS}', t0, True), cexp(a, XV, p, p + 1, f'v{vTX}', t0 + 2, True),
              cexp(a, YV, p, p + 1, f'v{vTY}', t0 + 4, True), cexp(a, BV, p, p + 1, f'v{vTB}', t0 + 6),
              cexp(a, BS, p, p + 1, 's59', t0 + 8)]
        for st in range(4):
            for e in ev:
                for l in e[st]:
                    if ', s59' in l:
                        l = l.replace(f'v{p}, s59', f's59, v{p}').replace(f'v{p + 1}, s59', f's59, v{p + 1}')
                    a(l)
        m = [cmul(XV, XV, p + 2, t0), cmul(YV, YV, p + 2, t0 + 2), cmul(SY2, SG, SG, t0 + 4)]
        for st in range(2):
            for e in m:
                a(e[st])
        a(f'''v_cndmask_b32 v{SY2}, v{SY2}, v{SG}, s[60:61]
        v_cndmask_b32 v{SY2 + 1}, v{SY2 + 1}, v{SG + 1}, s[60:61]''')
        for k in range(16):
            ch = [(BV, BS, vEB + (k >> 3), k & 7, k < 15, 0)]
            if k < 8:
                ch.append((XV, SG, vEX, k, k < 7, 1))
            elif k < 12:
                ch.append((YV, SY2, vEY, k - 8, k < 11, 1))
            for v, s, ad, row, more, j in ch:
                a(f'v_cvt_pk_bf16_f32 v{t0 + 10 + 4 * j + (k & 3)}, v{v}, v{v + 1}')
                if more:
                    a(cmul(v, v, s, t0 + 2 * j)[0])
            for v, s, ad, row, more, j in ch:
                if more:
                    a(cmul(v, v, s, t0 + 2 * j)[1])
                if k & 1:
                    r = t0 + 10 + 4 * j + (k & 3)
                    a(f'ds_write2_b32 v{ad}, v{r - 1}, v{r} offset0:{(row - 1) * EROW // 4} offset1:{row * EROW // 4}')
        a('s_waitcnt lgkmcnt(0)')
        for q in range(4):
            a(f'''ds_read_b128 {vr(FA + 4 * q, 4)}, v{vRA} offset:{q * 32}
            ds_read_b128 {vr(FBf + 4 * q, 4)}, v{vRA} offset:{24 * EROW + q * 32}''')
        for i in range(4):
            a(f'v_mov_b32 v{P[0] + i}, v{P[1] + i}')
        a('''s_sub_u32 s62, s62, 1
        s_cmp_lg_u32 s62, 0''')
        for q in range(4):
            a(f'''s_waitcnt lgkmcnt({6 - 2 * q})
            {MFMA} {vr(acc, 16)}, {vr(FA + 4 * q, 4)}, {vr(FBf + 4 * q, 4)}, {vr(acc, 16)}''')
        a('s_cbranch_scc1 L_KP')
    stamp(a, 3)

    a(f'''s_lshl_b32 s57, s{sCI}, 2
    v_mov_b32 v134, {L_SY + SY_K0}
    v_add_u32 v134, s57, v134
    s_add_u32 s57, s{sRG}, {CVS // 2}
    v_add_u32 v23, s57, v1
    s_cmp_eq_u32 s{sMH}, 0
    s_cbranch_scc1 L_KSUM''')
    for i in range(3):
        a(f'ds_write_b128 v23, {vr(acc + 4 * i, 4)} offset:{i * 1024}')
    a(f"""v_mov_b32 v7, 1
    s_waitcnt lgkmcnt(0)
    s_mov_b64 exec, 1
    ds_add_u32 v134, v7
    s_mov_b64 exec, -1
    v_mov_b32 v25, {L_SY + SY_XS}
    s_lshl_b32 s57, s{sCI}, 4
    v_bfe_u32 v6, v0, 2, 3
    v_add_u32 v6, s57, v6
    v_and_b32 v7, 3, v0
    v_lshl_add_u32 v143, v3, 5, v6
    v_lshlrev_b32 v143, 4, v143
    v_lshl_add_u32 v143, v7, 11, v143
    v_add_u32 v143, {L_XS}, v143
    v_lshlrev_b32 v6, 12, v6
    v_lshl_add_u32 v6, v3, 10, v6
    v_lshl_add_u32 v132, v7, 4, v6
    s_lshr_b32 s59, s{sCB}, 3
    s_lshl_b32 s62, s{sR}, 1
    s_add_u32 s62, s62, s59
    s_lshl_b32 s58, s62, 17
    s_lshl_b32 s59, s{sRB}, 6
    s_add_u32 s58, s58, s59
    s_add_u32 s58, s58, {XT}
    s_mul_i32 s62, s62, {FS}
    s_lshl_b32 s59, s{sRB}, 2
    s_add_u32 s62, s62, s59
    s_add_u32 s11, s62, {FX}
    s_add_u32 s59, s58, 32768
    s_setprio 0""")
    min4_wait(a, 25, 136, 1)
    if 'ks' in DBG:
        stamp(a, 5, True)
    a(f's_setprio {RELAY_PRIO}')
    for i in range(4):
        a(f'ds_read_b128 {vr(96 + 4 * i, 4)}, v143 offset:{(i & 1) * 1024 + (i >> 1) * 128}')
    for i in range(4):
        a(f"""s_waitcnt lgkmcnt({3 - i})
        buffer_store_dwordx4 {vr(96 + 4 * i, 4)}, v132, {WS_}, s{58 + (i >> 1)} offen offset:{(i & 1) * 2048} sc1""")
    a('s_setprio 0')
    if 'ks' in DBG:
        stamp(a, 6, True)
    get_nonce(a, 6, 7)
    group_flag_set(a, SY_X, 11, 6, 7, 2)
    if 'ks' in DBG:
        stamp(a, 8, True)
    a('''s_branch L_KSIG
L_KSUM:''')
    lds_wait(a, 134, 1, 6, sleep=True)
    for i in range(3):
        a(f'ds_read_b128 {vr(FA + 4 * i, 4)}, v23 offset:{i * 1024}')
    a('s_waitcnt lgkmcnt(0)')
    for i in range(12):
        a(f'v_add_f32 v{acc + i}, v{acc + i}, v{FA + i}')
    a(f'''ds_write_b128 v{vSC}, {vr(acc, 4)}
    ds_write_b32 v{vSC + 1}, v{acc + 4}
    ds_write_b32 v{vSC + 2}, v{acc + 5}
    ds_write_b32 v{vSC + 3}, v{acc + 6}
    s_mov_b32 exec_hi, 0
    ds_write_b32 v{vSC + 3}, v{acc + 7} offset:128
    ds_write_b128 v{vSC + 4}, {vr(acc + 8, 4)}
    s_not_b64 exec, exec
    ds_write2st64_b32 v{vSC + 4}, v{acc + 8}, v{acc + 9} offset0:0 offset1:1
    s_mov_b64 exec, -1
    v_mov_b32 v7, 1
    s_waitcnt lgkmcnt(0)
    s_mov_b64 exec, 1
    ds_add_u32 v134, v7
    s_mov_b64 exec, -1
L_KSIG:
    ''')
    if 'ks' in DBG:
        stamp(a, 7, True)
    get_nonce(a, 6, 7)
    lds_wait(a, 134, 2, 6, sleep=True)
    if 'ks' in DBG:
        stamp(a, 9, True)
    a(f"""s_setprio 0
    s_lshr_b32 s57, s{sCH}, 5
    s_mul_i32 s57, s57, {FS}
    s_add_u32 s57, s57, {FX}
    v_and_b32 v132, 15, v0
    v_lshlrev_b32 v132, 2, v132""")

    def gather():
        G0 = 96
        for k in range(18):
            a(f'ds_read_b32 v{G0 + k}, v{vGA + k}')
            if k == 8:
                a('s_waitcnt lgkmcnt(4)')
        a(f'''v_lshl_add_u32 v7, v0, 1, s{sMH}
        v_cmp_eq_u32 vcc, 0x7f, v7
        v_mov_b32 v6, s63
        s_lshl_b32 s57, s{sMH}, 11
        s_add_u32 s57, s57, s{sRG}
        v_cndmask_b32 v6, 0, v6, vcc
        v_add_u32 v135, s57, v1
        s_waitcnt lgkmcnt(0)
        v_add_f32 v{G0 + 16}, v{G0 + 16}, v6
        v_cndmask_b32 v{G0 + 17}, v{G0 + 17}, 0, vcc''')
        lds_add(a, SY_FREE, 6, 7)
        for r in range(2):
            for c in range(2):
                d = 32 + 8 * r + 4 * c
                for i in range(4):
                    a(f'v_cvt_pk_bf16_f32 v{d + i}, v{G0 + 9 * r + c + 2 * i}, v{G0 + 9 * r + c + 2 * i + 1}')
                a(f'ds_write_b128 v135, {vr(d, 4)} offset:{r * 1024 + c * 4160}')
        for i in range(16):
            a(f'v_mov_b32 v{acc + i}, 0')
        a(f'''v_bfe_u32 v6, v0, 2, 1
        v_mul_u32_u24 v6, {4160 - 64}, v6
        v_add_u32 v6, v6, v1
        v_add_u32 v6, s{sRG}, v6
        s_mov_b64 exec, 0xff
        ds_write_b128 v6, {vr(acc, 4)} offset:4096
        s_mov_b64 exec, -1
        v_mul_u32_u24 v6, 96, v3
        v_add_u32 v6, v6, v2
        s_mul_i32 s58, s{sMH}, 3072
        s_add_u32 s58, s58, s{sRG}
        v_lshl_add_u32 v6, v6, 4, s58
        ds_write_b128 v6, {vr(acc, 4)} offset:{L_U}
        ''')
        if 'ks' in DBG:
            stamp(a, 10, True)
    attn_setup(a)

    def poll_x():
        a(f'v_mov_b32 v133, {L_SY + SY_LD}')
        min4_wait(a, 133, 136, XPOLL, sleep=4)
        flag_wait(a, 132, 57, 7)

    relay_wait(a, 4, SY_XOK, poll_x, 6, 7)
    stamp(a, 4)
    a(f"""s_lshl_b32 s62, s{sCH}, 12
    s_lshl_b32 s58, s{sMH}, 11
    s_add_u32 s62, s62, s58
    s_add_u32 s62, s62, {XT}
    s_mul_i32 s58, s{sMH}, 3072
    s_add_u32 s58, s58, s{sRG}
    s_add_u32 m0, s58, {L_U + 512}
    s_nop 0
    buffer_load_dwordx4 v1, {WS_}, s62 offen sc1 lds
    s_add_u32 m0, s58, {L_U + 1024}
    s_nop 0
    buffer_load_dwordx4 v1, {WS_}, s62 offen offset:1024 sc1 lds""")
    if DEFER:
        a(f'v_mov_b32 v6, {L_SY + SY_FREE}')
        lds_wait(a, 6, 4, 7, sleep=True)
        a(f's_setprio {TAIL_PRIO}')
        gather()
    a(f'''v_add_u32 v134, {SY_K1 - SY_K0}, v134
    v_mov_b32 v7, 1
    s_waitcnt vmcnt(0) lgkmcnt(0)
    s_mov_b64 exec, 1
    ds_add_u32 v134, v7
    s_mov_b64 exec, -1''')
    lds_wait(a, 134, 2, 6, sleep=True)
    stamp(a, 5)
    CF = (32, 48, 96, 112)
    for i in range(32):
        a(f'v_mov_b32 v{CK + i}, 0')
    if CONV_WAIT:
        a(f'v_mov_b32 v6, {L_SY + SY_FREE}')
        lds_wait(a, 6, 8, 7, sleep=True)
    a(f"""s_mov_b32 s59, 4
    s_setprio {CONV_PRIO}""")

    def cread(k, part):
        f = CF[k & 3]
        k &= 7
        oa = (7 - k) * 8
        ob = (3 - (k >> 1)) * 16 + (3072 if (k & 1) == 0 else 0)
        if part == 0:
            a(f"""ds_read2_b32 {vr(f, 2)}, v{vA} offset0:{oa} offset1:{oa + 1}
            ds_read2_b32 {vr(f + 2, 2)}, v{vA} offset0:{oa + 2} offset1:{oa + 3}""")
        elif part == 1:
            a(f"""ds_read_b128 {vr(f + 4, 4)}, v{vB} offset:{ob}
            ds_read_b128 {vr(f + 8, 4)}, v{vB} offset:{ob + 512}""")
        else:
            a(f"""ds_read2_b32 {vr(f + 12, 2)}, v{vA2} offset0:{oa} offset1:{oa + 1}
            ds_read2_b32 {vr(f + 14, 2)}, v{vA2} offset0:{oa + 2} offset1:{oa + 3}""")

    a(f"""s_cmp_eq_u32 s{sMH}, 0
    s_cbranch_scc1 L_CV0""")
    for mh in (1, 0):
        acc, ac1 = (CK, CG) if mh == 0 else (CG, CK)
        if mh == 0:
            a('L_CV0:')
        for k in range(2):
            for p in range(3):
                cread(k, p)
        a(f'L_CL{mh}:')
        if 'kp' in DBG:
            stamp(a, 4)
        for k in range(8):
            f = CF[k & 3]
            a(f"""s_waitcnt lgkmcnt(6)
            {MFMA} {vr(acc, 16)}, {vr(f, 4)}, {vr(f + 4, 4)}, {vr(acc, 16)}""")
            cread(k + 2, 0)
            if k == 5:
                a(f'v_subrev_u32 v{vA}, 256, v{vA}')
            a(f'{MFMA} {vr(ac1, 16)}, {vr(f, 4)}, {vr(f + 8, 4)}, {vr(ac1, 16)}')
            cread(k + 2, 1)
            if k == 5:
                a(f'v_subrev_u32 v{vB}, 64, v{vB}')
            a(f'{MFMA} {vr(ac1, 16)}, {vr(f + 12, 4)}, {vr(f + 4, 4)}, {vr(ac1, 16)}')
            cread(k + 2, 2)
            if k == 5:
                a(f"""v_subrev_u32 v{vA2}, 256, v{vA2}
                s_sub_u32 s59, s59, 1
                s_cmp_lg_u32 s59, 0""")
        a(f's_cbranch_scc1 L_CL{mh}')
        if mh == 1:
            a('s_branch L_CV1')
    a('L_CV1:')
    a(f"""s_setprio 0
    s_and_b32 s57, s{sWV}, 3
    s_lshl_b32 s57, s57, 12
    s_add_u32 s58, s57, {L_CV}
    v_add_u32 v{CXW}, s58, v1
    s_xor_b32 s57, s57, 4096
    s_add_u32 s58, s57, {L_CV}
    v_add_u32 v{CXR}, s58, v1
    s_lshl_b32 s62, s{sCH}, 12
    s_lshl_b32 s58, s{sMH}, 11
    s_add_u32 s62, s62, s58
    s_add_u32 s62, s62, {BT}
    s_waitcnt lgkmcnt(0)""")
    stamp(a, 6)


Q, Kf, V1 = (4, 8), 12, 16
V0 = (20, 24)
vIX, vK, vV = 28, 29, 30
S = (32, 48)
O, M = (64, 80), (96, 112)
T0 = 128
sQT, sKH, sH = 20, 21, 22


def rowmax(a, src, dst):
    a(f'v_max3_f32 v{dst}, v{src}, v{src + 1}, v{src + 2}')
    for i in range(3, 15, 2):
        a(f'v_max3_f32 v{dst}, v{dst}, v{src + i}, v{src + i + 1}')
    a(f'v_max_f32 v{dst}, v{dst}, v{src + 15}')


def set_m(a, mx, t, m):
    a(f'''v_mov_b32 v{t}, v{mx}
    v_permlane32_swap_b32 v{mx}, v{t}
    v_max_f32 v{mx}, v{mx}, v{t}
    v_sub_f32 v{m}, 0, v{mx}''')
    for i in range(1, 16):
        a(f'v_mov_b32 v{m + i}, v{m}')


def attn_setup(a):
    a(f'''s_and_b32 s{sH}, s2, 31
    s_lshr_b32 s{sQT}, s2, 5
    s_lshl_b32 s{sQT}, s{sQT}, 2
    s_and_b32 s23, s{sWV}, 3
    s_add_u32 s{sQT}, s{sQT}, s23
    s_lshl_b32 s{sQT}, s{sQT}, 1
    s_lshr_b32 s{sKH}, s{sWV}, 2
    s_lshl_b32 s24, s{sKH}, 15
    s_lshl_b32 s23, s23, 11
    s_add_u32 s23, s23, {L_T}
    v_mov_b32 v{vIX}, 0xdddd
    v_add_u32 v{vK}, s24, v1
    v_and_b32 v{T0}, 15, v2
    v_lshlrev_b32 v{T0}, 4, v{T0}
    v_lshl_add_u32 v{T0}, v3, 8, v{T0}
    s_add_u32 s24, s24, {L_V}
    v_add_u32 v{vV}, s24, v{T0}
    v_cmp_eq_u32 vcc, 16, v2
    v_mov_b32 v{T0}, 0x3f803f80
    s_mov_b32 s12, 0xffff
    s_mov_b32 s13, 0xffff
    v_cndmask_b32 v{V1}, 0, v{T0}, vcc
    v_add_u32 v{T0}, s23, v1''')
    for i in range(1, 12):
        a(f'v_mov_b32 v{V1 + i}, v{V1}')
    for i in range(32):
        a(f'v_mov_b32 v{O[0] + i}, 0')


def attn_loop(a, young):
    if not young:
        attn_setup(a)
    stamp(a, 7)
    a(f'''s_barrier
    ds_read_b128 {vr(Kf, 4)}, v{vK}
    ds_read_b128 {vr(Q[0], 4)}, v{T0}
    ds_read_b128 {vr(Q[1], 4)}, v{T0} offset:1024
    s_mov_b64 exec, s[12:13]
    ds_read_b128 {vr(V0[0], 4)}, v{vV}
    s_mov_b64 exec, -1''')
    stamp(a, 8)
    a(f'''s_waitcnt lgkmcnt(2)
    {MFMA} {vr(S[0], 16)}, {vr(Kf, 4)}, {vr(Q[0], 4)}, 0
    s_waitcnt lgkmcnt(0)
    {MFMA} {vr(S[1], 16)}, {vr(Kf, 4)}, {vr(Q[1], 4)}, 0''')
    if young:
        for i in range(4):
            a(f'ds_write_b128 v{CXW}, {vr(CG + 4 * i, 4)} offset:{i * 1024}')
    rowmax(a, S[0], T0)
    rowmax(a, S[1], T0 + 1)
    set_m(a, T0, T0 + 2, M[0])
    a(f'{MFMA} {vr(S[0], 16)}, {vr(Kf, 4)}, {vr(Q[0], 4)}, {vr(M[0], 16)}')
    set_m(a, T0 + 1, T0 + 2, M[1])
    if young:
        a('s_setprio 1')
    NT = 32
    for u in range(2 * NT):
        t, q = u >> 1, u & 1
        s, sn = S[q], S[q ^ 1]

        def e(i):
            if young and q == 1 and i == 11 and PWIN:
                a('s_setprio 0')
            a(f'v_exp_f32 v{s + i}, v{s + i}')
            if young and q == 1 and i == 10 + PWIN and PWIN:
                a('s_setprio 1')

        if q == 0 and t + 1 in KV_G[:2]:
            if young and t + 1 == KV_G[1]:
                a('s_waitcnt vmcnt(0)')
            a('s_barrier')
            if young and t + 1 == KV_G[0]:
                for i in range(4):
                    a(f'ds_read_b128 {vr(CG + 4 * i, 4)}, v{CXR} offset:{i * 1024}')
        if young and u == 2 * KV_G[0] - 1:
            a('s_waitcnt lgkmcnt(0)')
            for i in range(16):
                a(f'v_add_f32 v{CK + i}, v{CK + i}, v{CG + i}')
            cvt8(a, CG, CK)
            a(f'''buffer_store_dwordx4 {vr(CG, 4)}, v1, {WS_}, s62 offen sc1
            buffer_store_dwordx4 {vr(CG + 4, 4)}, v1, {WS_}, s62 offen offset:1024 sc1''')
        if q == 0 and t + 1 == KV_G[1]:
            stamp(a, 9)
        e(0)
        if q == 1:
            a('s_waitcnt lgkmcnt(0)')
        e(1)
        if u > 0:
            a(f'{SMF} {vr(O[q ^ 1], 16)}, {vr(V1, 4)}, {vr(sn + 8, 8)}, v{vIX}')
        if q == 0:
            a(f'''s_mov_b64 exec, s[12:13]
            ds_read_b128 {vr(V1, 4)}, v{vV} offset:{t * 1024 + 512}''')
            if t + 1 < NT:
                a(f'ds_read_b128 {vr(V0[(t + 1) & 1], 4)}, v{vV} offset:{(t + 1) * 1024}')
            a('s_mov_b64 exec, -1')
        nq = 6 if (q == 0 and t + 1 < NT) else 5
        for i in range(2, nq):
            e(i)
        if u + 1 < 2 * NT:
            a(f'{MFMA} {vr(sn, 16)}, {vr(Kf, 4)}, {vr(Q[q ^ 1], 4)}, {vr(M[q ^ 1], 16)}')
        if q == 0 and t + 1 < NT:
            a(f'ds_read_b128 {vr(Kf, 4)}, v{vK} offset:{(t + 1) * 1024}')
        for i in range(nq, 11):
            e(i)
        a(f'{SMF} {vr(O[q], 16)}, {vr(V0[t & 1], 4)}, {vr(s, 8)}, v{vIX}')
        for i in range(11, 16):
            e(i)
    keep = 1 if young else 0
    give = keep ^ 1
    a(f'''s_mul_i32 s54, s{sWV}, 3072
    s_add_u32 s54, s54, {L_CV}
    {SMF} {vr(O[1], 16)}, {vr(V1, 4)}, {vr(S[1] + 8, 8)}, v{vIX}
    v_add_u32 v{T0}, s54, v1
    s_xor_b32 s54, s{sWV}, 4
    s_mul_i32 s54, s54, 3072
    s_add_u32 s54, s54, {L_CV}
    v_add_u32 v{T0 + 1}, s54, v1
    s_add_u32 s{sQT}, s{sQT}, s{sKH}
    s_lshl_b32 s54, s{sQT}, 5
    s_add_u32 s54, s54, s{sH}
    s_mul_i32 s55, s{sQT}, {FS}
    s_lshl_b32 s56, s{sH}, 2
    s_add_u32 s55, s55, s56
    s_add_u32 s55, s55, {FO}
    s_lshl_b32 s54, s54, 10
    s_add_u32 s54, s54, {OF}
    s_setprio 0''')
    stamp(a, 10)
    a(f'''v_mov_b32 v{O[give] + 9}, v{M[give]}
    ds_write_b128 v{T0}, {vr(O[give], 4)}
    ds_write_b128 v{T0}, {vr(O[give] + 4, 4)} offset:1024
    ds_write_b128 v{T0}, {vr(O[give] + 8, 4)} offset:2048''')
    if young:
        for i in range(9):
            a(f'v_mov_b32 v{O[0] + i}, v{O[1] + i}')
        for i in range(4):
            a(f'v_mov_b32 v{Q[0] + i}, v{Q[1] + i}')
        a(f'v_mov_b32 v{M[0]}, v{M[1]}')


def attn_tail(a):
    X = S[0]
    Oo, Mo = O[0], M[0]
    a(f'''L_ATT_X:
    s_waitcnt lgkmcnt(0)
    s_barrier
    ds_read_b128 {vr(X + 8, 4)}, v{T0 + 1} offset:2048
    ds_read_b128 {vr(X, 4)}, v{T0 + 1}
    ds_read_b128 {vr(X + 4, 4)}, v{T0 + 1} offset:1024
    s_mov_b32 s56, {f32(2.0 ** 30)}
    s_waitcnt lgkmcnt(2)
    v_min_f32 v{T0}, v{Mo}, v{X + 9}
    v_sub_f32 v{T0 + 2}, v{T0}, v{Mo}
    v_sub_f32 v{T0 + 3}, v{T0}, v{X + 9}
    v_exp_f32 v{T0 + 2}, v{T0 + 2}
    v_exp_f32 v{T0 + 3}, v{T0 + 3}
    v_cmp_nlt_f32 vcc, v{Oo + 8}, s56
    v_cmp_nlt_f32 s[58:59], v{X + 8}, s56
    v_mul_f32 v{T0}, v{Oo + 8}, v{T0 + 2}
    v_fma_f32 v{T0}, v{X + 8}, v{T0 + 3}, v{T0}
    s_or_b32 s58, s58, vcc_lo
    v_mov_b32 v{T0 + 1}, v{T0}
    s_cmp_lg_u32 s58, 0
    s_cbranch_scc1 L_REDO
    v_permlane32_swap_b32 v{T0}, v{T0 + 1}
    v_rcp_f32 v{T0}, v{T0}
    s_waitcnt lgkmcnt(0)
    v_mul_f32 v{T0 + 2}, v{T0 + 2}, v{T0}
    v_mul_f32 v{T0 + 3}, v{T0 + 3}, v{T0}''')
    for i in range(8):
        a(f'v_mul_f32 v{Oo + i}, v{Oo + i}, v{T0 + 2}')
    for i in range(8):
        a(f'v_fma_f32 v{Oo + i}, v{X + i}, v{T0 + 3}, v{Oo + i}')
    a('L_FIN:')
    cvt8(a, X, Oo, 4)
    a(f'buffer_store_dwordx4 {vr(X, 4)}, v1, {WS_}, s54 offen sc1')
    flag_set(a, 55, T0, T0 + 1)
    stamp(a, 11)
    stamp_flush(a)
    a('s_endpgm')
    a(f'''L_REDO:
    s_waitcnt lgkmcnt(0)
    v_mov_b32 v{T0}, 0xff800000
    v_mov_b32 v{T0 + 2}, v1
    s_mov_b32 s57, 64
L_R1:
    ds_read_b128 {vr(Kf, 4)}, v{T0 + 2}
    v_add_u32 v{T0 + 2}, 1024, v{T0 + 2}
    s_waitcnt lgkmcnt(0)
    {MFMA} {vr(S[0], 16)}, {vr(Kf, 4)}, {vr(Q[0], 4)}, 0''')
    rowmax(a, S[0], T0 + 1)
    a(f'''v_max_f32 v{T0}, v{T0}, v{T0 + 1}
    s_sub_u32 s57, s57, 1
    s_cmp_lg_u32 s57, 0
    s_cbranch_scc1 L_R1''')
    set_m(a, T0, T0 + 1, Mo)
    for i in range(16):
        a(f'v_mov_b32 v{Oo + i}, 0')
    a(f'''v_mov_b32 v{T0 + 2}, v1
    v_and_b32 v{T0 + 3}, 0x7fff, v{vV}
    v_add_u32 v{T0 + 3}, {L_V}, v{T0 + 3}
    s_mov_b32 s57, 64
L_R2:
    ds_read_b128 {vr(Kf, 4)}, v{T0 + 2}
    s_mov_b64 exec, s[12:13]
    ds_read_b128 {vr(V0[0], 4)}, v{T0 + 3}
    ds_read_b128 {vr(V1, 4)}, v{T0 + 3} offset:512
    s_mov_b64 exec, -1
    v_add_u32 v{T0 + 2}, 1024, v{T0 + 2}
    v_add_u32 v{T0 + 3}, 1024, v{T0 + 3}
    s_waitcnt lgkmcnt(0)
    {MFMA} {vr(S[0], 16)}, {vr(Kf, 4)}, {vr(Q[0], 4)}, {vr(Mo, 16)}''')
    for i in range(16):
        a(f'v_exp_f32 v{S[0] + i}, v{S[0] + i}')
    a(f'''{SMF} {vr(Oo, 16)}, {vr(V0[0], 4)}, {vr(S[0], 8)}, v{vIX}
    {SMF} {vr(Oo, 16)}, {vr(V1, 4)}, {vr(S[0] + 8, 8)}, v{vIX}
    s_sub_u32 s57, s57, 1
    s_cmp_lg_u32 s57, 0
    s_cbranch_scc1 L_R2
    s_nop 9
    v_mov_b32 v{T0}, v{Oo + 8}
    v_mov_b32 v{T0 + 1}, v{Oo + 8}
    v_permlane32_swap_b32 v{T0}, v{T0 + 1}
    v_rcp_f32 v{T0}, v{T0}''')
    for i in range(8):
        a(f'v_mul_f32 v{Oo + i}, v{Oo + i}, v{T0}')
    a('s_branch L_FIN')


def aux(a):
    sC, sROW = 51, 53
    vGX, vGW, vWO, vID, D2 = 16, 24, 28, 36, 44
    vWD, vXD, vLD, vPR, vF = 5, 8, 12, 13, 60
    vm = VM(a)
    a(f"""L_AUX:
    s_setprio {LOAD_PRIO}
    s_and_b32 s{sC}, s{sWV}, 3
    v_lshrrev_b32 v{vWD}, 2, v0
    v_mul_u32_u24 v{vWD}, 3072, v{vWD}
    v_and_b32 v6, 3, v0
    v_lshl_add_u32 v{vWD}, v6, 4, v{vWD}
    s_lshl_b32 s54, s{sCB}, 6
    s_mul_i32 s55, s{sC}, 49152
    s_add_u32 s54, s54, s55
    s_mul_i32 s55, s{sC}, 3072
    s_lshl_b32 s56, s{sRB}, 2
    s_add_u32 s56, s56, s{sC}
    s_lshl_b32 s56, s56, 15
    s_lshl_b32 s57, s{sC}, 12
    s_add_u32 s57, s57, 12288
    s_mov_b32 s58, s{sR}
    v_lshrrev_b32 v6, 4, v0
    v_and_b32 v7, 7, v0
    v_xor_b32 v6, v6, v7
    v_lshlrev_b32 v6, 4, v6
    v_lshrrev_b32 v7, 3, v0
    v_lshl_add_u32 v{vXD}, v7, 10, v6
    v_xor_b32 v{vXD + 1}, 64, v{vXD}
    v_add_u32 v{vXD + 2}, {2 * 7168}, v{vXD}
    v_add_u32 v{vXD + 3}, {3 * 7168}, v{vXD + 1}
    v_add_u32 v{vXD + 1}, 7168, v{vXD + 1}""")
    srd(a, sW, 6, 0x180000)
    a(f"""v_mov_b32 v14, 0
    v_mov_b32 v15, {L_SY + SY_NONCE}
    s_mov_b32 s{sNON}, 0
    s_lshl_b32 s59, s2, 4
    s_add_u32 s59, s59, s{sWV}
    s_cmp_lg_u32 s59, 8
    s_cbranch_scc1 L_TAG_MADE
    s_memrealtime s[60:61]
    s_waitcnt lgkmcnt(0)
    s_mul_i32 s60, s60, 0x9e3779b1
    s_or_b32 s60, s60, 1
    v_mov_b32 v7, s60
    s_mov_b64 exec, 1
    global_store_dword v14, v7, s[30:31] sc1
    s_mov_b64 exec, -1
L_TAG_MADE:""")

    def landed(st):
        vm.wait(st)
        a(f"""v_mov_b32 v6, {st + 1}
        ds_write_b32 v{vLD}, v6""")
        if st in TAG_ST:
            l = a.lab('TG')
            a(f"""v_readfirstlane_b32 s61, v{16 + st}
            s_or_b32 s{sNON}, s{sNON}, s61
            s_cmp_eq_u32 s61, 0
            s_cbranch_scc1 {l}
            ds_write_b32 v15, v{16 + st}
{l}:""")

    for st in range(8):
        if st == 1:
            a(f"""s_lshl_b32 s59, s{sC}, 2
            s_add_u32 s59, s59, {L_SY + SY_LD}
            v_mov_b32 v{vLD}, s59
            v_mov_b32 v{vPR}, {L_SY + SY_PR}""")
        if st >= 4 and 'nopr' not in DBG:
            min4_wait(a, vPR, vF, st - 3)
        if st in TAG_ST:
            vm.issue(st, f'global_load_dword v{16 + st}, v14, s[30:31] sc1')
        a(f"""s_mul_i32 s59, s58, 196608
        s_add_u32 s59, s59, s54
        s_add_u32 m0, s55, {(st & 3) * SLOT}
        s_lshl_b32 s60, s58, 7""")
        for sg in range(3):
            vm.issue(st, f'buffer_load_dwordx4 v{vWD}, {W_}, s59 offen offset:{sg * 1024} lds')
        a(f"""s_add_u32 m0, s57, {(st & 3) * SLOT}
        s_add_u32 s60, s60, s56""")
        for q in range(4):
            vm.issue(st, f'buffer_load_dwordx4 v{vXD + q}, {X_}, s60 offen offset:{q * 1024} lds')
        a("""s_add_u32 s58, s58, 1
        s_and_b32 s58, s58, 7""")
        order = {2: [0], 3: [1, 2]}.get(st, [st - 1] if st >= 4 else []) if LAG == 2 else [st - 1] if st else []
        for k in order:
            landed(k)
            if 'gs' in DBG:
                stamp(a, 5 + k, True)
    landed(7)
    a(f"""s_setprio 0
    s_mov_b32 s65, {SPIN_G}
L_TAG_P:
    s_cmp_lg_u32 s{sNON}, 0
    s_cbranch_scc1 L_TAG_OK
    global_load_dword v16, v14, s[30:31] sc1
    s_waitcnt vmcnt(0)
    v_readfirstlane_b32 s{sNON}, v16
    s_sub_u32 s65, s65, 1
    s_cbranch_scc0 L_TAG_P
    s_mov_b32 s{sNON}, 1
L_TAG_OK:
    v_mov_b32 v16, s{sNON}
    ds_write_b32 v15, v16""")
    stamp(a, 1)
    sG, sL = 54, 55
    vm = VM(a)
    a(f'''s_and_b32 s56, s2, 31
    s_lshr_b32 s57, s56, 1
    s_mul_i32 s57, s57, {FS}
    s_add_u32 s57, s57, {FQ}
    s_lshl_b32 s56, s56, 16
    s_lshr_b32 s58, s{sC}, 1
    s_lshl_b32 s58, s58, 15
    s_and_b32 s59, s{sC}, 1
    s_lshl_b32 s{sL}, s59, 16
    s_add_u32 s{sL}, s{sL}, s58
    s_mul_i32 s{sG}, s59, {VF - KF}
    s_add_u32 s{sG}, s{sG}, s58
    s_add_u32 s{sG}, s{sG}, s56
    s_add_u32 s{sG}, s{sG}, {KF}
    s_lshr_b32 s58, s2, 5
    s_lshl_b32 s58, s58, 2
    s_add_u32 s58, s58, s{sC}
    s_lshl_b32 s58, s58, 11
    s_add_u32 s56, s56, s58
    s_add_u32 s56, s56, {QF}
    v_mov_b32 v6, {L_SY + SY_FREE}
    v_and_b32 v5, 15, v0
    v_lshlrev_b32 v5, 2, v5''')
    lds_wait(a, 6, 8, 7, sleep=True)
    stamp(a, 3)

    def poll_q():
        a(f'v_mov_b32 v8, {L_SY + SY_Q}')
        lds_wait(a, 8, 4, 7, sleep=True)
        flag_wait(a, 5, 57, 7)

    relay_wait(a, 8, SY_QOK, poll_q, 6, 7)
    stamp(a, 4)
    a(f'''s_lshl_b32 s58, s{sC}, 11
    s_add_u32 m0, s58, {L_T}
    s_nop 0''')
    for i in range(2):
        vm.issue('q', f'buffer_load_dwordx4 v1, {WS_}, s56 offen offset:{i * 1024} sc1 lds')

    def kv(t0, t1):
        for t in range(t0, t1):
            if t == t0 or t % 4 == 0:
                a(f'''s_add_u32 m0, s{sL}, {(t & ~3) * 1024}
                s_add_u32 s58, s{sG}, {(t & ~3) * 1024}''')
            vm.issue(t, f'buffer_load_dwordx4 v1, {WS_}, s58 offen offset:{(t & 3) * 1024} sc1 lds')

    kv(0, KV_G[1])
    vm.wait(KV_G[0] - 1)
    a('''s_setprio 3
    s_barrier''')
    stamp(a, 5)
    kv(KV_G[1], KV_G[2])
    vm.wait(KV_G[1] - 1)
    a('s_barrier')
    if 'ws' in DBG:
        stamp(a, 5, True)
    vGX, vGW, vWO, vID, D2 = 146, 154, 158, 96, 112
    a(f"""s_cmp_lg_u32 s{sWV}, 11
    s_cbranch_scc1 L_NOWO1
    s_lshr_b32 s60, s2, 4
    s_lshl_b32 s60, s60, 15
    s_and_b32 s61, s2, 15
    s_lshl_b32 s61, s61, 6
    s_add_u32 s60, s60, s61
    v_lshlrev_b32 v6, 10, v2
    v_lshl_add_u32 v6, v3, 4, v6
    v_add_u32 v6, s60, v6
    global_load_dwordx4 {vr(vWO, 4)}, v6, s[8:9]
    global_load_dwordx4 {vr(vWO + 4, 4)}, v6, s[8:9] offset:32
L_NOWO1:
    s_lshl_b32 s4, s{sRB}, 7
    s_lshl_b32 s60, s{sCB}, 3
    s_add_u32 s4, s4, s60
    s_and_b32 s60, s{sWV}, 3
    s_lshl_b32 s60, s60, 1
    s_add_u32 s4, s4, s60
    s_lshl_b32 s60, s4, 10
    buffer_load_dwordx4 {vr(vGX, 4)}, v1, {X_}, s60 offen
    buffer_load_dwordx4 {vr(vGX + 4, 4)}, v1, {X_}, s60 offen offset:1024
    global_load_dwordx4 {vr(vGW, 4)}, v1, s[24:25]""")
    kv(KV_G[2], 32)
    a('s_setprio 3')
    if 'ws' in DBG:
        stamp(a, 6, True)
    a(f"""v_mov_b32 v144, 0
    v_mov_b32 v145, 0
    s_waitcnt vmcnt({32 - KV_G[2]})""")
    if 'ws' in DBG:
        stamp(a, 7, True)
    for i in range(4):
        a(f"""v_dot2_f32_bf16 v144, v{vGX + i}, v{vGW + i}, v144
        v_dot2_f32_bf16 v145, v{vGX + 4 + i}, v{vGW + i}, v145""")
    a('s_nop 2')
    for d in ('row_shr:1', 'row_shr:2', 'row_shr:4', 'row_shr:8', 'row_bcast:15 row_mask:0xa', 'row_bcast:31 row_mask:0xc'):
        a(f"""v_add_f32_dpp v144, v144, v144 {d}
        v_add_f32_dpp v145, v145, v145 {d}""")
    a(f"""v_mul_f32 v144, {f32(-LOG2E)}, v144
    v_mul_f32 v145, {f32(-LOG2E)}, v145
    v_exp_f32 v144, v144
    v_exp_f32 v145, v145
    v_add_f32 v144, 1.0, v144
    v_add_f32 v145, 1.0, v145
    v_rcp_f32 v144, v144
    v_rcp_f32 v145, v145
    s_lshl_b32 s4, s4, 2
    s_add_u32 s4, s4, {GG}
    v_mov_b32 v{vGX}, 0
    s_mov_b32 exec_lo, 0
    s_brev_b32 exec_hi, 1
    buffer_store_dwordx2 v[144:145], v{vGX}, {WS_}, s4 offen sc1
    s_mov_b64 exec, -1
    s_cmp_lg_u32 s{sWV}, 11
    s_cbranch_scc1 L_NOWO2""")
    if 'ws' in DBG:
        stamp(a, 8, True)
    identity_frags(a, vID, 2, 3, 6, 7, 12)
    if 'ws' in DBG:
        stamp(a, 9, True)

    a(f"""{MFMA} {vr(D2, 16)}, {vr(vWO, 4)}, {vr(vID, 4)}, 0
    {MFMA} {vr(D2, 16)}, {vr(vWO + 4, 4)}, {vr(vID + 4, 4)}, {vr(D2, 16)}
    v_lshl_add_u32 v6, v3, 5, v4
    v_lshlrev_b32 v6, 4, v6
    s_and_b32 s60, s2, 15
    s_lshl_b32 s60, s60, 15
    s_lshr_b32 s61, s2, 4
    s_lshl_b32 s61, s61, 11
    s_add_u32 s60, s60, s61
    s_add_u32 s60, s60, {WOF}""")
    cvt8(a, vWO, D2)
    if 'ws' in DBG:
        stamp(a, 10, True)
    a(f"""buffer_store_dwordx4 {vr(vWO, 4)}, v6, {WS_}, s60 offen sc1
    buffer_store_dwordx4 {vr(vWO + 4, 4)}, v6, {WS_}, s60 offen offset:1024 sc1
L_NOWO2:""")
    a(f'''s_lshl_b32 s4, s2, 2
    s_add_u32 s4, s4, {FW}''')
    if 'ws' in DBG:
        stamp(a, 11, True)
    a('s_waitcnt vmcnt(0)')
    stamp(a, 2)
    a(f'''s_barrier
    s_cmp_lg_u32 s{sWV}, 8
    s_cbranch_scc1 L_SIDE_SET''')
    flag_set(a, 4, 6, 7)
    a('L_SIDE_SET:')
    stamp(a, 6)

    a('s_setprio 3')
    sT3, sC3 = 52, 53
    vG, vOA, BTM, acc, FR, WO = 5, 6, 8, 16, (32, 36), 40
    a(f'''s_setprio 3
    s_and_b32 s{sT3}, s2, 7
    s_lshl_b32 s{sT3}, s{sT3}, 3
    s_bfe_u32 s54, s2, 0x30003
    s_add_u32 s{sT3}, s{sT3}, s54
    s_lshr_b32 s{sC3}, s2, 6
    s_mov_b32 s54, {FW}
    ''')

    def poll_w():
        flag_wait(a, 1, 54, acc, n=4, sleep=8)

    relay_wait(a, 8, SY_WOK, poll_w, 6, 7)
    a(f"""s_lshl_b32 s56, s2, 4
    s_add_u32 s56, s56, s{sWV}
    s_cmp_lg_u32 s56, 8
    s_cbranch_scc1 L_TAG_KEEP
    v_mov_b32 v6, 0
    s_mov_b64 exec, 1
    global_store_dword v6, v6, s[30:31] sc1
    s_mov_b64 exec, -1
L_TAG_KEEP:""")
    vBT, vI3, accb = FR[0], BTM, acc
    a(f"""s_lshl_b32 s{sC3}, s{sC3}, 2
    s_add_u32 s{sC3}, s{sC3}, s{sC}
    v_lshlrev_b32 v6, 12, v4
    v_lshl_add_u32 v6, v3, 9, v6
    s_lshl_b32 s54, s{sC3}, 17
    s_lshr_b32 s55, s{sT3}, 5
    s_lshl_b32 s55, s55, 11
    s_add_u32 s54, s54, s55
    s_and_b32 s55, s{sT3}, 31
    s_lshl_b32 s55, s55, 4
    s_add_u32 s54, s54, s55
    s_add_u32 s54, s54, {BT}
    s_lshl_b32 s55, s{sT3}, 7
    s_add_u32 s55, s55, {GG}
    v_lshlrev_b32 v7, 2, v2
    buffer_load_dwordx4 {vr(vBT, 4)}, v6, {WS_}, s54 offen sc1
    buffer_load_dwordx4 {vr(vBT + 4, 4)}, v6, {WS_}, s54 offen offset:1024 sc1
    buffer_load_dword v{vG}, v7, {WS_}, s55 offen sc1
    s_lshl_b32 s54, s{sC3}, 15
    s_add_u32 s54, s54, {WOF}""")
    for k in range(32):
        if k and k % 4 == 0:
            a('s_add_u32 s54, s54, 4096')
        a(f'buffer_load_dwordx4 {vr(WO + 4 * k, 4)}, v1, {WS_}, s54 offen offset:{(k & 3) * 1024} sc1')
    identity_frags(a, vI3, 2, 3, 6, 7)
    a(f"""s_waitcnt vmcnt(32)
    {MFMA} {vr(accb, 16)}, {vr(vBT, 4)}, {vr(vI3, 4)}, 0
    {MFMA} {vr(accb, 16)}, {vr(vBT + 4, 4)}, {vr(vI3 + 4, 4)}, {vr(accb, 16)}
    v_sub_f32 v7, 1.0, v{vG}
    v_lshlrev_b32 v{vOA}, 10, v2
    v_lshl_add_u32 v{vOA}, v3, 4, v{vOA}""")
    for i in range(16):
        a(f'v_mul_f32 v{accb + i}, v7, v{accb + i}')
    cvt8(a, BTM, accb)
    for i in range(16):
        a(f'v_mov_b32 v{acc + i}, 0')
    a(f'''s_mul_i32 s54, s{sT3}, {FS}
    s_add_u32 s54, s54, {FO}
    s_lshl_b32 s55, s{sT3}, 15
    s_add_u32 s55, s55, {OF}
    s_lshl_b32 s56, s{sC}, 10
    s_add_u32 s55, s55, s56
    s_lshl_b32 s57, s{sT3}, 15
    s_lshl_b32 s58, s{sC3}, 6
    s_add_u32 s57, s57, s58
    v_lshlrev_b32 v7, 2, v2''')
    srd(a, sOUT, 28, 0x200000)
    stamp(a, 7)
    a('''s_barrier
    s_barrier''')
    stamp(a, 8)
    a(f'''s_cmp_lg_u32 s{sWV}, 8
    s_cbranch_scc1 L_OWAIT''')
    flag_wait(a, 7, 54, FR[0], n=1, sleep=OSLEEP)
    a('''L_OWAIT:
    s_waitcnt vmcnt(0)
    s_barrier''')
    stamp(a, 9)
    for i in range(8):
        a(f'''s_add_u32 m0, s56, {i * 4096}
        s_nop 0
        buffer_load_dwordx4 v1, {WS_}, s55 offen sc1 lds
        s_add_u32 s55, s55, 4096''')
    for c in range(4):
        a(f'''s_waitcnt vmcnt({6 - 2 * c})
        s_barrier
        ds_read_b128 {vr(FR[0], 4)}, v1 offset:{8 * c * 1024}''')
        for k in range(8 * c, 8 * c + 8):
            if k + 1 < 8 * c + 8:
                a(f'''ds_read_b128 {vr(FR[(k + 1) & 1], 4)}, v1 offset:{(k + 1) * 1024}
                s_waitcnt lgkmcnt(1)''')
            else:
                a('s_waitcnt lgkmcnt(0)')
            a(f'{MFMA} {vr(acc, 16)}, {vr(WO + 4 * k, 4)}, {vr(FR[k & 1], 4)}, {vr(acc, 16)}')
    stamp(a, 10)
    for i in range(8):
        a(f'''v_lshlrev_b32 v{WO + 2 * i}, 16, v{BTM + i}
        v_and_b32 v{WO + 2 * i + 1}, 0xffff0000, v{BTM + i}''')
    for i in range(16):
        a(f'v_fma_f32 v{acc + i}, v{vG}, v{acc + i}, v{WO + i}')
    cvt8(a, BTM, acc)
    a(f'''buffer_store_dwordx4 {vr(BTM, 4)}, v{vOA}, {OUT_}, s57 offen {OUTF}
    buffer_store_dwordx4 {vr(BTM + 4, 4)}, v{vOA}, {OUT_}, s57 offen offset:32 {OUTF}''')
    stamp(a, 11)
    stamp_flush(a)
    a('''L_END:
    s_endpgm''')


def kernel(a):
    prologue(a)
    gemm(a)
    attn_loop(a, False)
    a('s_branch L_ATT_X')
    for f in a.deferred:
        f()
    kgen_conv(a)
    attn_loop(a, True)
    attn_tail(a)
    aux(a)


def build():
    here = os.path.dirname(os.path.abspath(__file__))
    ref = open(os.path.join(here, '..', 'cdna_kernels', NAME + '.s.ref')).read().split('\n')
    head = [l for l in ref if l.startswith(';') and 'launch' not in l.lower() and 'lds=0' not in l]
    out = '\n'.join(head) + '\n'
    name = NAME + '_kernel'
    out += f'; @launch grid=(256,1,1) block=(768,1,1) lds={LDS_BYTES}\n'
    out += '.amdgcn_target "amdgcn-amd-amdhsa--gfx950"\n.text\n'
    a = Gen()
    kernel(a)
    bad = a.check_branches()
    if bad:
        for b in bad:
            print('BRANCH HAZARD', b, file=sys.stderr)
        sys.exit(1)
    if ENV('SHOWPAD'):
        for p in a.padded:
            print('pad', p, file=sys.stderr)
    out += f'.globl {name}\n.p2align 8\n.type {name},@function\n{name}:\n' + a.text()
    out += f'''.section .rodata,"a"
.p2align 6
.amdhsa_kernel {name}
  .amdhsa_next_free_vgpr 168
  .amdhsa_next_free_sgpr 100
  .amdhsa_accum_offset 168
  .amdhsa_group_segment_fixed_size 0
  .amdhsa_kernarg_size 112
  .amdhsa_user_sgpr_count 2
  .amdhsa_user_sgpr_kernarg_segment_ptr 1
  .amdhsa_system_sgpr_workgroup_id_x 1
.end_amdhsa_kernel
'''
    return out


if __name__ == '__main__':
    dst = sys.argv[1] if len(sys.argv) > 1 else os.path.join(os.path.dirname(os.path.abspath(__file__)), '..', 'cdna_kernels', NAME + '.s')
    open(dst, 'w').write(build())
    print('wrote', dst)
```

```python
import sys, os, struct
sys.path.insert(0, os.path.dirname(os.path.abspath(__file__)))
from asmlib import Asm, vr, sr

NAME = 'gated_mix__softmax_full_mha__ssm_conv_s4d__prompt'
ENV = os.environ.get
STAMP = bool(ENV('STAMP'))

RSTRIDE = 0x210000
QF, KF, VF, OF, XT, BT, WOF = (0x10000 + i * RSTRIDE for i in range(7))
GG = WOF + 0x80000
FRAGT = True
FS = 0x1100
FX = GG + 0x10000
FQ, FB, FW, FO = FX + 16 * FS, FX + 32 * FS, FX + 36 * FS, FX + 37 * FS
STAMPS = 0xF20000
WS_BYTES = 0x1200000 if STAMP else 0xE00000
TOUCH = int(ENV('TOUCH', 0))

SLOT = 28672
L_CV = 0
CVS = 16128
L_K = 2 * CVS
L_V = L_K + 65536
L_XS = L_K + 114688
L_T = L_K + 122880
EROW = 144
L_U = 8320
L_SY = L_K + 131072
NSLOT = int(ENV('NSLOT', 4))
SY_LD, SY_PR, SY_NONCE, SY_FREE, SY_K0, SY_K1, SY_K2 = 0, 16, 32, 36, 40, 48, 56
SY_X, SY_Q, SY_TAB, SY_U, SY_XOK, SY_QOK, SY_WOK, SY_XS = 64, 68, 72, 76, 80, 84, 88, 96
LDS_BYTES = 163840

LOG2E = 1.4426950408889634
MFMA = 'v_mfma_f32_32x32x16_bf16'
SMF = 'v_smfmac_f32_32x32x32_bf16'
SPIN = 0x40000
SPIN_G = 0x8000

sWV, sX, sW, sWS, sOUT, sRB, sCB, sNON, sR, sP4 = 3, 32, 36, 40, 44, 48, 49, 50, 10, 97
X_, W_, WS_, OUT_ = (f's[{b}:{b + 3}]' for b in (sX, sW, sWS, sOUT))

KV_G = [int(x) for x in ENV('KVG', '2,10,22').split(',')]
PWIN = int(ENV('PWIN', 4))
CONV_PRIO = int(ENV('CPRIO', 0))
GEMM_PRIO = int(ENV('GPRIO', 1))
ROT = int(ENV('ROT', 9))
PSLEEP = int(ENV('PSLEEP', 1))
DBG = ENV('DBG', '')
ADAPT = int(ENV('ADAPT', 1))
GSLEEP = int(ENV('GSLEEP', 1))
XST = 1 if ROT == 2 else 2
OUT_LDS = int(ENV('OUTLDS', 1))
POST_PRIO = int(ENV('PPRIO', 0))
KDRY = int(ENV('KDRY', 0))
FAST = int(ENV('FAST', 0))
FSLEEP = int(ENV('FSLEEP', 2))
OUTF = ENV('OUTF', '')
DRY = int(ENV('DRY', 0))
DEFER = int(ENV('DEFER', 1))
TAIL_PRIO = int(ENV('TPRIO', 2))
RELAY_PRIO = int(ENV('RPRIO', 2))
XPOLL = int(ENV('XPOLL', 8))
RSLEEP = int(ENV('RSLEEP', 1))
LATE_W = int(ENV('LATEW', 1))
TAG_ST = (1, 2, 4)
LOAD_PRIO = int(ENV('LPRIO', 2))
OSLEEP = int(ENV('OSLEEP', 1))
KGEN_PRIO = int(ENV('KPRIO', 2))
CONV_WAIT = int(ENV('CWAIT', 1))
XFLAG_STAGE = int(ENV('XFS', 5))
LAG = int(ENV('LAG', 1))


def f32(x):
    return '0x%08x' % struct.unpack('<I', struct.pack('<f', x))[0]


class Gen(Asm):
    def __init__(self):
        super().__init__()
        self.nlab = 0
        self.deferred = []

    def lab(self, p):
        self.nlab += 1
        return f'{p}_{self.nlab}'


def stamp(a, i, force=False):
    if STAMP and (force or not ('gs' in DBG or 'ks' in DBG or 'ws' in DBG or 'st' in DBG or 'g0' in DBG or 'g4' in DBG or 'cs' in DBG) or i < 5):
        a(f's_mem{"real" if ENV("RT") else ""}time s[{66 + 2 * i}:{67 + 2 * i}]')
        if i == 0:
            a('s_memrealtime s[92:93]')


def stamp_flush(a):
    if STAMP:
        a(f'''s_waitcnt vmcnt(0)
        s_mem{"real" if ENV("RT") else ""}time s[90:91]
        s_memrealtime s[94:95]
        s_lshl_b32 s96, s2, 4
        s_add_u32 s96, s96, s{sWV}
        s_lshl_b32 s96, s96, 6
        s_add_u32 s96, s96, {STAMPS}
        s_mov_b64 exec, 1
        v_mov_b32 v0, 0
        s_waitcnt lgkmcnt(0)''')
        for i in range(15):
            a(f'''v_mov_b32 v1, s{66 + 2 * i}
            buffer_store_dword v1, v0, {WS_}, s96 offen offset:{4 * i}''')


def srd(a, d, base, nbytes):
    a(f'''s_mov_b32 s{d}, s{base}
    s_and_b32 s{d + 1}, s{base + 1}, 0xffff
    s_mov_b32 s{d + 2}, {nbytes:#x}
    s_mov_b32 s{d + 3}, 0x20000''')


def swap23(a, dst, src, t):
    a(f'''v_lshrrev_b32 v{t}, 1, v{src}
    v_xor_b32 v{t}, v{t}, v{src}
    v_and_b32 v{t}, 4, v{t}
    v_mul_u32_u24 v{t}, 3, v{t}
    v_xor_b32 v{dst}, v{t}, v{src}''')


def identity_frags(a, dst, vn, vh, t0, t1, sb=56):
    a(f'''v_and_b32 v{t0}, 1, v{vn}
    v_lshlrev_b32 v{t0}, 4, v{t0}
    v_mov_b32 v{t1}, 0x3f80
    v_lshlrev_b32 v{t0}, v{t0}, v{t1}
    v_lshrrev_b32 v{t1}, 1, v{vn}
    v_lshlrev_b32 v{dst}, 2, v{vh}
    v_sub_u32 v{t1}, v{t1}, v{dst}''')
    for k in range(8):
        a(f'v_cmp_eq_u32 s[{sb + 2 * (k & 3)}:{sb + 1 + 2 * (k & 3)}], {8 * (k >> 2) + (k & 3)}, v{t1}')
        if (k & 3) == 3:
            for j in range(k - 3, k + 1):
                a(f'v_cndmask_b32 v{dst + j}, 0, v{t0}, s[{sb + 2 * (j & 3)}:{sb + 1 + 2 * (j & 3)}]')


def cvt8(a, dst, src, n=8):
    for i in range(n):
        a(f'v_cvt_pk_bf16_f32 v{dst + i}, v{src + 2 * i}, v{src + 2 * i + 1}')


def lds_add(a, off, t0, t1):
    a(f'''v_mov_b32 v{t0}, {L_SY + off}
    v_mov_b32 v{t1}, 1
    s_mov_b64 exec, 1
    ds_add_u32 v{t0}, v{t1}
    s_mov_b64 exec, -1''')


def lds_wait(a, addr, target, t, sleep=False, dst=64):
    l0, l1 = a.lab('LW'), a.lab('LWD')
    a(f'''s_mov_b32 s65, {SPIN}
{l0}:
    ds_read_b32 v{t}, v{addr}
    s_waitcnt lgkmcnt(0)
    v_readfirstlane_b32 s{dst}, v{t}
    s_sub_u32 s65, s65, 1
    s_cbranch_scc1 {l1}''')
    if target is None:
        a(f's_cmp_eq_u32 s{dst}, 0')
    else:
        a(f's_cmp_lt_u32 s{dst}, {target}')
    if sleep:
        a(f'''s_cbranch_scc0 {l1}
        s_sleep {int(sleep)}
        s_branch {l0}''')
    else:
        a(f's_cbranch_scc1 {l0}')
    a(f'{l1}:')


def get_nonce(a, t0, t1):
    a(f'v_mov_b32 v{t0}, {L_SY + SY_NONCE}')
    lds_wait(a, t0, None, t1, sleep=True, dst=sNON)


def flag_wait(a, voff, soff, t, n=1, sleep=None):
    l0, l1 = a.lab('FW'), a.lab('FWD')
    a(f'''s_mov_b32 s65, {SPIN_G}
{l0}:''')
    if n == 1:
        a(f'buffer_load_dword v{t}, v{voff}, {WS_}, s{soff} offen sc1')
    else:
        for i in range(n // 4):
            a(f'buffer_load_dwordx4 {vr(t + 4 * i, 4)}, v{voff}, {WS_}, s{soff} offen offset:{1024 * i} sc1')
    a('s_waitcnt vmcnt(0)')
    for i in range(n):
        a(f'v_xor_b32 v{t + i}, s{sNON}, v{t + i}')
    for i in range(1, n):
        a(f'v_or_b32 v{t}, v{t}, v{t + i}')
    a(f'''v_cmp_ne_u32 vcc, 0, v{t}
    s_sub_u32 s65, s65, 1
    s_cbranch_scc1 {l1}
    s_cmp_eq_u64 vcc, 0
    s_cbranch_scc1 {l1}
    s_sleep {sleep or PSLEEP}
    s_branch {l0}
{l1}:''')


def flag_wait_fast(a, voff, soff, t):
    l0, l1 = a.lab('FF'), a.lab('FFD')
    ld = lambda r: f'buffer_load_dword v{r}, v{voff}, {WS_}, s{soff} offen sc1'
    a(f'''s_mov_b32 s65, {SPIN_G}
    {ld(t)}
{l0}:''')
    for r in (t, t + 1):
        a(f'''s_sleep {FSLEEP}
        {ld(2 * t + 1 - r)}
        s_waitcnt vmcnt(1)
        v_cmp_ne_u32 vcc, s{sNON}, v{r}
        s_sub_u32 s65, s65, 1
        s_cbranch_scc1 {l1}
        s_cmp_eq_u64 vcc, 0
        s_cbranch_scc1 {l1}''')
    a(f'''s_branch {l0}
{l1}:''')


def flag_set(a, soff, t0, t1):
    a(f'''v_mov_b32 v{t0}, 0
    v_mov_b32 v{t1}, s{sNON}
    s_waitcnt vmcnt(0)
    s_mov_b64 exec, 1
    buffer_store_dword v{t1}, v{t0}, {WS_}, s{soff} offen sc1
    s_mov_b64 exec, -1''')


def group_flag_set(a, cnt, soff, t0, t1, n=4):
    l = a.lab('GF')
    a(f'''v_mov_b32 v{t0}, {L_SY + cnt}
    v_mov_b32 v{t1}, 1
    s_waitcnt vmcnt(0)
    s_mov_b64 exec, 1
    ds_add_rtn_u32 v{t1}, v{t0}, v{t1}
    s_waitcnt lgkmcnt(0)
    v_readfirstlane_b32 s64, v{t1}
    v_mov_b32 v{t0}, 0
    v_mov_b32 v{t1}, s{sNON}
    s_cmp_lg_u32 s64, {n - 1}
    s_cbranch_scc1 {l}
    buffer_store_dword v{t1}, v{t0}, {WS_}, s{soff} offen sc1
{l}:
    s_mov_b64 exec, -1''')


def relay_wait(a, leader, ok, polls, t0, t1):
    l0, l1 = a.lab('RL'), a.lab('RLD')
    a(f'''v_mov_b32 v{t0}, {L_SY + ok}
    s_cmp_lg_u32 s{sWV}, {leader}
    s_cbranch_scc1 {l0}''')
    polls()
    a(f'''v_mov_b32 v{t1}, 1
    ds_write_b32 v{t0}, v{t1}
    s_branch {l1}
{l0}:''')
    lds_wait(a, t0, 1, t1, sleep=RSLEEP)
    a(f'{l1}:')


class VM:
    def __init__(self, a):
        self.a, self.q = a, []

    def issue(self, tag, text):
        self.a(text)
        self.q.append(tag)

    def wait(self, *tags):
        last = max(i for i, t in enumerate(self.q) if t in tags)
        self.a(f's_waitcnt vmcnt({len(self.q) - 1 - last})')


def pointers_ready(a):
    a('s_waitcnt lgkmcnt(0)')
    srd(a, sX, 4, 0x200000)
    srd(a, sWS, 26, WS_BYTES)


def prologue(a):
    a('''s_cmp_ge_u32 s2, 256
    s_cbranch_scc1 L_END''')
    stamp(a, 0)
    a(f'''s_load_dwordx4 s[4:7], s[0:1], 0
    s_load_dwordx2 s[8:9], s[0:1], 16
    s_load_dwordx8 s[12:19], s[0:1], 32
    s_load_dwordx4 s[20:23], s[0:1], 64
    s_load_dwordx2 s[24:25], s[0:1], 80
    s_load_dwordx4 s[28:31], s[0:1], 88
    s_load_dwordx2 s[26:27], s[0:1], 104
    v_lshrrev_b32 v1, 6, v0
    v_and_b32 v0, 63, v0
    v_readfirstlane_b32 s{sWV}, v1
    v_lshlrev_b32 v1, 4, v0
    v_mov_b32 v8, 0
    v_mov_b32 v9, 0
    v_mov_b32 v10, 0
    v_mov_b32 v11, 0
    v_add_u32 v5, {L_SY}, v1
    s_mov_b64 exec, 0xff
    ds_write_b128 v5, v[8:11]
    s_mov_b64 exec, -1
    s_and_b32 s51, s2, 7
    s_lshr_b32 s52, s2, 3
    s_lshr_b32 s{sRB}, s51, 1
    s_lshl_b32 s{sRB}, s{sRB}, 2
    s_and_b32 s53, s52, 3
    s_add_u32 s{sRB}, s{sRB}, s53
    s_and_b32 s{sCB}, s51, 1
    s_lshl_b32 s{sCB}, s{sCB}, 3
    s_lshr_b32 s53, s52, 2
    s_add_u32 s{sCB}, s{sCB}, s53
    ''')
    if ROT == 2:
        a(f'''s_lshl_b32 s{sR}, s{sRB}, 1
        s_add_u32 s{sR}, s{sR}, s{sCB}
        s_and_b32 s{sR}, s{sR}, 7
        s_lshr_b32 s{sP4}, s{sCB}, 3''')
    elif ROT == 4:
        a(f'''s_add_u32 s{sR}, s{sRB}, s{sCB}
        s_and_b32 s{sR}, s{sR}, 3
        s_lshl_b32 s{sR}, s{sR}, 1
        s_lshr_b32 s{sP4}, s{sCB}, 2''')
    else:
        a(f'''s_add_u32 s{sR}, s{sRB}, s{sCB}
        s_and_b32 s{sR}, s{sR}, 1
        s_lshl_b32 s{sR}, s{sR}, 1
        s_lshr_b32 s53, s{sCB}, 3
        s_add_u32 s{sR}, s{sR}, s53
        s_lshl_b32 s{sR}, s{sR}, 1
        s_bfe_u32 s53, s{sRB}, 0x10002
        s_add_u32 s{sR}, s{sR}, s53
        s_bfe_u32 s{sP4}, s{sCB}, 0x20001''')
    a(f'''v_and_b32 v2, 31, v0
    v_lshrrev_b32 v3, 5, v0''')
    swap23(a, 4, 2, 5)
    pointers_ready(a)
    a(f'''s_barrier
    s_cmp_ge_u32 s{sWV}, 8
    s_cbranch_scc1 L_AUX
    s_cmp_ge_u32 s{sWV}, 4
    s_cbranch_scc1 L_KGEN''')


def min4_wait(a, addr, f, target, fresh=True, sleep=1):
    l0, l1, l2 = a.lab('MW'), a.lab('MWD'), a.lab('MWC')
    a(f's_mov_b32 s65, {SPIN}')
    if not fresh:
        a(f's_branch {l2}')
    a(f"""{l0}:
    ds_read_b128 {vr(f, 4)}, v{addr}
    s_waitcnt lgkmcnt(0)
{l2}:
    v_min3_u32 v{f}, v{f}, v{f + 1}, v{f + 2}
    v_min_u32 v{f}, v{f}, v{f + 3}
    s_sub_u32 s65, s65, 1
    s_cbranch_scc1 {l1}
    v_readfirstlane_b32 s64, v{f}
    s_cmp_ge_u32 s64, {target}
    s_cbranch_scc1 {l1}
    s_sleep {sleep}
    s_branch {l0}
{l1}:""")


def gemm(a):
    vXR, vWQ, vWV = (8, 14), (12, 18), (13, 19)
    vLD, vPR, vF, vID, vIT, vXS = 20, 21, 24, 160, 28, 29
    accQ, accK, accV, accT = 32, 48, 64, 144
    FR = (80, 96, 112, 128)
    sTT = 51
    if KDRY:
        a("""v_mov_b32 v20, 0
        v_mov_b32 v21, 0
        v_mov_b32 v23, 0
        v_mov_b32 v162, 0
        v_mov_b32 v163, 0
        s_mov_b32 s62, 1
        s_mov_b64 exec, 0
        s_branch L_KP
L_KDRY_BACK:
        s_mov_b64 exec, -1""")
    if TOUCH:
        a(f"""s_cmp_lg_u32 s{sWV}, 1
        s_cbranch_scc1 L_TOUCH_DONE
        s_mov_b32 s52, {RSTRIDE}
        v_mul_lo_u32 v6, s52, v0
        v_mov_b32 v7, 0
        s_mov_b64 exec, 0x7f
        buffer_load_dword v8, v6, {WS_}, 0 offen
        s_mov_b64 exec, 1
        global_load_dword v9, v7, s[8:9]
        global_load_dword v10, v7, s[24:25]
        global_load_dword v11, v7, s[28:29]
        s_mov_b64 exec, -1
        s_waitcnt vmcnt(0)
L_TOUCH_DONE:""")
    a(f"""
    s_lshl_b32 s{sTT}, s{sRB}, 2
    s_add_u32 s{sTT}, s{sTT}, s{sWV}
    s_lshl_b32 s52, s{sWV}, 12
    s_add_u32 s52, s52, {L_K + 12288}
    v_bfe_u32 v6, v4, 1, 3
    v_xor_b32 v6, v6, v3
    v_lshlrev_b32 v6, 4, v6
    v_lshl_add_u32 v6, v4, 7, v6
    v_add_u32 v{vXR[0]}, s52, v6
    v_xor_b32 v7, 32, v6
    v_add_u32 v{vXR[0] + 1}, s52, v7
    v_xor_b32 v7, 64, v6
    v_add_u32 v{vXR[0] + 2}, s52, v7
    v_xor_b32 v7, 96, v6
    v_add_u32 v{vXR[0] + 3}, s52, v7
    v_bfe_u32 v6, v0, 2, 2
    v_lshl_add_u32 v6, v3, 3, v6
    v_lshlrev_b32 v6, 6, v6
    v_bfe_u32 v7, v0, 4, 1
    v_lshl_add_u32 v6, v7, 5, v6
    v_add_u32 v6, {L_K}, v6
    v_and_b32 v7, 3, v0
    v_lshl_add_u32 v{vWV[0]}, v7, 3, v6
    v_bfrev_b32 v7, v7
    v_lshrrev_b32 v7, 30, v7
    v_lshl_add_u32 v{vWQ[0]}, v7, 3, v6
    v_mov_b32 v{vLD}, {L_SY + SY_LD}
    s_lshl_b32 s52, s{sWV}, 2
    s_add_u32 s52, s52, {L_SY + SY_PR}
    v_mov_b32 v{vPR}, s52""")
    for i in range(6):
        a(f'v_add_u32 v{vXR[1] + i}, {2 * SLOT}, v{vXR[0] + i}')
    identity_frags(a, vID, 2, 3, 6, 7)
    a(f"""s_lshl_b32 s56, s{sRB}, 2
    s_mul_i32 s57, s{sCB}, {FS}
    s_add_u32 s56, s56, s57
    s_add_u32 s56, s56, {FQ}
    s_lshl_b32 s57, s{sWV}, 11
    s_add_u32 s57, s57, {L_XS}
    v_add_u32 v{vXS}, s57, v1""")

    sIT, sTG, sXP = 57, 58, 59
    slow, xts = [], []

    def rd(st, k, part):
        f = FR[k]
        hi, o = (st & 3) >> 1, (st & 1) * SLOT
        L = []
        if part == 0:
            L.append(f'ds_read_b128 {vr(f, 4)}, v{vXR[hi] + k} offset:{o}')
        seg = (1, 2, 0)[part]
        base = vWV[hi] if seg == 2 else vWQ[hi]
        off = o + k * 3072 + seg * 1024
        L.append(f'ds_read_b64_tr_b16 {vr(f + 4 + 4 * seg, 2)}, v{base} offset:{off}')
        L.append(f'ds_read_b64_tr_b16 {vr(f + 6 + 4 * seg, 2)}, v{base} offset:{off + 256}')
        return '\n'.join(L)

    def stage(st):
        for k in range(4):
            f = FR[k]
            fill = ['', '', '']
            a(f's_waitcnt lgkmcnt({8 if k == 0 else 7})')
            if k == 0:
                fill[0] = f'ds_read_b128 {vr(vF, 4)}, v{vLD}'
                fill[2] = f's_add_u32 s{sTG}, s{sIT}, {st + 2}\ns_min_u32 s{sTG}, s{sTG}, s63'
            if k == 1:
                lb, ls = a.lab('GB'), a.lab('GSL')
                fill[0] = f'v_min3_u32 v{vF}, v{vF}, v{vF + 1}, v{vF + 2}\nv_min_u32 v{vF}, v{vF}, v{vF + 3}'
                fill[1] = f'v_readfirstlane_b32 s64, v{vF}\nv_add_u32 v6, {st + 1}, v{vIT}'
                fill[2] = f's_cmp_lt_u32 s64, s{sTG}\ns_cbranch_scc1 {ls}\n{lb}:'
                slow.append((ls, lb))
            if k == 3:
                fill[0] = f'ds_write_b32 v{vPR}, v6'
            if NSLOT == 5 and st == 2 and k < 3:
                for p in (1, 2):
                    fill[p] += f'\nv_subrev_u32 v{vXR[0] + 2 * k + p - 1}, s61, v{vXR[0] + 2 * k + p - 1}'
            if NSLOT == 5 and st == 0 and k < 3:
                for p in (1, 2):
                    fill[p] += f'\nv_subrev_u32 v{vXR[1] + 2 * k + p - 1}, s62, v{vXR[1] + 2 * k + p - 1}'
            if st < XST:
                l, lb2 = a.lab('XT'), a.lab('XTB')
                cin = '0' if (k & 1) == 0 else vr(accT, 16)
                a(f"""s_cmp_eq_u32 s{sXP}, {2 * st + (k >> 1)}
                s_cbranch_scc1 {l}
{lb2}:""")
                xts.append(f"""{l}:
                {MFMA} {vr(accT, 16)}, {vr(f, 4)}, {vr(vID + 4 * (k & 1), 4)}, {cin}
                s_branch {lb2}""")
            n, ns = (k + 2) & 3, st + (k >> 1)
            mf = [f'{MFMA} {vr(accK, 16)}, {vr(f + 8, 4)}, {vr(f, 4)}, {vr(accK, 16)}',
                  f'{MFMA} {vr(accV, 16)}, {vr(f, 4)}, {vr(f + 12, 4)}, {vr(accV, 16)}',
                  f'{MFMA} {vr(accQ, 16)}, {vr(f + 4, 4)}, {vr(f, 4)}, {vr(accQ, 16)}']
            for p in range(3):
                a(mf[p])
                if k in (0, 3) and p == 0:
                    a(fill[p])
                    a(rd(ns, n, p))
                else:
                    a(rd(ns, n, p))
                    a(fill[p])

    if DRY:
        a(f"""s_mov_b32 s{sIT}, 8
        s_mov_b32 s63, 0
        s_mov_b32 s{sXP}, 4
        s_mov_b64 exec, 0
        s_branch L_GS
L_GS_GO:
        s_mov_b64 exec, -1
        s_waitcnt lgkmcnt(0)
        s_nop 7""")
    for i in range(48):
        a(f'v_mov_b32 v{accQ + i}, 0')
    stamp(a, 1)
    a(f's_setprio {GEMM_PRIO}')
    min4_wait(a, vLD, vF, 1, sleep=GSLEEP)
    stamp(a, 2)
    a(f"""s_mov_b32 s{sIT}, 0
    s_mov_b32 s63, 8
    s_mov_b32 s62, 0
    s_mov_b32 s61, {SLOT}
    v_mov_b32 v{vIT}, 0
    s_mov_b32 s{sXP}, s{sP4}""")
    for k in range(2):
        for p in range(3):
            a(rd(0, k, p))
    if 'g0' in DBG or 'g4' in DBG:
        a('s_mov_b32 s86, s66')
    a(f"""ds_write_b32 v{vPR}, v{vIT}
L_GS:""")
    for st in range(4):
        stage(st)
        if 'g0' in DBG or 'g4' in DBG:
            l = a.lab('GST')
            a(f"""s_cmp_lg_u32 s{sIT}, {0 if 'g0' in DBG else 4}
            s_cbranch_scc1 {l}""")
            stamp(a, 5 + st, True)
            a(f'{l}:')
        if st == XST - 1:
            a(f"""s_cmp_lg_u32 s{sIT}, 0
            s_cbranch_scc0 L_GS_XT
L_GS_XTB:""")
    a(f"""s_add_u32 s{sIT}, s{sIT}, 4
    v_mov_b32 v{vIT}, 4
    s_mov_b32 s62, {SLOT}
    s_mov_b32 s61, 0
    s_mov_b32 s{sXP}, 4
    s_cmp_lt_u32 s{sIT}, 8
    s_cbranch_scc1 L_GS""")
    if DRY:
        a(f"""s_cmp_eq_u32 s{sIT}, 12
        s_cbranch_scc1 L_GS_GO""")

    def out_of_line():
        for ls, lb in slow:
            a(f'{ls}:')
            if 'g0' in DBG or 'g4' in DBG:
                a('s_add_u32 s86, s86, 1')
            min4_wait(a, vLD, vF, f's{sTG}', sleep=GSLEEP)
            a(f's_branch {lb}')
        for x in xts:
            a(x)
        a('L_GS_XT:')
        cvt8(a, vID, accT)
        a(f"""ds_write_b128 v{vXS}, {vr(vID, 4)}
        ds_write_b128 v{vXS}, {vr(vID + 4, 4)} offset:1024
        ds_write_b32 v{vPR}, v{vPR} offset:{SY_XS - SY_PR}""")
        stamp(a, 5)
        a('s_branch L_GS_XTB')

    a.deferred.append(out_of_line)
    lds_add(a, SY_FREE, 6, 7)
    a('s_waitcnt lgkmcnt(0)')
    stamp(a, 3)
    a(f"""v_lshl_add_u32 v6, v3, 5, v4
    v_lshlrev_b32 v6, 4, v6
    v_lshrrev_b32 v7, 4, v2
    v_lshlrev_b32 v7, 16, v7
    v_lshl_add_u32 v7, v3, 8, v7
    v_and_b32 v8, 15, v2
    v_lshl_add_u32 v7, v8, 4, v7
    s_lshl_b32 s57, s{sCB}, 17
    s_lshl_b32 s58, s{sTT}, 10
    s_add_u32 s57, s57, s58
    s_add_u32 s59, s57, {KF}
    s_add_u32 s60, s59, 0x10000
    s_add_u32 s61, s57, {VF}
    s_add_u32 s57, s57, {QF}
    s_add_u32 s58, s57, 0x10000
    s_mov_b32 s62, {f32(0.25 * LOG2E)}""")
    cvt8(a, 88, accK)
    a(f"""buffer_store_dwordx4 v[88:91], v6, {WS_}, s59 offen sc1
    buffer_store_dwordx4 v[92:95], v6, {WS_}, s60 offen sc1""")
    cvt8(a, 96, accV)
    a(f"""buffer_store_dwordx4 v[96:99], v7, {WS_}, s61 offen sc1
    buffer_store_dwordx4 v[100:103], v7, {WS_}, s61 offen offset:512 sc1""")
    a('v_mov_b32 v8, s62')
    for i in range(0, 16, 2):
        a(f'v_pk_mul_f32 {vr(accQ + i, 2)}, {vr(accQ + i, 2)}, v[8:9] op_sel:[0,0] op_sel_hi:[1,0]')
    cvt8(a, 80, accQ)
    a(f"""buffer_store_dwordx4 v[80:83], v6, {WS_}, s57 offen sc1
    buffer_store_dwordx4 v[84:87], v6, {WS_}, s58 offen sc1""")
    get_nonce(a, 8, 9)
    group_flag_set(a, SY_Q, 56, 8, 9)
    stamp(a, 4)
    a('s_setprio 0')


CK, CG, CXW, CXR = 136, 152, 132, 133


def cexp(a, dst, lr, li, tau, t, conj=False):
    return [
        [f'v_mul_f32 v{t}, v{lr}, {tau}', f'v_mul_f32 v{t + 1}, v{li}, {tau}'],
        [f'v_exp_f32 v{t}, v{t}', f'v_fract_f32 v{t + 1}, v{t + 1}'],
        [f'v_cos_f32 v{dst}, v{t + 1}', f'v_sin_f32 v{dst + 1}, v{t + 1}'],
        [f'v_mul_f32 v{dst}, v{t}, v{dst}', f'v_mul_f32 v{dst + 1}, {"-" if conj else ""}v{t}, v{dst + 1}'],
    ]


def cmul(dst, x, s, t):
    return [f'v_pk_mul_f32 {vr(t, 2)}, {vr(x, 2)}, {vr(s, 2)} op_sel:[0,0] op_sel_hi:[0,1]',
            f'v_pk_fma_f32 {vr(dst, 2)}, {vr(x, 2)}, {vr(s, 2)}, {vr(t, 2)} op_sel:[1,1,0] op_sel_hi:[1,0,1] neg_lo:[1,0,0]']


def kgen_conv(a):
    sCI, sMH, sCH, sRG, sE, sT = 51, 52, 53, 54, 55, 56
    P = (8, 12)
    vTS, vTX, vTY, vTB = 16, 17, 18, 19
    vEX, vEY, vEB, vRA = 20, 21, 162, 23
    vSC = 24
    vGA = 144
    acc = 48
    SG, SY2, XV, YV, BV, BS = 64, 66, 68, 70, 72, 74
    t0 = 76
    a(f'''L_KGEN:
    s_setprio 2
    s_bfe_u32 s{sCI}, s{sWV}, 0x10001
    s_and_b32 s{sMH}, s{sWV}, 1
    s_and_b32 s{sCH}, s2, 7
    s_lshl_b32 s{sCH}, s{sCH}, 5
    s_lshr_b32 s57, s2, 3
    s_add_u32 s{sCH}, s{sCH}, s57
    s_lshl_b32 s59, s{sCH}, 2
    s_lshl_b32 s{sCH}, s{sCH}, 1
    s_add_u32 s{sCH}, s{sCH}, s{sCI}
    s_lshl_b32 s57, s{sCH}, 8
    s_lshl_b32 s58, s{sMH}, 7
    s_add_u32 s57, s57, s58
    v_lshl_add_u32 v6, v0, 1, s57
    global_load_ushort v8, v6, s[12:13]
    global_load_ushort v9, v6, s[14:15]
    global_load_ushort v10, v6, s[16:17]
    global_load_ushort v11, v6, s[18:19]
    s_load_dword s62, s[20:21], s59
    s_load_dword s63, s[22:23], s59''')
    a(f'''s_setprio {KGEN_PRIO}
    s_mul_i32 s{sRG}, s{sCI}, {CVS}
    s_add_u32 s{sRG}, s{sRG}, {L_CV}
    s_mul_i32 s{sE}, s{sMH}, {CVS // 2}
    s_add_u32 s{sE}, s{sE}, s{sRG}
    s_mul_i32 s{sT}, s{sCI}, 2688
    s_add_u32 s{sT}, s{sT}, {L_T}
    s_mov_b32 s60, 0
    s_mov_b32 s61, -1
    v_mov_b32 v6, {f32(256.0)}
    v_cndmask_b32 v{vTS}, 1.0, v6, s[60:61]
    v_mov_b32 v7, {f32(516.0)}
    v_cndmask_b32 v{vTY}, v6, v7, s[60:61]
    v_cvt_f32_u32 v6, v3
    v_mul_f32 v{vTX}, {f32(512.0)}, v6
    v_mul_f32 v{vTB}, {f32(128.0)}, v6
    v_lshl_add_u32 v6, v2, 2, s{sE}
    v_mul_u32_u24 v7, {4 * EROW}, v3
    v_lshl_add_u32 v{vEX}, v7, 1, v6
    v_add_u32 v{vEY}, v7, v6
    v_add_u32 v{vEY}, {16 * EROW}, v{vEY}
    v_lshl_add_u32 v{vEB}, v7, 2, v6
    v_add_u32 v{vEB + 1}, {32 * EROW}, v{vEB}
    v_add_u32 v{vEB}, {24 * EROW}, v{vEB}
    v_mul_u32_u24 v6, {EROW}, v2
    v_lshl_add_u32 v6, v3, 4, v6
    v_add_u32 v{vRA}, s{sE}, v6''')
    a(f'''v_lshlrev_b32 v6, 3, v2
    v_lshl_add_u32 v6, v3, 2, v6
    v_lshl_add_u32 v{vSC}, v6, 2, s{sT}
    v_lshlrev_b32 v6, 1, v2
    v_add_u32 v7, 384, v6
    v_add_u32 v{t0}, 576, v2
    v_cndmask_b32 v7, v7, v{t0}, s[60:61]
    v_lshl_add_u32 v{vSC + 1}, v7, 2, s{sT}
    v_cndmask_b32 v7, 64, 32, s[60:61]
    v_lshl_add_u32 v{vSC + 2}, v7, 2, v{vSC + 1}
    v_lshl_add_u32 v7, v3, 7, v2
    v_add_u32 v7, 512, v7
    v_lshl_add_u32 v{vSC + 3}, v7, 2, s{sT}
    v_add_u32 v6, 385, v6
    v_lshlrev_b32 v7, 2, v2
    v_add_u32 v7, 256, v7
    v_cndmask_b32 v7, v7, v6, s[60:61]
    v_lshl_add_u32 v{vSC + 4}, v7, 2, s{sT}''')
    a(f's_sub_u32 s57, s{sT}, {0x4280 * 4}')
    for r in range(2):
        a(f'''s_lshl_b32 s58, s{sMH}, 10
        s_sub_u32 s58, {2047 - 512 * r}, s58
        v_lshlrev_b32 v6, 3, v0
        v_sub_u32 v{t0}, s58, v6
        v_cvt_f32_u32 v{t0 + 1}, v{t0}''')
        for e in range(1, 9):
            a(f'v_add_f32 v{t0 + 1 + e}, {f32(-float(e))}, v{t0 + 1}')
        a(f'v_max_f32 v{t0 + 9}, 0, v{t0 + 9}')
        for e in range(0, 9, 2):
            g = vGA + 9 * r + e
            a(f'''v_cvt_pk_bf16_f32 v6, v{t0 + 1 + e}, v{t0 + 2 + e}
            v_and_b32 v7, 0xffff, v6
            v_lshl_add_u32 v{g}, v7, 2, s57''')
            if e < 8:
                a(f'''v_lshrrev_b32 v6, 16, v6
                v_lshl_add_u32 v{g + 1}, v6, 2, s57''')
        if r == 1:
            for e in range(9):
                a(f'v_subrev_u32 v6, {e}, v{t0}')
                if e == 8:
                    a('v_max_i32 v6, 0, v6')
                a(f'''v_min_u32 v6, 0x80, v6
                v_lshl_add_u32 v6, v6, 2, s{sT}
                v_max_i32 v{vGA + 9 + e}, v{vGA + 9 + e}, v6''')
    vA, vB, vA2 = 129, 130, 131
    a(f'''v_and_b32 v7, 1, v4
    v_cmp_eq_u32 vcc, 0, v7
    v_mov_b32 v7, 4158
    v_lshlrev_b32 v6, 1, v4
    v_cndmask_b32 v7, 0, v7, vcc
    v_sub_u32 v7, v7, v6
    v_lshl_add_u32 v7, v3, 4, v7
    v_add_u32 v7, {4094 - 32 * 6}, v7
    s_lshl_b32 s57, s{sMH}, 10
    s_sub_u32 s57, s{sRG}, s57
    v_add_u32 v{vA}, s57, v7
    v_subrev_u32 v{vA2}, 2048, v{vA}
    v_mul_u32_u24 v7, 96, v3
    v_add_u32 v7, v7, v2
    s_lshl_b32 s57, s{sMH}, 8
    s_sub_u32 s57, s{sRG}, s57
    s_add_u32 s57, s57, {L_U + (32 - 3) * 16}
    v_lshl_add_u32 v{vB}, v7, 4, s57''')
    for i in range(16):
        a(f'v_mov_b32 v{acc + i}, 0')
    stamp(a, 1)
    a(f'''s_waitcnt vmcnt(0) lgkmcnt(0)
    s_lshl_b32 s58, s{sCI}, 4
    s_lshr_b32 s62, s62, s58
    s_lshl_b32 s62, s62, 16
    s_lshr_b32 s63, s63, s58
    s_lshl_b32 s63, s63, 16
    s_mov_b32 s59, {f32(LOG2E)}
    v_mov_b32 v6, s62
    v_mul_f32 v6, s59, v6
    v_lshlrev_b32 v8, 16, v8
    v_mul_f32 v8, s59, v8
    v_exp_f32 v6, v6
    v_exp_f32 v8, v8
    v_lshlrev_b32 v9, 16, v9
    v_lshlrev_b32 v10, 16, v10
    v_cvt_pk_bf16_f32 v6, v6, v8
    v_and_b32 v8, 0xffff0000, v6
    v_lshlrev_b32 v6, 16, v6
    v_mul_f32 v8, v8, v6
    v_mul_f32 v8, {f32(-LOG2E)}, v8
    v_mul_f32 v9, v9, v6
    v_mul_f32 v9, 0.15915494, v9
    v_add_f32 v6, v6, v6
    v_lshlrev_b32 v11, 16, v11
    v_mul_f32 v10, v10, v6
    v_mul_f32 v11, -v11, v6
    v_mov_b32 v12, v8
    v_mov_b32 v13, v9
    v_mov_b32 v14, v10
    v_mov_b32 v15, v11
    s_mov_b32 s59, {f32(8.0)}
    v_permlane32_swap_b32 v8, v12
    v_permlane32_swap_b32 v9, v13
    v_permlane32_swap_b32 v10, v14
    v_permlane32_swap_b32 v11, v15''')
    stamp(a, 2)
    if 'park' in DBG:
        a(f'v_mov_b32 v6, {L_SY + SY_FREE}')
        lds_wait(a, 6, 4, 7, sleep=True)
    FA, FBf = 96, 112
    a('''s_mov_b32 s62, 2
L_KP:''')
    if 'kp' in DBG:
        stamp(a, 1)
    for ps in range(1):
        p = P[ps]
        ev = [cexp(a, SG, p, p + 1, f'v{vTS}', t0, True), cexp(a, XV, p, p + 1, f'v{vTX}', t0 + 2, True),
              cexp(a, YV, p, p + 1, f'v{vTY}', t0 + 4, True), cexp(a, BV, p, p + 1, f'v{vTB}', t0 + 6),
              cexp(a, BS, p, p + 1, 's59', t0 + 8)]
        for st in range(4):
            for e in ev:
                for l in e[st]:
                    if ', s59' in l:
                        l = l.replace(f'v{p}, s59', f's59, v{p}').replace(f'v{p + 1}, s59', f's59, v{p + 1}')
                    a(l)
        m = [cmul(XV, XV, p + 2, t0), cmul(YV, YV, p + 2, t0 + 2), cmul(SY2, SG, SG, t0 + 4)]
        for st in range(2):
            for e in m:
                a(e[st])
        a(f'''v_cndmask_b32 v{SY2}, v{SY2}, v{SG}, s[60:61]
        v_cndmask_b32 v{SY2 + 1}, v{SY2 + 1}, v{SG + 1}, s[60:61]''')
        for k in range(16):
            ch = [(BV, BS, vEB + (k >> 3), k & 7, k < 15, 0)]
            if k < 8:
                ch.append((XV, SG, vEX, k, k < 7, 1))
            elif k < 12:
                ch.append((YV, SY2, vEY, k - 8, k < 11, 1))
            for v, s, ad, row, more, j in ch:
                a(f'v_cvt_pk_bf16_f32 v{t0 + 10 + 4 * j + (k & 3)}, v{v}, v{v + 1}')
                if more:
                    a(cmul(v, v, s, t0 + 2 * j)[0])
            for v, s, ad, row, more, j in ch:
                if more:
                    a(cmul(v, v, s, t0 + 2 * j)[1])
                if k & 1:
                    r = t0 + 10 + 4 * j + (k & 3)
                    a(f'ds_write2_b32 v{ad}, v{r - 1}, v{r} offset0:{(row - 1) * EROW // 4} offset1:{row * EROW // 4}')
        a('s_waitcnt lgkmcnt(0)')
        for q in range(4):
            a(f'''ds_read_b128 {vr(FA + 4 * q, 4)}, v{vRA} offset:{q * 32}
            ds_read_b128 {vr(FBf + 4 * q, 4)}, v{vRA} offset:{24 * EROW + q * 32}''')
        for i in range(4):
            a(f'v_mov_b32 v{P[0] + i}, v{P[1] + i}')
        a('''s_sub_u32 s62, s62, 1
        s_cmp_lg_u32 s62, 0''')
        for q in range(4):
            a(f'''s_waitcnt lgkmcnt({6 - 2 * q})
            {MFMA} {vr(acc, 16)}, {vr(FA + 4 * q, 4)}, {vr(FBf + 4 * q, 4)}, {vr(acc, 16)}''')
        a('s_cbranch_scc1 L_KP')
        if KDRY:
            a(f'''s_cmp_lt_u32 s{sWV}, 4
            s_cbranch_scc1 L_KDRY_BACK''')
    stamp(a, 3)
    a(f's_setprio {POST_PRIO}')

    a(f'''s_lshl_b32 s57, s{sCI}, 2
    v_mov_b32 v134, {L_SY + SY_K0}
    v_add_u32 v134, s57, v134
    s_add_u32 s57, s{sRG}, {CVS // 2}
    v_add_u32 v23, s57, v1
    s_cmp_eq_u32 s{sMH}, 0
    s_cbranch_scc1 L_KSUM''')
    for i in range(3):
        a(f'ds_write_b128 v23, {vr(acc + 4 * i, 4)} offset:{i * 1024}')
    a(f"""v_mov_b32 v7, 1
    s_waitcnt lgkmcnt(0)
    s_mov_b64 exec, 1
    ds_add_u32 v134, v7
    s_mov_b64 exec, -1
    v_mov_b32 v25, {L_SY + SY_XS}
    s_lshl_b32 s57, s{sCI}, 4
    v_bfe_u32 v6, v0, 2, 3
    v_add_u32 v6, s57, v6
    v_and_b32 v7, 3, v0
    v_lshl_add_u32 v143, v3, 5, v6
    v_lshlrev_b32 v143, 4, v143
    v_lshl_add_u32 v143, v7, 11, v143
    v_add_u32 v143, {L_XS}, v143
    v_lshlrev_b32 v6, 12, v6
    v_lshl_add_u32 v6, v3, 10, v6
    v_lshl_add_u32 v132, v7, 4, v6
    s_lshl_b32 s62, s{sR}, 1
    s_add_u32 s62, s62, s{sP4}
    s_and_b32 s62, s62, 15
    s_lshl_b32 s58, s62, 17
    s_lshl_b32 s59, s{sRB}, 6
    s_add_u32 s58, s58, s59
    s_add_u32 s58, s58, {XT}
    s_mul_i32 s62, s62, {FS}
    s_lshl_b32 s59, s{sRB}, 2
    s_add_u32 s62, s62, s59
    s_add_u32 s11, s62, {FX}
    s_add_u32 s59, s58, 32768
    s_setprio 0""")
    min4_wait(a, 25, 136, 1)
    if 'ks' in DBG:
        stamp(a, 5, True)
    a(f's_setprio {RELAY_PRIO}')
    for i in range(4):
        a(f'ds_read_b128 {vr(96 + 4 * i, 4)}, v143 offset:{(i & 1) * 1024 + (i >> 1) * 128}')
    for i in range(4):
        a(f"""s_waitcnt lgkmcnt({3 - i})
        buffer_store_dwordx4 {vr(96 + 4 * i, 4)}, v132, {WS_}, s{58 + (i >> 1)} offen offset:{(i & 1) * 2048} sc1""")
    a('s_setprio 0')
    if 'ks' in DBG:
        stamp(a, 6, True)
    get_nonce(a, 6, 7)
    group_flag_set(a, SY_X, 11, 6, 7, 2)
    if 'ks' in DBG:
        stamp(a, 8, True)
    a('''s_branch L_KSIG
L_KSUM:''')
    lds_wait(a, 134, 1, 6, sleep=True)
    for i in range(3):
        a(f'ds_read_b128 {vr(FA + 4 * i, 4)}, v23 offset:{i * 1024}')
    a('s_waitcnt lgkmcnt(0)')
    lds_add(a, SY_TAB, 6, 7)
    for i in range(12):
        a(f'v_add_f32 v{acc + i}, v{acc + i}, v{FA + i}')
    a(f'''ds_write_b128 v{vSC}, {vr(acc, 4)}
    ds_write_b32 v{vSC + 1}, v{acc + 4}
    ds_write_b32 v{vSC + 2}, v{acc + 5}
    ds_write_b32 v{vSC + 3}, v{acc + 6}
    s_mov_b32 exec_hi, 0
    ds_write_b32 v{vSC + 3}, v{acc + 7} offset:128
    ds_write_b128 v{vSC + 4}, {vr(acc + 8, 4)}
    s_not_b64 exec, exec
    ds_write2st64_b32 v{vSC + 4}, v{acc + 8}, v{acc + 9} offset0:0 offset1:1
    s_mov_b64 exec, -1
    v_mov_b32 v7, 1
    s_waitcnt lgkmcnt(0)
    s_mov_b64 exec, 1
    ds_add_u32 v134, v7
    s_mov_b64 exec, -1
L_KSIG:
    ''')
    if 'ks' in DBG:
        stamp(a, 7, True)
    get_nonce(a, 6, 7)
    lds_wait(a, 134, 2, 6, sleep=True)
    if 'ks' in DBG:
        stamp(a, 9, True)
    a('s_setprio 0')

    def gather():
        G0 = 96
        for k in range(18):
            a(f'ds_read_b32 v{G0 + k}, v{vGA + k}')
            if k == 8:
                a('s_waitcnt lgkmcnt(4)')
        a(f'''v_lshl_add_u32 v7, v0, 1, s{sMH}
        v_cmp_eq_u32 vcc, 0x7f, v7
        v_mov_b32 v6, s63
        s_lshl_b32 s57, s{sMH}, 11
        s_add_u32 s57, s57, s{sRG}
        v_cndmask_b32 v6, 0, v6, vcc
        v_add_u32 v135, s57, v1
        s_waitcnt lgkmcnt(0)
        v_add_f32 v{G0 + 16}, v{G0 + 16}, v6
        v_cndmask_b32 v{G0 + 17}, v{G0 + 17}, 0, vcc''')
        lds_add(a, SY_FREE, 6, 7)
        for r in range(2):
            for c in range(2):
                d = 32 + 8 * r + 4 * c
                for i in range(4):
                    a(f'v_cvt_pk_bf16_f32 v{d + i}, v{G0 + 9 * r + c + 2 * i}, v{G0 + 9 * r + c + 2 * i + 1}')
                a(f'ds_write_b128 v135, {vr(d, 4)} offset:{r * 1024 + c * 4160}')
        for i in range(16):
            a(f'v_mov_b32 v{acc + i}, 0')
        a(f'''v_bfe_u32 v6, v0, 2, 1
        v_mul_u32_u24 v6, {4160 - 64}, v6
        v_add_u32 v6, v6, v1
        v_add_u32 v6, s{sRG}, v6
        s_mov_b64 exec, 0xff
        ds_write_b128 v6, {vr(acc, 4)} offset:4096
        s_mov_b64 exec, -1
        v_mul_u32_u24 v6, 96, v3
        v_add_u32 v6, v6, v2
        s_mul_i32 s58, s{sMH}, 3072
        s_add_u32 s58, s58, s{sRG}
        v_lshl_add_u32 v6, v6, 4, s58
        ds_write_b128 v6, {vr(acc, 4)} offset:{L_U}
        ''')
        if 'ks' in DBG:
            stamp(a, 10, True)
    attn_setup(a)

    stamp(a, 4)
    if DEFER:
        a(f'v_mov_b32 v6, {L_SY + SY_FREE}')
        lds_wait(a, 6, 4, 7, sleep=True)
        a(f's_setprio {TAIL_PRIO}')
        if 'cs' in DBG:
            stamp(a, 5, True)
        gather()
        if 'cs' in DBG:
            stamp(a, 6, True)
    for i in range(32):
        a(f'v_mov_b32 v{CK + i}, 0')
    a(f'''v_mov_b32 v134, {L_SY + SY_U}
    v_mov_b32 v7, 1
    s_waitcnt lgkmcnt(0)
    s_mov_b64 exec, 1
    ds_add_u32 v134, v7
    s_mov_b64 exec, -1''')
    if 'cs' in DBG:
        stamp(a, 7, True)
    lds_wait(a, 134, 8, 6, sleep=True)
    stamp(a, 5)
    CF = (32, 48, 96, 112)
    if 'cs' in DBG:
        stamp(a, 9, True)
    a(f"""s_mov_b32 s59, 4
    s_setprio {CONV_PRIO}""")

    def cread(k, part):
        f = CF[k & 3]
        k &= 7
        oa = (7 - k) * 8
        ob = (3 - (k >> 1)) * 16 + (3072 if (k & 1) == 0 else 0)
        if part == 0:
            a(f"""ds_read2_b32 {vr(f, 2)}, v{vA} offset0:{oa} offset1:{oa + 1}
            ds_read2_b32 {vr(f + 2, 2)}, v{vA} offset0:{oa + 2} offset1:{oa + 3}""")
        elif part == 1:
            a(f"""ds_read_b128 {vr(f + 4, 4)}, v{vB} offset:{ob}
            ds_read_b128 {vr(f + 8, 4)}, v{vB} offset:{ob + 512}""")
        else:
            a(f"""ds_read2_b32 {vr(f + 12, 2)}, v{vA2} offset0:{oa} offset1:{oa + 1}
            ds_read2_b32 {vr(f + 14, 2)}, v{vA2} offset0:{oa + 2} offset1:{oa + 3}""")

    a(f"""s_cmp_eq_u32 s{sMH}, 0
    s_cbranch_scc1 L_CV0""")
    for mh in (1, 0):
        acc, ac1 = (CK, CG) if mh == 0 else (CG, CK)
        if mh == 0:
            a('L_CV0:')
        for k in range(2):
            for p in range(3):
                cread(k, p)
        a(f'L_CL{mh}:')
        if 'kp' in DBG:
            stamp(a, 4)
        for k in range(8):
            f = CF[k & 3]
            a(f"""s_waitcnt lgkmcnt(6)
            {MFMA} {vr(acc, 16)}, {vr(f, 4)}, {vr(f + 4, 4)}, {vr(acc, 16)}""")
            cread(k + 2, 0)
            if k == 5:
                a(f'v_subrev_u32 v{vA}, 256, v{vA}')
            a(f'{MFMA} {vr(ac1, 16)}, {vr(f, 4)}, {vr(f + 8, 4)}, {vr(ac1, 16)}')
            cread(k + 2, 1)
            if k == 5:
                a(f'v_subrev_u32 v{vB}, 64, v{vB}')
            a(f'{MFMA} {vr(ac1, 16)}, {vr(f + 12, 4)}, {vr(f + 4, 4)}, {vr(ac1, 16)}')
            cread(k + 2, 2)
            if k == 5:
                a(f"""v_subrev_u32 v{vA2}, 256, v{vA2}
                s_sub_u32 s59, s59, 1
                s_cmp_lg_u32 s59, 0""")
        a(f's_cbranch_scc1 L_CL{mh}')
        if mh == 1:
            a('s_branch L_CV1')
    a('L_CV1:')
    if 'cs' in DBG:
        stamp(a, 10, True)
    a(f"""s_setprio 0
    s_and_b32 s57, s{sWV}, 3
    s_lshl_b32 s57, s57, 12
    s_add_u32 s58, s57, {L_CV}
    v_add_u32 v{CXW}, s58, v1
    s_xor_b32 s57, s57, 4096
    s_add_u32 s58, s57, {L_CV}
    v_add_u32 v{CXR}, s58, v1
    s_lshl_b32 s62, s{sCH}, 12
    s_lshl_b32 s58, s{sMH}, 11
    s_add_u32 s62, s62, s58
    s_add_u32 s62, s62, {BT}
    s_waitcnt lgkmcnt(0)""")
    stamp(a, 6)


Q, Kf, V1 = (4, 8), 12, 16
V0 = (20, 24)
vIX, vK, vV = 28, 29, 30
S = (32, 48)
O, M = (64, 80), (96, 112)
T0 = 128
sQT, sKH, sH = 20, 21, 22


def rowmax(a, src, dst):
    a(f'v_max3_f32 v{dst}, v{src}, v{src + 1}, v{src + 2}')
    for i in range(3, 15, 2):
        a(f'v_max3_f32 v{dst}, v{dst}, v{src + i}, v{src + i + 1}')
    a(f'v_max_f32 v{dst}, v{dst}, v{src + 15}')


def set_m(a, mx, t, m):
    a(f'''v_mov_b32 v{t}, v{mx}
    v_permlane32_swap_b32 v{mx}, v{t}
    v_max_f32 v{mx}, v{mx}, v{t}
    v_sub_f32 v{m}, 0, v{mx}
    v_sub_f32 v{m + 1}, 0, v{mx}''')
    for i in range(2, 16, 2):
        a(f'v_pk_mov_b32 {vr(m + i, 2)}, {vr(m, 2)}, {vr(m, 2)} op_sel:[0,1]')


def attn_setup(a):
    a(f'''s_and_b32 s{sH}, s2, 31
    s_lshr_b32 s{sQT}, s2, 5
    s_lshl_b32 s{sQT}, s{sQT}, 2
    s_and_b32 s23, s{sWV}, 3
    s_add_u32 s{sQT}, s{sQT}, s23
    s_lshl_b32 s{sQT}, s{sQT}, 1
    s_lshr_b32 s{sKH}, s{sWV}, 2
    s_lshl_b32 s24, s{sKH}, 15
    s_lshl_b32 s23, s23, 11
    s_add_u32 s23, s23, {L_T}
    v_mov_b32 v{vIX}, 0xdddd
    v_add_u32 v{vK}, s24, v1
    v_add_u32 v{vK}, {L_K}, v{vK}
    v_and_b32 v{T0}, 15, v2
    v_lshlrev_b32 v{T0}, 4, v{T0}
    v_lshl_add_u32 v{T0}, v3, 8, v{T0}
    s_add_u32 s24, s24, {L_V}
    v_add_u32 v{vV}, s24, v{T0}
    v_cmp_eq_u32 vcc, 16, v2
    v_mov_b32 v{T0}, 0x3f803f80
    s_mov_b32 s12, 0xffff
    s_mov_b32 s13, 0xffff
    v_cndmask_b32 v{V1}, 0, v{T0}, vcc
    v_add_u32 v{T0}, s23, v1''')
    for i in range(1, 12):
        a(f'v_mov_b32 v{V1 + i}, v{V1}')
    for i in range(32):
        a(f'v_mov_b32 v{O[0] + i}, 0')


def attn_loop(a, young):
    if not young:
        attn_setup(a)
    stamp(a, 7)
    a(f'''s_barrier
    ds_read_b128 {vr(Kf, 4)}, v{vK}
    ds_read_b128 {vr(Q[0], 4)}, v{T0}
    ds_read_b128 {vr(Q[1], 4)}, v{T0} offset:1024
    s_mov_b64 exec, s[12:13]
    ds_read_b128 {vr(V0[0], 4)}, v{vV}
    s_mov_b64 exec, -1''')
    stamp(a, 8)
    a(f'''s_waitcnt lgkmcnt(2)
    {MFMA} {vr(S[0], 16)}, {vr(Kf, 4)}, {vr(Q[0], 4)}, 0
    s_waitcnt lgkmcnt(0)
    {MFMA} {vr(S[1], 16)}, {vr(Kf, 4)}, {vr(Q[1], 4)}, 0''')
    if young:
        for i in range(4):
            a(f'ds_write_b128 v{CXW}, {vr(CG + 4 * i, 4)} offset:{i * 1024}')
    rowmax(a, S[0], T0)
    rowmax(a, S[1], T0 + 1)
    set_m(a, T0, T0 + 2, M[0])
    a(f'{MFMA} {vr(S[0], 16)}, {vr(Kf, 4)}, {vr(Q[0], 4)}, {vr(M[0], 16)}')
    set_m(a, T0 + 1, T0 + 2, M[1])
    if young:
        a('s_setprio 1')
    NT = 32
    for u in range(2 * NT):
        t, q = u >> 1, u & 1
        s, sn = S[q], S[q ^ 1]

        def e(i):
            if young and q == 1 and i == 11 and PWIN:
                a('s_setprio 0')
            a(f'v_exp_f32 v{s + i}, v{s + i}')
            if young and q == 1 and i == 10 + PWIN and PWIN:
                a('s_setprio 1')

        if q == 0 and t + 1 in KV_G[:2]:
            if young and t + 1 == KV_G[1]:
                a('s_waitcnt vmcnt(0)')
            a('s_barrier')
            if young and t + 1 == KV_G[0]:
                for i in range(4):
                    a(f'ds_read_b128 {vr(CG + 4 * i, 4)}, v{CXR} offset:{i * 1024}')
        if young and u == 2 * KV_G[0] - 1:
            a('s_waitcnt lgkmcnt(0)')
            for i in range(0, 16, 2):
                a(f'v_pk_add_f32 {vr(CK + i, 2)}, {vr(CK + i, 2)}, {vr(CG + i, 2)}')
            cvt8(a, CG, CK)
            a(f'''buffer_store_dwordx4 {vr(CG, 4)}, v1, {WS_}, s62 offen sc1
            buffer_store_dwordx4 {vr(CG + 4, 4)}, v1, {WS_}, s62 offen offset:1024 sc1''')
        if q == 0 and t + 1 == KV_G[1]:
            stamp(a, 9)
        e(0)
        if q == 1:
            a('s_waitcnt lgkmcnt(0)')
        e(1)
        if u > 0:
            a(f'{SMF} {vr(O[q ^ 1], 16)}, {vr(V1, 4)}, {vr(sn + 8, 8)}, v{vIX}')
        if q == 0:
            a(f'''s_mov_b64 exec, s[12:13]
            ds_read_b128 {vr(V1, 4)}, v{vV} offset:{t * 1024 + 512}''')
            if t + 1 < NT:
                a(f'ds_read_b128 {vr(V0[(t + 1) & 1], 4)}, v{vV} offset:{(t + 1) * 1024}')
            a('s_mov_b64 exec, -1')
        nq = 6 if (q == 0 and t + 1 < NT) else 5
        for i in range(2, nq):
            e(i)
        if u + 1 < 2 * NT:
            a(f'{MFMA} {vr(sn, 16)}, {vr(Kf, 4)}, {vr(Q[q ^ 1], 4)}, {vr(M[q ^ 1], 16)}')
        if q == 0 and t + 1 < NT:
            a(f'ds_read_b128 {vr(Kf, 4)}, v{vK} offset:{(t + 1) * 1024}')
        for i in range(nq, 11):
            e(i)
        a(f'{SMF} {vr(O[q], 16)}, {vr(V0[t & 1], 4)}, {vr(s, 8)}, v{vIX}')
        for i in range(11, 16):
            e(i)
    keep = 1 if young else 0
    give = keep ^ 1
    a(f'''s_mul_i32 s54, s{sWV}, 3072
    s_add_u32 s54, s54, {L_CV}
    {SMF} {vr(O[1], 16)}, {vr(V1, 4)}, {vr(S[1] + 8, 8)}, v{vIX}
    v_add_u32 v{T0}, s54, v1
    s_xor_b32 s54, s{sWV}, 4
    s_mul_i32 s54, s54, 3072
    s_add_u32 s54, s54, {L_CV}
    v_add_u32 v{T0 + 1}, s54, v1
    s_add_u32 s{sQT}, s{sQT}, s{sKH}
    s_lshl_b32 s54, s{sQT}, 5
    s_add_u32 s54, s54, s{sH}
    s_mul_i32 s55, s{sQT}, {FS}
    s_lshl_b32 s56, s{sH}, 2
    s_add_u32 s55, s55, s56
    s_add_u32 s55, s55, {FO}
    s_lshl_b32 s54, s54, 10
    s_add_u32 s54, s54, {OF}
    s_setprio 0''')
    stamp(a, 10)
    a(f'''v_mov_b32 v{O[give] + 9}, v{M[give]}
    ds_write_b128 v{T0}, {vr(O[give], 4)}
    ds_write_b128 v{T0}, {vr(O[give] + 4, 4)} offset:1024
    ds_write_b128 v{T0}, {vr(O[give] + 8, 4)} offset:2048''')
    if young:
        for i in range(9):
            a(f'v_mov_b32 v{O[0] + i}, v{O[1] + i}')
        for i in range(4):
            a(f'v_mov_b32 v{Q[0] + i}, v{Q[1] + i}')
        a(f'v_mov_b32 v{M[0]}, v{M[1]}')


def attn_tail(a):
    X = S[0]
    Oo, Mo = O[0], M[0]
    a(f'''L_ATT_X:
    s_waitcnt lgkmcnt(0)
    s_barrier
    ds_read_b128 {vr(X + 8, 4)}, v{T0 + 1} offset:2048
    ds_read_b128 {vr(X, 4)}, v{T0 + 1}
    ds_read_b128 {vr(X + 4, 4)}, v{T0 + 1} offset:1024
    s_mov_b32 s56, {f32(2.0 ** 60)}
    s_waitcnt lgkmcnt(2)
    v_min_f32 v{T0}, v{Mo}, v{X + 9}
    v_sub_f32 v{T0 + 2}, v{T0}, v{Mo}
    v_sub_f32 v{T0 + 3}, v{T0}, v{X + 9}
    v_exp_f32 v{T0 + 2}, v{T0 + 2}
    v_exp_f32 v{T0 + 3}, v{T0 + 3}
    v_cmp_nlt_f32 vcc, v{Oo + 8}, s56
    v_cmp_nlt_f32 s[58:59], v{X + 8}, s56
    v_mul_f32 v{T0}, v{Oo + 8}, v{T0 + 2}
    v_fma_f32 v{T0}, v{X + 8}, v{T0 + 3}, v{T0}
    s_or_b32 s58, s58, vcc_lo
    v_mov_b32 v{T0 + 1}, v{T0}
    s_cmp_lg_u32 s58, 0
    s_cbranch_scc1 L_REDO
    v_permlane32_swap_b32 v{T0}, v{T0 + 1}
    v_rcp_f32 v{T0}, v{T0}
    s_waitcnt lgkmcnt(0)
    v_mul_f32 v{T0 + 2}, v{T0 + 2}, v{T0}
    v_mul_f32 v{T0 + 3}, v{T0 + 3}, v{T0}''')
    for i in range(0, 8, 2):
        a(f'v_pk_mul_f32 {vr(Oo + i, 2)}, {vr(Oo + i, 2)}, {vr(T0 + 2, 2)} op_sel:[0,0] op_sel_hi:[1,0]')
    for i in range(0, 8, 2):
        a(f'v_pk_fma_f32 {vr(Oo + i, 2)}, {vr(X + i, 2)}, {vr(T0 + 2, 2)}, {vr(Oo + i, 2)} op_sel:[0,1,0] op_sel_hi:[1,1,1]')
    a('L_FIN:')
    cvt8(a, X, Oo, 4)
    a(f'buffer_store_dwordx4 {vr(X, 4)}, v1, {WS_}, s54 offen sc1')
    flag_set(a, 55, T0, T0 + 1)
    stamp(a, 11)
    stamp_flush(a)
    a('s_endpgm')
    a(f'''L_REDO:
    s_waitcnt lgkmcnt(0)
    v_mov_b32 v{T0}, 0xff800000
    v_add_u32 v{T0 + 2}, {L_K}, v1
    s_mov_b32 s57, 64
L_R1:
    ds_read_b128 {vr(Kf, 4)}, v{T0 + 2}
    v_add_u32 v{T0 + 2}, 1024, v{T0 + 2}
    s_waitcnt lgkmcnt(0)
    {MFMA} {vr(S[0], 16)}, {vr(Kf, 4)}, {vr(Q[0], 4)}, 0''')
    rowmax(a, S[0], T0 + 1)
    a(f'''v_max_f32 v{T0}, v{T0}, v{T0 + 1}
    s_sub_u32 s57, s57, 1
    s_cmp_lg_u32 s57, 0
    s_cbranch_scc1 L_R1''')
    set_m(a, T0, T0 + 1, Mo)
    for i in range(16):
        a(f'v_mov_b32 v{Oo + i}, 0')
    a(f'''v_add_u32 v{T0 + 2}, {L_K}, v1
    s_lshl_b32 s57, s{sKH}, 15
    v_subrev_u32 v{T0 + 3}, s57, v{vV}
    s_mov_b32 s57, 64
L_R2:
    ds_read_b128 {vr(Kf, 4)}, v{T0 + 2}
    s_mov_b64 exec, s[12:13]
    ds_read_b128 {vr(V0[0], 4)}, v{T0 + 3}
    ds_read_b128 {vr(V1, 4)}, v{T0 + 3} offset:512
    s_mov_b64 exec, -1
    v_add_u32 v{T0 + 2}, 1024, v{T0 + 2}
    v_add_u32 v{T0 + 3}, 1024, v{T0 + 3}
    s_waitcnt lgkmcnt(0)
    {MFMA} {vr(S[0], 16)}, {vr(Kf, 4)}, {vr(Q[0], 4)}, {vr(Mo, 16)}''')
    for i in range(16):
        a(f'v_exp_f32 v{S[0] + i}, v{S[0] + i}')
    a(f'''{SMF} {vr(Oo, 16)}, {vr(V0[0], 4)}, {vr(S[0], 8)}, v{vIX}
    {SMF} {vr(Oo, 16)}, {vr(V1, 4)}, {vr(S[0] + 8, 8)}, v{vIX}
    s_sub_u32 s57, s57, 1
    s_cmp_lg_u32 s57, 0
    s_cbranch_scc1 L_R2
    s_nop 9
    v_mov_b32 v{T0}, v{Oo + 8}
    v_mov_b32 v{T0 + 1}, v{Oo + 8}
    v_permlane32_swap_b32 v{T0}, v{T0 + 1}
    v_rcp_f32 v{T0}, v{T0}''')
    for i in range(8):
        a(f'v_mul_f32 v{Oo + i}, v{Oo + i}, v{T0}')
    a('s_branch L_FIN')


def aux(a):
    sC, sROW = 51, 53
    vGX, vGW, vWO, vID, D2 = 16, 24, 28, 36, 44
    vWD, vXD, vLD, vPR, vF = 5, 8, 12, 13, 60
    vm = VM(a)
    a(f"""L_AUX:
    s_setprio {LOAD_PRIO}
    s_and_b32 s{sC}, s{sWV}, 3
    v_lshrrev_b32 v{vWD}, 2, v0
    v_mul_u32_u24 v{vWD}, 3072, v{vWD}
    v_and_b32 v6, 3, v0
    v_lshl_add_u32 v{vWD}, v6, 4, v{vWD}
    s_lshl_b32 s54, s{sCB}, 6
    s_mul_i32 s55, s{sC}, 49152
    s_add_u32 s54, s54, s55
    s_mul_i32 s55, s{sC}, 3072
    s_add_u32 s55, s55, {L_K}
    s_lshl_b32 s56, s{sRB}, 2
    s_add_u32 s56, s56, s{sC}
    s_lshl_b32 s56, s56, 15
    s_lshl_b32 s57, s{sC}, 12
    s_add_u32 s57, s57, {L_K + 12288}
    s_mov_b32 s58, s{sR}
    v_lshrrev_b32 v6, 4, v0
    v_and_b32 v7, 7, v0
    v_xor_b32 v6, v6, v7
    v_lshlrev_b32 v6, 4, v6
    v_lshrrev_b32 v7, 3, v0
    v_lshl_add_u32 v{vXD}, v7, 10, v6
    v_xor_b32 v{vXD + 1}, 64, v{vXD}
    v_add_u32 v{vXD + 2}, {2 * 7168}, v{vXD}
    v_add_u32 v{vXD + 3}, {3 * 7168}, v{vXD + 1}
    v_add_u32 v{vXD + 1}, 7168, v{vXD + 1}""")
    srd(a, sW, 6, 0x180000)
    a(f"""v_mov_b32 v14, 0
    v_mov_b32 v15, {L_SY + SY_NONCE}
    s_mov_b32 s{sNON}, 0
    s_lshl_b32 s59, s2, 4
    s_add_u32 s59, s59, s{sWV}
    s_cmp_lg_u32 s59, 8
    s_cbranch_scc1 L_TAG_MADE
    s_memrealtime s[60:61]
    s_waitcnt lgkmcnt(0)
    s_mul_i32 s60, s60, 0x9e3779b1
    s_or_b32 s60, s60, 1
    v_mov_b32 v7, s60
    s_mov_b64 exec, 1
    global_store_dword v14, v7, s[30:31] sc1
    s_mov_b64 exec, -1
L_TAG_MADE:""")

    def landed(st, tag=True):
        vm.wait(st)
        a(f"""v_mov_b32 v6, {st + 1}
        ds_write_b32 v{vLD}, v6""")
        if tag and st in TAG_ST:
            l = a.lab('TG')
            a(f"""v_readfirstlane_b32 s61, v{16 + st}
            s_or_b32 s{sNON}, s{sNON}, s61
            s_cmp_eq_u32 s61, 0
            s_cbranch_scc1 {l}
            ds_write_b32 v15, v{16 + st}
{l}:""")

    for st in range(8):
        if 'st' in DBG and st < 3:
            stamp(a, 7 + st, True)
        if st == 1:
            a(f"""s_lshl_b32 s59, s{sC}, 2
            s_add_u32 s59, s59, {L_SY + SY_LD}
            v_mov_b32 v{vLD}, s59
            v_mov_b32 v{vPR}, {L_SY + SY_PR}""")
        slot = (st if st < 4 else st - NSLOT) * SLOT
        if st >= NSLOT and ADAPT:
            l = a.lab('FR')
            a(f"""ds_read_b128 {vr(vF, 4)}, v{vPR}
            s_waitcnt lgkmcnt(0)
            v_min3_u32 v{vF}, v{vF}, v{vF + 1}, v{vF + 2}
            v_min_u32 v{vF}, v{vF}, v{vF + 3}
            s_nop 0
            v_readfirstlane_b32 s64, v{vF}
            s_cmp_ge_u32 s64, {st - NSLOT + 1}
            s_cbranch_scc1 {l}""")
            landed(st - 1, tag=False)
            min4_wait(a, vPR, vF, st - NSLOT + 1)
            a(f'{l}:')
        elif st >= NSLOT:
            min4_wait(a, vPR, vF, st - NSLOT + 1)
        elif st == 4:
            a(f'v_mov_b32 v6, {L_SY + SY_TAB}')
            lds_wait(a, 6, 2, 7, sleep=True)
        if st in TAG_ST:
            vm.issue(st, f'global_load_dword v{16 + st}, v14, s[30:31] sc1')
        a(f"""s_mul_i32 s59, s58, 196608
        s_add_u32 s59, s59, s54
        s_add_u32 m0, s55, {slot}
        s_lshl_b32 s60, s58, 7""")
        for sg in range(3):
            vm.issue(st, f'buffer_load_dwordx4 v{vWD}, {W_}, s59 offen offset:{sg * 1024} lds')
        a(f"""s_add_u32 m0, s57, {slot}
        s_add_u32 s60, s60, s56""")
        for q in range(4):
            vm.issue(st, f'buffer_load_dwordx4 v{vXD + q}, {X_}, s60 offen offset:{q * 1024} lds')
        a("""s_add_u32 s58, s58, 1
        s_and_b32 s58, s58, 7""")
        order = {2: [0], 3: [1, 2]}.get(st, [st - 1] if st >= 4 else []) if LAG == 2 else [st - 1] if st else []
        for k in order:
            landed(k)
            if 'gs' in DBG:
                stamp(a, 5 + k, True)
    landed(7)
    a(f"""s_setprio 0
    s_mov_b32 s65, {SPIN_G}
L_TAG_P:
    s_cmp_lg_u32 s{sNON}, 0
    s_cbranch_scc1 L_TAG_OK
    global_load_dword v16, v14, s[30:31] sc1
    s_waitcnt vmcnt(0)
    v_readfirstlane_b32 s{sNON}, v16
    s_sub_u32 s65, s65, 1
    s_cbranch_scc0 L_TAG_P
    s_mov_b32 s{sNON}, 1
L_TAG_OK:
    v_mov_b32 v16, s{sNON}
    ds_write_b32 v15, v16""")
    stamp(a, 1)
    a(f"""s_and_b32 s60, s2, 7
    s_lshl_b32 s60, s60, 5
    s_lshr_b32 s61, s2, 3
    s_add_u32 s60, s60, s61
    s_lshr_b32 s57, s60, 4
    s_mul_i32 s57, s57, {FS}
    s_add_u32 s57, s57, {FX}
    s_lshl_b32 s60, s60, 13
    s_lshl_b32 s61, s{sC}, 11
    s_add_u32 s60, s60, s61
    s_add_u32 s60, s60, {XT}
    s_lshr_b32 s61, s{sC}, 1
    s_mul_i32 s61, s61, {CVS}
    s_and_b32 s62, s{sC}, 1
    s_mul_i32 s62, s62, 3072
    s_add_u32 s61, s61, s62
    v_and_b32 v5, 15, v0
    v_lshlrev_b32 v5, 2, v5""")
    relay_wait(a, 8, SY_XOK, lambda: flag_wait(a, 5, 57, 7), 6, 7)
    a(f'v_mov_b32 v6, {L_SY + SY_TAB}')
    lds_wait(a, 6, 2, 7, sleep=True)
    if NSLOT == 5:
        min4_wait(a, vPR, vF, 5)
    a(f"""s_add_u32 m0, s61, {L_CV + L_U + 512}
    s_nop 0
    buffer_load_dwordx4 v1, {WS_}, s60 offen sc1 lds
    s_add_u32 m0, s61, {L_CV + L_U + 1024}
    s_nop 0
    buffer_load_dwordx4 v1, {WS_}, s60 offen offset:1024 sc1 lds""")
    vGX, vGW, vWO, vID, D2 = 146, 154, 158, 8, 112

    def side_loads():
        if 'ws' in DBG:
            stamp(a, 5, True)
        a(f"""s_cmp_lg_u32 s{sWV}, 11
        s_cbranch_scc1 L_NOWO1
        s_lshr_b32 s60, s2, 4
        s_lshl_b32 s60, s60, 15
        s_and_b32 s61, s2, 15
        s_lshl_b32 s61, s61, 6
        s_add_u32 s60, s60, s61
        v_lshlrev_b32 v6, 10, v2
        v_lshl_add_u32 v6, v3, 4, v6
        v_add_u32 v6, s60, v6
        global_load_dwordx4 {vr(vWO, 4)}, v6, s[8:9]
        global_load_dwordx4 {vr(vWO + 4, 4)}, v6, s[8:9] offset:32
L_NOWO1:
        s_lshl_b32 s4, s{sRB}, 7
        s_lshl_b32 s60, s{sCB}, 3
        s_add_u32 s4, s4, s60
        s_and_b32 s60, s{sWV}, 3
        s_lshl_b32 s60, s60, 1
        s_add_u32 s4, s4, s60
        s_lshl_b32 s60, s4, 10
        buffer_load_dwordx4 {vr(vGX, 4)}, v1, {X_}, s60 offen
        buffer_load_dwordx4 {vr(vGX + 4, 4)}, v1, {X_}, s60 offen offset:1024
        global_load_dwordx4 {vr(vGW, 4)}, v1, s[24:25]""")

    def side_work(n):
        if 'ws' in DBG:
            stamp(a, 6, True)
        a(f"""v_mov_b32 v144, 0
        v_mov_b32 v145, 0
        s_waitcnt vmcnt({n})""")
        if 'ws' in DBG:
            stamp(a, 7, True)
        for i in range(4):
            a(f"""v_dot2_f32_bf16 v144, v{vGX + i}, v{vGW + i}, v144
            v_dot2_f32_bf16 v145, v{vGX + 4 + i}, v{vGW + i}, v145""")
        a('s_nop 2')
        for d in ('row_shr:1', 'row_shr:2', 'row_shr:4', 'row_shr:8', 'row_bcast:15 row_mask:0xa', 'row_bcast:31 row_mask:0xc'):
            a(f"""v_add_f32_dpp v144, v144, v144 {d}
            v_add_f32_dpp v145, v145, v145 {d}""")
        a(f"""v_mul_f32 v144, {f32(-LOG2E)}, v144
        v_mul_f32 v145, {f32(-LOG2E)}, v145
        v_exp_f32 v144, v144
        v_exp_f32 v145, v145
        v_add_f32 v144, 1.0, v144
        v_add_f32 v145, 1.0, v145
        v_rcp_f32 v144, v144
        v_rcp_f32 v145, v145
        s_lshl_b32 s4, s4, 2
        s_add_u32 s4, s4, {GG}
        v_mov_b32 v{vGX}, 0
        s_mov_b32 exec_lo, 0
        s_brev_b32 exec_hi, 1
        buffer_store_dwordx2 v[144:145], v{vGX}, {WS_}, s4 offen sc1
        s_mov_b64 exec, -1
        s_cmp_lg_u32 s{sWV}, 11
        s_cbranch_scc1 L_NOWO2""")
        if 'ws' in DBG:
            stamp(a, 8, True)
        if 'ws' in DBG:
            stamp(a, 9, True)

        a(f"""{MFMA} {vr(D2, 16)}, {vr(vWO, 4)}, {vr(vID, 4)}, 0
        {MFMA} {vr(D2, 16)}, {vr(vWO + 4, 4)}, {vr(vID + 4, 4)}, {vr(D2, 16)}
        v_lshl_add_u32 v6, v3, 5, v4
        v_lshlrev_b32 v6, 4, v6
        s_and_b32 s60, s2, 15
        s_lshl_b32 s60, s60, 15
        s_lshr_b32 s61, s2, 4
        s_lshl_b32 s61, s61, 11
        s_add_u32 s60, s60, s61
        s_add_u32 s60, s60, {WOF}""")
        cvt8(a, vWO, D2)
        if 'ws' in DBG:
            stamp(a, 10, True)
        a(f"""buffer_store_dwordx4 {vr(vWO, 4)}, v6, {WS_}, s60 offen sc1
        buffer_store_dwordx4 {vr(vWO + 4, 4)}, v6, {WS_}, s60 offen offset:1024 sc1
L_NOWO2:""")

    if not LATE_W:
        side_loads()
    identity_frags(a, vID, 2, 3, 6, 7, 12)
    if not LATE_W:
        side_work(0)
    a('s_waitcnt vmcnt(0)')
    lds_add(a, SY_U, 6, 7)
    sG, sL = 54, 55
    vm = VM(a)
    a(f'''s_and_b32 s56, s2, 31
    s_lshr_b32 s57, s56, 1
    s_mul_i32 s57, s57, {FS}
    s_add_u32 s57, s57, {FQ}
    s_lshl_b32 s56, s56, 16
    s_lshr_b32 s58, s{sC}, 1
    s_lshl_b32 s58, s58, 15
    s_and_b32 s59, s{sC}, 1
    s_lshl_b32 s{sL}, s59, 16
    s_add_u32 s{sL}, s{sL}, s58
    s_add_u32 s{sL}, s{sL}, {L_K}
    s_mul_i32 s{sG}, s59, {VF - KF}
    s_add_u32 s{sG}, s{sG}, s58
    s_add_u32 s{sG}, s{sG}, s56
    s_add_u32 s{sG}, s{sG}, {KF}
    s_lshr_b32 s58, s2, 5
    s_lshl_b32 s58, s58, 2
    s_add_u32 s58, s58, s{sC}
    s_lshl_b32 s58, s58, 11
    s_add_u32 s56, s56, s58
    s_add_u32 s56, s56, {QF}
    v_mov_b32 v6, {L_SY + SY_FREE}
    v_and_b32 v5, 15, v0
    v_lshlrev_b32 v5, 2, v5''')
    lds_wait(a, 6, 8, 7, sleep=True)
    stamp(a, 3)

    def poll_q():
        a(f'v_mov_b32 v16, {L_SY + SY_Q}')
        lds_wait(a, 16, 4, 7, sleep=True)
        if FAST:
            flag_wait_fast(a, 5, 57, 18)
        else:
            flag_wait(a, 5, 57, 7)

    relay_wait(a, 8, SY_QOK, poll_q, 6, 7)
    a('s_waitcnt vmcnt(0)')
    stamp(a, 4)
    a(f'''s_lshl_b32 s58, s{sC}, 11
    s_add_u32 m0, s58, {L_T}
    s_nop 0''')
    for i in range(2):
        vm.issue('q', f'buffer_load_dwordx4 v1, {WS_}, s56 offen offset:{i * 1024} sc1 lds')

    def kv(t0, t1):
        for t in range(t0, t1):
            if t == t0 or t % 4 == 0:
                a(f'''s_add_u32 m0, s{sL}, {(t & ~3) * 1024}
                s_add_u32 s58, s{sG}, {(t & ~3) * 1024}''')
            vm.issue(t, f'buffer_load_dwordx4 v1, {WS_}, s58 offen offset:{(t & 3) * 1024} sc1 lds')

    kv(0, KV_G[1])
    vm.wait(KV_G[0] - 1)
    a('''s_setprio 3
    s_barrier''')
    stamp(a, 5)
    kv(KV_G[1], KV_G[2])
    vm.wait(KV_G[1] - 1)
    a('s_barrier')
    if LATE_W:
        side_loads()
    kv(KV_G[2], 32)
    if LATE_W:
        side_work(32 - KV_G[2])
    a(f'''s_lshl_b32 s4, s2, 2
    s_add_u32 s4, s4, {FW}''')
    if 'ws' in DBG:
        stamp(a, 11, True)
    a('s_waitcnt vmcnt(0)')
    stamp(a, 2)
    a(f'''s_barrier
    s_cmp_lg_u32 s{sWV}, 8
    s_cbranch_scc1 L_SIDE_SET''')
    flag_set(a, 4, 6, 7)
    a('L_SIDE_SET:')
    stamp(a, 6)

    a('s_setprio 3')
    sT3, sC3 = 52, 53
    vG, vOA, BTM, acc, FR, WO = 5, 6, 8, 16, (32, 36), 40
    a(f'''s_setprio 3
    s_and_b32 s{sT3}, s2, 7
    s_lshl_b32 s{sT3}, s{sT3}, 3
    s_bfe_u32 s54, s2, 0x30003
    s_add_u32 s{sT3}, s{sT3}, s54
    s_lshr_b32 s{sC3}, s2, 6
    s_mov_b32 s54, {FW}
    ''')

    def poll_w():
        flag_wait(a, 1, 54, acc, n=4, sleep=8)

    relay_wait(a, 8, SY_WOK, poll_w, 6, 7)
    a(f"""s_lshl_b32 s56, s2, 4
    s_add_u32 s56, s56, s{sWV}
    s_cmp_lg_u32 s56, 8
    s_cbranch_scc1 L_TAG_KEEP
    v_mov_b32 v6, 0
    s_mov_b64 exec, 1
    global_store_dword v6, v6, s[30:31] sc1
    s_mov_b64 exec, -1
L_TAG_KEEP:""")
    vBT, vI3, accb = FR[0], BTM, acc
    a(f"""s_lshl_b32 s{sC3}, s{sC3}, 2
    s_add_u32 s{sC3}, s{sC3}, s{sC}
    v_lshlrev_b32 v6, 12, v4
    v_lshl_add_u32 v6, v3, 9, v6
    s_lshl_b32 s54, s{sC3}, 17
    s_lshr_b32 s55, s{sT3}, 5
    s_lshl_b32 s55, s55, 11
    s_add_u32 s54, s54, s55
    s_and_b32 s55, s{sT3}, 31
    s_lshl_b32 s55, s55, 4
    s_add_u32 s54, s54, s55
    s_add_u32 s54, s54, {BT}
    s_lshl_b32 s55, s{sT3}, 7
    s_add_u32 s55, s55, {GG}
    v_lshlrev_b32 v7, 2, v2
    buffer_load_dwordx4 {vr(vBT, 4)}, v6, {WS_}, s54 offen sc1
    buffer_load_dwordx4 {vr(vBT + 4, 4)}, v6, {WS_}, s54 offen offset:1024 sc1
    buffer_load_dword v{vG}, v7, {WS_}, s55 offen sc1
    s_lshl_b32 s54, s{sC3}, 15
    s_add_u32 s54, s54, {WOF}""")
    for k in range(32):
        if k and k % 4 == 0:
            a('s_add_u32 s54, s54, 4096')
        a(f'buffer_load_dwordx4 {vr(WO + 4 * k, 4)}, v1, {WS_}, s54 offen offset:{(k & 3) * 1024} sc1')
    a(f"""s_waitcnt vmcnt(32)
    {MFMA} {vr(accb, 16)}, {vr(vBT, 4)}, {vr(vI3, 4)}, 0
    {MFMA} {vr(accb, 16)}, {vr(vBT + 4, 4)}, {vr(vI3 + 4, 4)}, {vr(accb, 16)}
    v_sub_f32 v7, 1.0, v{vG}
    v_lshlrev_b32 v{vOA}, 10, v2
    v_lshl_add_u32 v{vOA}, v3, 4, v{vOA}""")
    for i in range(0, 16, 2):
        a(f'v_pk_mul_f32 {vr(accb + i, 2)}, {vr(accb + i, 2)}, v[6:7] op_sel:[0,1] op_sel_hi:[1,1]')
    cvt8(a, BTM, accb)
    a(f'''s_mul_i32 s54, s{sT3}, {FS}
    s_add_u32 s54, s54, {FO}
    s_lshl_b32 s55, s{sT3}, 15
    s_add_u32 s55, s55, {OF}
    s_lshl_b32 s56, s{sC}, 10
    s_add_u32 s55, s55, s56
    s_lshl_b32 s57, s{sT3}, 15
    s_lshl_b32 s58, s{sC3}, 6
    s_add_u32 s57, s57, s58
    v_lshlrev_b32 v7, 2, v2''')
    if OUT_LDS:
        a(f'''s_mul_i32 s58, s{sC}, 2560
        s_add_u32 s58, s58, {L_V}
        v_mul_u32_u24 v2, 80, v2
        v_lshl_add_u32 v2, v3, 4, v2
        v_add_u32 v2, s58, v2
        v_lshrrev_b32 v{vOA}, 2, v0
        v_and_b32 v0, 3, v0
        v_mul_u32_u24 v3, 80, v{vOA}
        v_lshl_add_u32 v3, v0, 4, v3
        v_add_u32 v3, s58, v3
        v_lshlrev_b32 v{vOA}, 10, v{vOA}
        v_lshl_add_u32 v{vOA}, v0, 4, v{vOA}''')
    srd(a, sOUT, 28, 0x200000)
    stamp(a, 7)
    a('''s_barrier
    s_barrier''')
    stamp(a, 8)
    a(f'''s_cmp_lg_u32 s{sWV}, 8
    s_cbranch_scc1 L_OWAIT''')
    if FAST:
        a('s_waitcnt vmcnt(0)')
        flag_wait_fast(a, 7, 54, FR[0])
    else:
        flag_wait(a, 7, 54, FR[0], n=1, sleep=OSLEEP)
    a('''L_OWAIT:
    s_waitcnt vmcnt(0)
    s_barrier''')
    stamp(a, 9)
    for i in range(8):
        a(f'''s_add_u32 m0, s56, {L_K + i * 4096}
        s_nop 0
        buffer_load_dwordx4 v1, {WS_}, s55 offen sc1 lds
        s_add_u32 s55, s55, 4096''')
    for c in range(4):
        a(f'''s_waitcnt vmcnt({6 - 2 * c})
        s_barrier
        ds_read_b128 {vr(FR[0], 4)}, v1 offset:{L_K + 8 * c * 1024}''')
        for k in range(8 * c, 8 * c + 8):
            if k + 1 < 8 * c + 8:
                a(f'''ds_read_b128 {vr(FR[(k + 1) & 1], 4)}, v1 offset:{L_K + (k + 1) * 1024}
                s_waitcnt lgkmcnt(1)''')
            else:
                a('s_waitcnt lgkmcnt(0)')
            a(f'{MFMA} {vr(acc, 16)}, {vr(WO + 4 * k, 4)}, {vr(FR[k & 1], 4)}, {vr(acc, 16) if k else 0}')
    stamp(a, 10)
    for i in range(8):
        a(f'''v_lshlrev_b32 v{WO + 2 * i}, 16, v{BTM + i}
        v_and_b32 v{WO + 2 * i + 1}, 0xffff0000, v{BTM + i}''')
    for i in range(0, 16, 2):
        a(f'v_pk_fma_f32 {vr(acc + i, 2)}, {vr(acc + i, 2)}, v[4:5], {vr(WO + i, 2)} op_sel:[0,1,0] op_sel_hi:[1,1,1]')
    cvt8(a, BTM, acc)
    if OUT_LDS:
        a(f'''ds_write_b128 v2, {vr(BTM, 4)}
        ds_write_b128 v2, {vr(BTM + 4, 4)} offset:32
        s_add_u32 s58, s57, 16384
        s_waitcnt lgkmcnt(0)
        ds_read_b128 {vr(BTM, 4)}, v3
        ds_read_b128 {vr(BTM + 4, 4)}, v3 offset:{16 * 80}
        s_waitcnt lgkmcnt(1)
        buffer_store_dwordx4 {vr(BTM, 4)}, v{vOA}, {OUT_}, s57 offen {OUTF}
        s_waitcnt lgkmcnt(0)
        buffer_store_dwordx4 {vr(BTM + 4, 4)}, v{vOA}, {OUT_}, s58 offen {OUTF}''')
    else:
        a(f'''buffer_store_dwordx4 {vr(BTM, 4)}, v{vOA}, {OUT_}, s57 offen {OUTF}
        buffer_store_dwordx4 {vr(BTM + 4, 4)}, v{vOA}, {OUT_}, s57 offen offset:32 {OUTF}''')
    stamp(a, 11)
    stamp_flush(a)
    a('''L_END:
    s_endpgm''')


def kernel(a):
    prologue(a)
    gemm(a)
    attn_loop(a, False)
    a('s_branch L_ATT_X')
    for f in a.deferred:
        f()
    kgen_conv(a)
    attn_loop(a, True)
    attn_tail(a)
    aux(a)


def build():
    here = os.path.dirname(os.path.abspath(__file__))
    ref = open(os.path.join(here, '..', 'cdna_kernels', NAME + '.s.ref')).read().split('\n')
    head = [l for l in ref if l.startswith(';') and 'launch' not in l.lower() and 'lds=0' not in l]
    out = '\n'.join(head) + '\n'
    name = NAME + '_kernel'
    out += f'; @launch grid=(256,1,1) block=(768,1,1) lds={LDS_BYTES}\n'
    out += '.amdgcn_target "amdgcn-amd-amdhsa--gfx950"\n.text\n'
    a = Gen()
    kernel(a)
    bad = a.check_branches()
    if bad:
        for b in bad:
            print('BRANCH HAZARD', b, file=sys.stderr)
        sys.exit(1)
    if ENV('SHOWPAD'):
        for p in a.padded:
            print('pad', p, file=sys.stderr)
    out += f'.globl {name}\n.p2align 8\n.type {name},@function\n{name}:\n' + a.text()
    out += f'''.section .rodata,"a"
.p2align 6
.amdhsa_kernel {name}
  .amdhsa_next_free_vgpr 168
  .amdhsa_next_free_sgpr 100
  .amdhsa_accum_offset 168
  .amdhsa_group_segment_fixed_size 0
  .amdhsa_kernarg_size 112
  .amdhsa_user_sgpr_count 2
  .amdhsa_user_sgpr_kernarg_segment_ptr 1
  .amdhsa_system_sgpr_workgroup_id_x 1
.end_amdhsa_kernel
'''
    return out


if __name__ == '__main__':
    dst = sys.argv[1] if len(sys.argv) > 1 else os.path.join(os.path.dirname(os.path.abspath(__file__)), '..', 'cdna_kernels', NAME + '.s')
    open(dst, 'w').write(build())
    print('wrote', dst)
```

```python
import sys, os, struct
sys.path.insert(0, os.path.dirname(os.path.abspath(__file__)))
from asmlib import Asm, vr, sr

NAME = 'gated_mix__softmax_full_mha__ssm_conv_s4d__prompt'
ENV = os.environ.get
STAMP = bool(ENV('STAMP'))

RSTRIDE = 0x210000
QF, KF, VF, OF, XT, BT, WOF = (0x10000 + i * RSTRIDE for i in range(7))
GG = WOF + 0x80000
FRAGT = True
FS = 0x1100
FX = GG + 0x10000
FQ, FW, FO = FX + 16 * FS, FX + 32 * FS, FX + 33 * FS
FSH = int(ENV('FSH', 7))
STAMPS = 0xF20000
WS_BYTES = 0x1200000 if STAMP else 0xE00000
TOUCH = int(ENV('TOUCH', 0))

SLOT = 28672
L_CV = 0
CVS = 16128
L_K = 2 * CVS
L_V = L_K + 65536
L_XS = L_K + 114688
L_T = L_K + 122880
EROW = 144
L_U = 8320
L_SY = L_K + 131072
NSLOT = int(ENV('NSLOT', 4))
SY_LD, SY_PR, SY_NONCE, SY_FREE, SY_K0, SY_K1, SY_K2 = 0, 16, 32, 36, 40, 48, 56
SY_X, SY_Q, SY_TAB, SY_U, SY_XOK, SY_QOK, SY_WOK, SY_W, SY_XS, SY_DONE, SY_OOK = 64, 68, 72, 76, 80, 84, 88, 92, 96, 112, 116
LDS_BYTES = 163840

LOG2E = 1.4426950408889634
MFMA = 'v_mfma_f32_32x32x16_bf16'
SMF = 'v_smfmac_f32_32x32x32_bf16'
SPIN = 0x40000
SPIN_G = 0x8000

sWV, sX, sW, sWS, sOUT, sRB, sCB, sNON, sR, sP4 = 3, 32, 36, 40, 44, 48, 49, 50, 10, 97
X_, W_, WS_, OUT_ = (f's[{b}:{b + 3}]' for b in (sX, sW, sWS, sOUT))

KV_G = [int(x) for x in ENV('KVG', '2,10,22').split(',')]
PWIN = int(ENV('PWIN', 4))
CONV_PRIO = int(ENV('CPRIO', 0))
GEMM_PRIO = int(ENV('GPRIO', 1))
ROT = int(ENV('ROT', 9))
PSLEEP = int(ENV('PSLEEP', 1))
DBG = ENV('DBG', '')
SIDE_PRE = int(ENV('SIDEPRE', 1))
NOX3 = int(ENV('NOX3', 0))
PDRY = int(ENV('PDRY', 0))
YPRE = int(ENV('YPRE', 1))
ALLPOLL = int(ENV('ALLPOLL', 1))
ADAPT = int(ENV('ADAPT', 1))
GSLEEP = int(ENV('GSLEEP', 1))
XST = 1 if ROT == 2 else 2
OUT_LDS = int(ENV('OUTLDS', 1))
POST_PRIO = int(ENV('PPRIO', 0))
KDRY = int(ENV('KDRY', 0))
FAST = int(ENV('FAST', 0))
FSLEEP = int(ENV('FSLEEP', 2))
OUTF = ENV('OUTF', '')
DRY = int(ENV('DRY', 0))
DEFER = int(ENV('DEFER', 1))
TAIL_PRIO = int(ENV('TPRIO', 2))
RELAY_PRIO = int(ENV('RPRIO', 2))
XPOLL = int(ENV('XPOLL', 8))
RSLEEP = int(ENV('RSLEEP', 1))
LATE_W = int(ENV('LATEW', 1))
TAG_ST = (1, 2, 4)
LOAD_PRIO = int(ENV('LPRIO', 2))
OSLEEP = int(ENV('OSLEEP', 1))
KGEN_PRIO = int(ENV('KPRIO', 2))
CONV_WAIT = int(ENV('CWAIT', 1))
XFLAG_STAGE = int(ENV('XFS', 5))
LAG = int(ENV('LAG', 1))


def f32(x):
    return '0x%08x' % struct.unpack('<I', struct.pack('<f', x))[0]


class Gen(Asm):
    def __init__(self):
        super().__init__()
        self.nlab = 0
        self.deferred = []

    def lab(self, p):
        self.nlab += 1
        return f'{p}_{self.nlab}'


def stamp(a, i, force=False):
    if STAMP and (force or not ('gs' in DBG or 'ks' in DBG or 'ws' in DBG or 'st' in DBG or 'g0' in DBG or 'g4' in DBG or 'cs' in DBG or 'as' in DBG) or (i < 5 and 'as' not in DBG) or i == 0):
        a(f's_mem{"real" if ENV("RT") else ""}time s[{66 + 2 * i}:{67 + 2 * i}]')
        if i == 0:
            a('s_memrealtime s[92:93]')


def stamp_flush(a):
    if STAMP:
        a(f'''s_waitcnt vmcnt(0)
        s_mem{"real" if ENV("RT") else ""}time s[90:91]
        s_memrealtime s[94:95]
        s_lshl_b32 s96, s2, 4
        s_add_u32 s96, s96, s{sWV}
        s_lshl_b32 s96, s96, 6
        s_add_u32 s96, s96, {STAMPS}
        s_mov_b64 exec, 1
        v_mov_b32 v0, 0
        s_waitcnt lgkmcnt(0)''')
        for i in range(15):
            a(f'''v_mov_b32 v1, s{66 + 2 * i}
            buffer_store_dword v1, v0, {WS_}, s96 offen offset:{4 * i}''')


def srd(a, d, base, nbytes):
    a(f'''s_mov_b32 s{d}, s{base}
    s_and_b32 s{d + 1}, s{base + 1}, 0xffff
    s_mov_b32 s{d + 2}, {nbytes:#x}
    s_mov_b32 s{d + 3}, 0x20000''')


def swap23(a, dst, src, t):
    a(f'''v_lshrrev_b32 v{t}, 1, v{src}
    v_xor_b32 v{t}, v{t}, v{src}
    v_and_b32 v{t}, 4, v{t}
    v_mul_u32_u24 v{t}, 3, v{t}
    v_xor_b32 v{dst}, v{t}, v{src}''')


def identity_frags(a, dst, vn, vh, t0, t1, sb=56):
    a(f'''v_and_b32 v{t0}, 1, v{vn}
    v_lshlrev_b32 v{t0}, 4, v{t0}
    v_mov_b32 v{t1}, 0x3f80
    v_lshlrev_b32 v{t0}, v{t0}, v{t1}
    v_lshrrev_b32 v{t1}, 1, v{vn}
    v_lshlrev_b32 v{dst}, 2, v{vh}
    v_sub_u32 v{t1}, v{t1}, v{dst}''')
    for k in range(8):
        a(f'v_cmp_eq_u32 s[{sb + 2 * (k & 3)}:{sb + 1 + 2 * (k & 3)}], {8 * (k >> 2) + (k & 3)}, v{t1}')
        if (k & 3) == 3:
            for j in range(k - 3, k + 1):
                a(f'v_cndmask_b32 v{dst + j}, 0, v{t0}, s[{sb + 2 * (j & 3)}:{sb + 1 + 2 * (j & 3)}]')


def cvt8(a, dst, src, n=8):
    for i in range(n):
        a(f'v_cvt_pk_bf16_f32 v{dst + i}, v{src + 2 * i}, v{src + 2 * i + 1}')


def lds_add(a, off, t0, t1):
    a(f'''v_mov_b32 v{t0}, {L_SY + off}
    v_mov_b32 v{t1}, 1
    s_mov_b64 exec, 1
    ds_add_u32 v{t0}, v{t1}
    s_mov_b64 exec, -1''')


def lds_wait(a, addr, target, t, sleep=False, dst=64):
    l0, l1 = a.lab('LW'), a.lab('LWD')
    a(f'''s_mov_b32 s65, {SPIN}
{l0}:
    ds_read_b32 v{t}, v{addr}
    s_waitcnt lgkmcnt(0)
    v_readfirstlane_b32 s{dst}, v{t}
    s_sub_u32 s65, s65, 1
    s_cbranch_scc1 {l1}''')
    if target is None:
        a(f's_cmp_eq_u32 s{dst}, 0')
    else:
        a(f's_cmp_lt_u32 s{dst}, {target}')
    if sleep:
        a(f'''s_cbranch_scc0 {l1}
        s_sleep {int(sleep)}
        s_branch {l0}''')
    else:
        a(f's_cbranch_scc1 {l0}')
    a(f'{l1}:')


def get_nonce(a, t0, t1):
    a(f'v_mov_b32 v{t0}, {L_SY + SY_NONCE}')
    lds_wait(a, t0, None, t1, sleep=True, dst=sNON)


def flag_wait(a, voff, soff, t, n=1, sleep=None):
    l0, l1 = a.lab('FW'), a.lab('FWD')
    a(f'''s_mov_b32 s65, {SPIN_G}
{l0}:''')
    if n == 1:
        a(f'buffer_load_dword v{t}, v{voff}, {WS_}, s{soff} offen sc1')
    else:
        for i in range(n // 4):
            a(f'buffer_load_dwordx4 {vr(t + 4 * i, 4)}, v{voff}, {WS_}, s{soff} offen offset:{1024 * i} sc1')
    a('s_waitcnt vmcnt(0)')
    for i in range(n):
        a(f'v_xor_b32 v{t + i}, s{sNON}, v{t + i}')
    for i in range(1, n):
        a(f'v_or_b32 v{t}, v{t}, v{t + i}')
    a(f'''v_cmp_ne_u32 vcc, 0, v{t}
    s_sub_u32 s65, s65, 1
    s_cbranch_scc1 {l1}
    s_cmp_eq_u64 vcc, 0
    s_cbranch_scc1 {l1}
    s_sleep {sleep or PSLEEP}
    s_branch {l0}
{l1}:''')


def flag_wait_fast(a, voff, soff, t):
    l0, l1 = a.lab('FF'), a.lab('FFD')
    ld = lambda r: f'buffer_load_dword v{r}, v{voff}, {WS_}, s{soff} offen sc1'
    a(f'''s_mov_b32 s65, {SPIN_G}
    {ld(t)}
{l0}:''')
    for r in (t, t + 1):
        a(f'''s_sleep {FSLEEP}
        {ld(2 * t + 1 - r)}
        s_waitcnt vmcnt(1)
        v_cmp_ne_u32 vcc, s{sNON}, v{r}
        s_sub_u32 s65, s65, 1
        s_cbranch_scc1 {l1}
        s_cmp_eq_u64 vcc, 0
        s_cbranch_scc1 {l1}''')
    a(f'''s_branch {l0}
{l1}:''')


def flag_set(a, soff, t0, t1):
    a(f'''v_mov_b32 v{t0}, 0
    v_mov_b32 v{t1}, s{sNON}
    s_waitcnt vmcnt(0)
    s_mov_b64 exec, 1
    buffer_store_dword v{t1}, v{t0}, {WS_}, s{soff} offen sc1
    s_mov_b64 exec, -1''')


def group_flag_set(a, cnt, soff, t0, t1, n=4):
    l = a.lab('GF')
    a(f'''v_mov_b32 v{t0}, {L_SY + cnt}
    v_mov_b32 v{t1}, 1
    s_waitcnt vmcnt(0)
    s_mov_b64 exec, 1
    ds_add_rtn_u32 v{t1}, v{t0}, v{t1}
    s_waitcnt lgkmcnt(0)
    v_readfirstlane_b32 s64, v{t1}
    v_mov_b32 v{t0}, 0
    v_mov_b32 v{t1}, s{sNON}
    s_cmp_lg_u32 s64, {n - 1}
    s_cbranch_scc1 {l}
    buffer_store_dword v{t1}, v{t0}, {WS_}, s{soff} offen sc1
{l}:
    s_mov_b64 exec, -1''')


def relay_wait(a, leader, ok, polls, t0, t1):
    l0, l1 = a.lab('RL'), a.lab('RLD')
    a(f'''v_mov_b32 v{t0}, {L_SY + ok}
    s_cmp_lg_u32 s{sWV}, {leader}
    s_cbranch_scc1 {l0}''')
    polls()
    a(f'''v_mov_b32 v{t1}, 1
    ds_write_b32 v{t0}, v{t1}
    s_branch {l1}
{l0}:''')
    lds_wait(a, t0, 1, t1, sleep=RSLEEP)
    a(f'{l1}:')


class VM:
    def __init__(self, a):
        self.a, self.q = a, []

    def issue(self, tag, text):
        self.a(text)
        self.q.append(tag)

    def wait(self, *tags):
        last = max(i for i, t in enumerate(self.q) if t in tags)
        self.a(f's_waitcnt vmcnt({len(self.q) - 1 - last})')


def pointers_ready(a):
    a('s_waitcnt lgkmcnt(0)')
    srd(a, sX, 4, 0x200000)
    srd(a, sWS, 26, WS_BYTES)


def prologue(a):
    a('''s_cmp_ge_u32 s2, 256
    s_cbranch_scc1 L_END''')
    stamp(a, 0)
    a(f'''s_load_dwordx4 s[4:7], s[0:1], 0
    s_load_dwordx2 s[8:9], s[0:1], 16
    s_load_dwordx8 s[12:19], s[0:1], 32
    s_load_dwordx4 s[20:23], s[0:1], 64
    s_load_dwordx2 s[24:25], s[0:1], 80
    s_load_dwordx4 s[28:31], s[0:1], 88
    s_load_dwordx2 s[26:27], s[0:1], 104
    v_lshrrev_b32 v1, 6, v0
    v_and_b32 v0, 63, v0
    v_readfirstlane_b32 s{sWV}, v1
    v_lshlrev_b32 v1, 4, v0
    v_mov_b32 v8, 0
    v_mov_b32 v9, 0
    v_mov_b32 v10, 0
    v_mov_b32 v11, 0
    v_add_u32 v5, {L_SY}, v1
    s_mov_b64 exec, 0xff
    ds_write_b128 v5, v[8:11]
    s_mov_b64 exec, -1
    s_and_b32 s51, s2, 7
    s_lshr_b32 s52, s2, 3
    s_lshr_b32 s{sRB}, s51, 1
    s_lshl_b32 s{sRB}, s{sRB}, 2
    s_and_b32 s53, s52, 3
    s_add_u32 s{sRB}, s{sRB}, s53
    s_and_b32 s{sCB}, s51, 1
    s_lshl_b32 s{sCB}, s{sCB}, 3
    s_lshr_b32 s53, s52, 2
    s_add_u32 s{sCB}, s{sCB}, s53
    ''')
    if ROT == 2:
        a(f'''s_lshl_b32 s{sR}, s{sRB}, 1
        s_add_u32 s{sR}, s{sR}, s{sCB}
        s_and_b32 s{sR}, s{sR}, 7
        s_lshr_b32 s{sP4}, s{sCB}, 3''')
    elif ROT == 4:
        a(f'''s_add_u32 s{sR}, s{sRB}, s{sCB}
        s_and_b32 s{sR}, s{sR}, 3
        s_lshl_b32 s{sR}, s{sR}, 1
        s_lshr_b32 s{sP4}, s{sCB}, 2''')
    else:
        a(f'''s_add_u32 s{sR}, s{sRB}, s{sCB}
        s_and_b32 s{sR}, s{sR}, 1
        s_lshl_b32 s{sR}, s{sR}, 1
        s_lshr_b32 s53, s{sCB}, 3
        s_add_u32 s{sR}, s{sR}, s53
        s_lshl_b32 s{sR}, s{sR}, 1
        s_bfe_u32 s53, s{sRB}, 0x10002
        s_add_u32 s{sR}, s{sR}, s53
        s_bfe_u32 s{sP4}, s{sCB}, 0x20001''')
    a(f'''v_and_b32 v2, 31, v0
    v_lshrrev_b32 v3, 5, v0''')
    swap23(a, 4, 2, 5)
    pointers_ready(a)
    a(f'''s_barrier
    s_cmp_ge_u32 s{sWV}, 8
    s_cbranch_scc1 L_AUX
    s_cmp_ge_u32 s{sWV}, 4
    s_cbranch_scc1 L_KGEN''')


def min4_wait(a, addr, f, target, fresh=True, sleep=1):
    l0, l1, l2 = a.lab('MW'), a.lab('MWD'), a.lab('MWC')
    a(f's_mov_b32 s65, {SPIN}')
    if not fresh:
        a(f's_branch {l2}')
    a(f"""{l0}:
    ds_read_b128 {vr(f, 4)}, v{addr}
    s_waitcnt lgkmcnt(0)
{l2}:
    v_min3_u32 v{f}, v{f}, v{f + 1}, v{f + 2}
    v_min_u32 v{f}, v{f}, v{f + 3}
    s_sub_u32 s65, s65, 1
    s_cbranch_scc1 {l1}
    v_readfirstlane_b32 s64, v{f}
    s_cmp_ge_u32 s64, {target}
    s_cbranch_scc1 {l1}
    s_sleep {sleep}
    s_branch {l0}
{l1}:""")


def gemm(a):
    vXR, vWQ, vWV = (8, 14), (12, 18), (13, 19)
    vLD, vPR, vF, vID, vIT, vXS = 20, 21, 24, 160, 28, 29
    accQ, accK, accV, accT = 32, 48, 64, 144
    FR = (80, 96, 112, 128)
    sTT = 51
    if KDRY:
        a("""v_mov_b32 v20, 0
        v_mov_b32 v21, 0
        v_mov_b32 v23, 0
        v_mov_b32 v162, 0
        v_mov_b32 v163, 0
        s_mov_b32 s62, 1
        s_mov_b64 exec, 0
        s_branch L_KP
L_KDRY_BACK:
        s_mov_b64 exec, -1""")
    if TOUCH:
        a(f"""s_cmp_lg_u32 s{sWV}, 1
        s_cbranch_scc1 L_TOUCH_DONE
        s_mov_b32 s52, {RSTRIDE}
        v_mul_lo_u32 v6, s52, v0
        v_mov_b32 v7, 0
        s_mov_b64 exec, 0x7f
        buffer_load_dword v8, v6, {WS_}, 0 offen
        s_mov_b64 exec, 1
        global_load_dword v9, v7, s[8:9]
        global_load_dword v10, v7, s[24:25]
        global_load_dword v11, v7, s[28:29]
        s_mov_b64 exec, -1
        s_waitcnt vmcnt(0)
L_TOUCH_DONE:""")
    a(f"""
    s_lshl_b32 s{sTT}, s{sRB}, 2
    s_add_u32 s{sTT}, s{sTT}, s{sWV}
    s_lshl_b32 s52, s{sWV}, 12
    s_add_u32 s52, s52, {L_K + 12288}
    v_bfe_u32 v6, v4, 1, 3
    v_xor_b32 v6, v6, v3
    v_lshlrev_b32 v6, 4, v6
    v_lshl_add_u32 v6, v4, 7, v6
    v_add_u32 v{vXR[0]}, s52, v6
    v_xor_b32 v7, 32, v6
    v_add_u32 v{vXR[0] + 1}, s52, v7
    v_xor_b32 v7, 64, v6
    v_add_u32 v{vXR[0] + 2}, s52, v7
    v_xor_b32 v7, 96, v6
    v_add_u32 v{vXR[0] + 3}, s52, v7
    v_bfe_u32 v6, v0, 2, 2
    v_lshl_add_u32 v6, v3, 3, v6
    v_lshlrev_b32 v6, 6, v6
    v_bfe_u32 v7, v0, 4, 1
    v_lshl_add_u32 v6, v7, 5, v6
    v_add_u32 v6, {L_K}, v6
    v_and_b32 v7, 3, v0
    v_lshl_add_u32 v{vWV[0]}, v7, 3, v6
    v_bfrev_b32 v7, v7
    v_lshrrev_b32 v7, 30, v7
    v_lshl_add_u32 v{vWQ[0]}, v7, 3, v6
    v_mov_b32 v{vLD}, {L_SY + SY_LD}
    s_lshl_b32 s52, s{sWV}, 2
    s_add_u32 s52, s52, {L_SY + SY_PR}
    v_mov_b32 v{vPR}, s52""")
    for i in range(6):
        a(f'v_add_u32 v{vXR[1] + i}, {2 * SLOT}, v{vXR[0] + i}')
    identity_frags(a, vID, 2, 3, 6, 7)
    a(f"""s_lshl_b32 s56, s{sRB}, {FSH}
    s_mul_i32 s57, s{sCB}, {FS}
    s_add_u32 s56, s56, s57
    s_add_u32 s56, s56, {FQ}
    s_lshl_b32 s57, s{sWV}, 11
    s_add_u32 s57, s57, {L_XS}
    v_add_u32 v{vXS}, s57, v1""")

    sIT, sTG, sXP = 57, 58, 59
    slow, xts = [], []

    def rd(st, k, part):
        f = FR[k]
        hi, o = (st & 3) >> 1, (st & 1) * SLOT
        L = []
        if part == 0:
            L.append(f'ds_read_b128 {vr(f, 4)}, v{vXR[hi] + k} offset:{o}')
        seg = (1, 2, 0)[part]
        base = vWV[hi] if seg == 2 else vWQ[hi]
        off = o + k * 3072 + seg * 1024
        L.append(f'ds_read_b64_tr_b16 {vr(f + 4 + 4 * seg, 2)}, v{base} offset:{off}')
        L.append(f'ds_read_b64_tr_b16 {vr(f + 6 + 4 * seg, 2)}, v{base} offset:{off + 256}')
        return '\n'.join(L)

    def stage(st):
        for k in range(4):
            f = FR[k]
            fill = ['', '', '']
            a(f's_waitcnt lgkmcnt({8 if k == 0 else 7})')
            if k == 0:
                fill[0] = f'ds_read_b128 {vr(vF, 4)}, v{vLD}'
                fill[2] = f's_add_u32 s{sTG}, s{sIT}, {st + 2}\ns_min_u32 s{sTG}, s{sTG}, s63'
            if k == 1:
                lb, ls = a.lab('GB'), a.lab('GSL')
                fill[0] = f'v_min3_u32 v{vF}, v{vF}, v{vF + 1}, v{vF + 2}\nv_min_u32 v{vF}, v{vF}, v{vF + 3}'
                fill[1] = f'v_readfirstlane_b32 s64, v{vF}\nv_add_u32 v6, {st + 1}, v{vIT}'
                fill[2] = f's_cmp_lt_u32 s64, s{sTG}\ns_cbranch_scc1 {ls}\n{lb}:'
                slow.append((ls, lb))
                if 'gb' in DBG:
                    lq = a.lab('GBQ')
                    fill[2] += f'\ns_cmp_lg_u32 s{sIT}, 0\ns_cbranch_scc1 {lq}\ns_memtime s[{76 + 2 * st}:{77 + 2 * st}]\n{lq}:'
            if k == 3:
                fill[0] = f'ds_write_b32 v{vPR}, v6'
            if NSLOT == 5 and st == 2 and k < 3:
                for p in (1, 2):
                    fill[p] += f'\nv_subrev_u32 v{vXR[0] + 2 * k + p - 1}, s61, v{vXR[0] + 2 * k + p - 1}'
            if NSLOT == 5 and st == 0 and k < 3:
                for p in (1, 2):
                    fill[p] += f'\nv_subrev_u32 v{vXR[1] + 2 * k + p - 1}, s62, v{vXR[1] + 2 * k + p - 1}'
            if st < XST:
                l, lb2 = a.lab('XT'), a.lab('XTB')
                cin = '0' if (k & 1) == 0 else vr(accT, 16)
                a(f"""s_cmp_eq_u32 s{sXP}, {2 * st + (k >> 1)}
                s_cbranch_scc1 {l}
{lb2}:""")
                xts.append(f"""{l}:
                {MFMA} {vr(accT, 16)}, {vr(f, 4)}, {vr(vID + 4 * (k & 1), 4)}, {cin}
                s_branch {lb2}""")
            n, ns = (k + 2) & 3, st + (k >> 1)
            mf = [f'{MFMA} {vr(accK, 16)}, {vr(f + 8, 4)}, {vr(f, 4)}, {vr(accK, 16)}',
                  f'{MFMA} {vr(accV, 16)}, {vr(f, 4)}, {vr(f + 12, 4)}, {vr(accV, 16)}',
                  f'{MFMA} {vr(accQ, 16)}, {vr(f + 4, 4)}, {vr(f, 4)}, {vr(accQ, 16)}']
            for p in range(3):
                a(mf[p])
                if k in (0, 3) and p == 0:
                    a(fill[p])
                    a(rd(ns, n, p))
                else:
                    a(rd(ns, n, p))
                    a(fill[p])

    if DRY:
        a(f"""s_mov_b32 s{sIT}, 8
        s_mov_b32 s63, 0
        s_mov_b32 s{sXP}, 4
        s_mov_b64 exec, 0
        s_branch L_GS
L_GS_GO:
        s_mov_b64 exec, -1
        s_waitcnt lgkmcnt(0)
        s_nop 7""")
    for i in range(48):
        a(f'v_mov_b32 v{accQ + i}, 0')
    stamp(a, 1)
    a(f's_setprio {GEMM_PRIO}')
    min4_wait(a, vLD, vF, 1, sleep=GSLEEP)
    stamp(a, 2)
    a(f"""s_mov_b32 s{sIT}, 0
    s_mov_b32 s63, 8
    s_mov_b32 s62, 0
    s_mov_b32 s61, {SLOT}
    v_mov_b32 v{vIT}, 0
    s_mov_b32 s{sXP}, s{sP4}""")
    for k in range(2):
        for p in range(3):
            a(rd(0, k, p))
    if 'g0' in DBG or 'g4' in DBG:
        a('s_mov_b32 s86, s66')
    a(f"""ds_write_b32 v{vPR}, v{vIT}
L_GS:""")
    for st in range(4):
        stage(st)
        if 'g0' in DBG or 'g4' in DBG:
            l = a.lab('GST')
            a(f"""s_cmp_lg_u32 s{sIT}, {0 if 'g0' in DBG else 4}
            s_cbranch_scc1 {l}""")
            stamp(a, 5 + st, True)
            a(f'{l}:')
        if st == XST - 1:
            a(f"""s_cmp_lg_u32 s{sIT}, 0
            s_cbranch_scc0 L_GS_XT
L_GS_XTB:""")
    a(f"""s_add_u32 s{sIT}, s{sIT}, 4
    v_mov_b32 v{vIT}, 4
    s_mov_b32 s62, {SLOT}
    s_mov_b32 s61, 0
    s_mov_b32 s{sXP}, 4
    s_cmp_lt_u32 s{sIT}, 8
    s_cbranch_scc1 L_GS""")
    if DRY:
        a(f"""s_cmp_eq_u32 s{sIT}, 12
        s_cbranch_scc1 L_GS_GO""")

    def out_of_line():
        for ls, lb in slow:
            a(f'{ls}:')
            if 'g0' in DBG or 'g4' in DBG:
                a('s_add_u32 s86, s86, 1')
            min4_wait(a, vLD, vF, f's{sTG}', sleep=GSLEEP)
            a(f's_branch {lb}')
        for x in xts:
            a(x)
        a('L_GS_XT:')
        cvt8(a, vID, accT)
        a(f"""ds_write_b128 v{vXS}, {vr(vID, 4)}
        ds_write_b128 v{vXS}, {vr(vID + 4, 4)} offset:1024
        ds_write_b32 v{vPR}, v{vPR} offset:{SY_XS - SY_PR}""")
        stamp(a, 5)
        a('s_branch L_GS_XTB')

    a.deferred.append(out_of_line)
    lds_add(a, SY_FREE, 6, 7)
    a('s_waitcnt lgkmcnt(0)')
    stamp(a, 3)
    a(f"""v_lshl_add_u32 v6, v3, 5, v4
    v_lshlrev_b32 v6, 4, v6
    v_lshrrev_b32 v7, 4, v2
    v_lshlrev_b32 v7, 16, v7
    v_lshl_add_u32 v7, v3, 8, v7
    v_and_b32 v8, 15, v2
    v_lshl_add_u32 v7, v8, 4, v7
    s_lshl_b32 s57, s{sCB}, 17
    s_lshl_b32 s58, s{sTT}, 10
    s_add_u32 s57, s57, s58
    s_add_u32 s59, s57, {KF}
    s_add_u32 s60, s59, 0x10000
    s_add_u32 s61, s57, {VF}
    s_add_u32 s57, s57, {QF}
    s_add_u32 s58, s57, 0x10000
    s_mov_b32 s62, {f32(0.25 * LOG2E)}""")
    cvt8(a, 88, accK)
    a(f"""buffer_store_dwordx4 v[88:91], v6, {WS_}, s59 offen sc1
    buffer_store_dwordx4 v[92:95], v6, {WS_}, s60 offen sc1""")
    cvt8(a, 96, accV)
    a(f"""buffer_store_dwordx4 v[96:99], v7, {WS_}, s61 offen sc1
    buffer_store_dwordx4 v[100:103], v7, {WS_}, s61 offen offset:512 sc1""")
    a('v_mov_b32 v8, s62')
    for i in range(0, 16, 2):
        a(f'v_pk_mul_f32 {vr(accQ + i, 2)}, {vr(accQ + i, 2)}, v[8:9] op_sel:[0,0] op_sel_hi:[1,0]')
    cvt8(a, 80, accQ)
    a(f"""buffer_store_dwordx4 v[80:83], v6, {WS_}, s57 offen sc1
    buffer_store_dwordx4 v[84:87], v6, {WS_}, s58 offen sc1""")
    get_nonce(a, 8, 9)
    group_flag_set(a, SY_Q, 56, 8, 9)
    stamp(a, 4)
    a('s_setprio 0')
    if LATE_W == 2:
        side_loads(a, 3)
        side_work(a, 3, 0, 96, True)


vGX, vGW, vWO, D2 = 146, 154, 158, 112


def side_loads(a, last):
    if 'ws' in DBG:
        stamp(a, 5, True)
    a(f"""s_cmp_lg_u32 s{sWV}, {last}
    s_cbranch_scc1 L_NOWO1
    s_lshr_b32 s60, s2, 4
    s_lshl_b32 s60, s60, 15
    s_and_b32 s61, s2, 15
    s_lshl_b32 s61, s61, 6
    s_add_u32 s60, s60, s61
    v_lshlrev_b32 v6, 10, v2
    v_lshl_add_u32 v6, v3, 4, v6
    v_add_u32 v6, s60, v6
    global_load_dwordx4 {vr(vWO, 4)}, v6, s[8:9]
    global_load_dwordx4 {vr(vWO + 4, 4)}, v6, s[8:9] offset:32
L_NOWO1:
    s_lshl_b32 s4, s{sRB}, 7
    s_lshl_b32 s60, s{sCB}, 3
    s_add_u32 s4, s4, s60
    s_and_b32 s60, s{sWV}, 3
    s_lshl_b32 s60, s60, 1
    s_add_u32 s4, s4, s60
    s_lshl_b32 s60, s4, 10
    buffer_load_dwordx4 {vr(vGX, 4)}, v1, {X_}, s60 offen
    buffer_load_dwordx4 {vr(vGX + 4, 4)}, v1, {X_}, s60 offen offset:1024
    global_load_dwordx4 {vr(vGW, 4)}, v1, s[24:25]""")

def side_work(a, last, n, vID, make_id=False):
    if 'ws' in DBG:
        stamp(a, 6, True)
    a(f"""v_mov_b32 v144, 0
    v_mov_b32 v145, 0
    s_waitcnt vmcnt({n})""")
    if 'ws' in DBG:
        stamp(a, 7, True)
    for i in range(4):
        a(f"""v_dot2_f32_bf16 v144, v{vGX + i}, v{vGW + i}, v144
        v_dot2_f32_bf16 v145, v{vGX + 4 + i}, v{vGW + i}, v145""")
    a('s_nop 2')
    for d in ('row_shr:1', 'row_shr:2', 'row_shr:4', 'row_shr:8', 'row_bcast:15 row_mask:0xa', 'row_bcast:31 row_mask:0xc'):
        a(f"""v_add_f32_dpp v144, v144, v144 {d}
        v_add_f32_dpp v145, v145, v145 {d}""")
    a(f"""v_mul_f32 v144, {f32(-LOG2E)}, v144
    v_mul_f32 v145, {f32(-LOG2E)}, v145
    v_exp_f32 v144, v144
    v_exp_f32 v145, v145
    v_add_f32 v144, 1.0, v144
    v_add_f32 v145, 1.0, v145
    v_rcp_f32 v144, v144
    v_rcp_f32 v145, v145
    s_lshl_b32 s4, s4, 2
    s_add_u32 s4, s4, {GG}
    v_mov_b32 v{vGX}, 0
    s_mov_b32 exec_lo, 0
    s_brev_b32 exec_hi, 1
    buffer_store_dwordx2 v[144:145], v{vGX}, {WS_}, s4 offen sc1
    s_mov_b64 exec, -1
    s_cmp_lg_u32 s{sWV}, {last}
    s_cbranch_scc1 L_NOWO2""")
    if make_id:
        identity_frags(a, vID, 2, 3, 6, 7, 12)
    if 'ws' in DBG:
        stamp(a, 8, True)
    if 'ws' in DBG:
        stamp(a, 9, True)

    a(f"""{MFMA} {vr(D2, 16)}, {vr(vWO, 4)}, {vr(vID, 4)}, 0
    {MFMA} {vr(D2, 16)}, {vr(vWO + 4, 4)}, {vr(vID + 4, 4)}, {vr(D2, 16)}
    v_lshl_add_u32 v6, v3, 5, v4
    v_lshlrev_b32 v6, 4, v6
    s_and_b32 s60, s2, 15
    s_lshl_b32 s60, s60, 15
    s_lshr_b32 s61, s2, 4
    s_lshl_b32 s61, s61, 11
    s_add_u32 s60, s60, s61
    s_add_u32 s60, s60, {WOF}""")
    cvt8(a, vWO, D2)
    if 'ws' in DBG:
        stamp(a, 10, True)
    a(f"""buffer_store_dwordx4 {vr(vWO, 4)}, v6, {WS_}, s60 offen sc1
    buffer_store_dwordx4 {vr(vWO + 4, 4)}, v6, {WS_}, s60 offen offset:1024 sc1
L_NOWO2:""")


CK, CG, CXW, CXR = 136, 152, 132, 133


def cexp(a, dst, lr, li, tau, t, conj=False):
    return [
        [f'v_mul_f32 v{t}, v{lr}, {tau}', f'v_mul_f32 v{t + 1}, v{li}, {tau}'],
        [f'v_exp_f32 v{t}, v{t}', f'v_fract_f32 v{t + 1}, v{t + 1}'],
        [f'v_cos_f32 v{dst}, v{t + 1}', f'v_sin_f32 v{dst + 1}, v{t + 1}'],
        [f'v_mul_f32 v{dst}, v{t}, v{dst}', f'v_mul_f32 v{dst + 1}, {"-" if conj else ""}v{t}, v{dst + 1}'],
    ]


def cmul(dst, x, s, t):
    return [f'v_pk_mul_f32 {vr(t, 2)}, {vr(x, 2)}, {vr(s, 2)} op_sel:[0,0] op_sel_hi:[0,1]',
            f'v_pk_fma_f32 {vr(dst, 2)}, {vr(x, 2)}, {vr(s, 2)}, {vr(t, 2)} op_sel:[1,1,0] op_sel_hi:[1,0,1] neg_lo:[1,0,0]']


def kgen_conv(a):
    sCI, sMH, sCH, sRG, sE, sT = 51, 52, 53, 54, 55, 56
    P = (8, 12)
    vTS, vTX, vTY, vTB = 16, 17, 18, 19
    vEX, vEY, vEB, vRA = 20, 21, 162, 23
    vSC = 24
    vGA = 144
    acc = 48
    SG, SY2, XV, YV, BV, BS = 64, 66, 68, 70, 72, 74
    t0 = 76
    a(f'''L_KGEN:
    s_setprio 2
    s_bfe_u32 s{sCI}, s{sWV}, 0x10001
    s_and_b32 s{sMH}, s{sWV}, 1
    s_and_b32 s{sCH}, s2, 7
    s_lshl_b32 s{sCH}, s{sCH}, 5
    s_lshr_b32 s57, s2, 3
    s_add_u32 s{sCH}, s{sCH}, s57
    s_lshl_b32 s59, s{sCH}, 2
    s_lshl_b32 s{sCH}, s{sCH}, 1
    s_add_u32 s{sCH}, s{sCH}, s{sCI}
    s_lshl_b32 s57, s{sCH}, 8
    s_lshl_b32 s58, s{sMH}, 7
    s_add_u32 s57, s57, s58
    v_lshl_add_u32 v6, v0, 1, s57
    global_load_ushort v8, v6, s[12:13]
    global_load_ushort v9, v6, s[14:15]
    global_load_ushort v10, v6, s[16:17]
    global_load_ushort v11, v6, s[18:19]
    s_load_dword s62, s[20:21], s59
    s_load_dword s63, s[22:23], s59''')
    a(f'''s_setprio {KGEN_PRIO}
    s_mul_i32 s{sRG}, s{sCI}, {CVS}
    s_add_u32 s{sRG}, s{sRG}, {L_CV}
    s_mul_i32 s{sE}, s{sMH}, {CVS // 2}
    s_add_u32 s{sE}, s{sE}, s{sRG}
    s_mul_i32 s{sT}, s{sCI}, 2688
    s_add_u32 s{sT}, s{sT}, {L_T}
    s_mov_b32 s60, 0
    s_mov_b32 s61, -1
    v_mov_b32 v6, {f32(256.0)}
    v_cndmask_b32 v{vTS}, 1.0, v6, s[60:61]
    v_mov_b32 v7, {f32(516.0)}
    v_cndmask_b32 v{vTY}, v6, v7, s[60:61]
    v_cvt_f32_u32 v6, v3
    v_mul_f32 v{vTX}, {f32(512.0)}, v6
    v_mul_f32 v{vTB}, {f32(128.0)}, v6
    v_lshl_add_u32 v6, v2, 2, s{sE}
    v_mul_u32_u24 v7, {4 * EROW}, v3
    v_lshl_add_u32 v{vEX}, v7, 1, v6
    v_add_u32 v{vEY}, v7, v6
    v_add_u32 v{vEY}, {16 * EROW}, v{vEY}
    v_lshl_add_u32 v{vEB}, v7, 2, v6
    v_add_u32 v{vEB + 1}, {32 * EROW}, v{vEB}
    v_add_u32 v{vEB}, {24 * EROW}, v{vEB}
    v_mul_u32_u24 v6, {EROW}, v2
    v_lshl_add_u32 v6, v3, 4, v6
    v_add_u32 v{vRA}, s{sE}, v6''')
    a(f'''v_lshlrev_b32 v6, 3, v2
    v_lshl_add_u32 v6, v3, 2, v6
    v_lshl_add_u32 v{vSC}, v6, 2, s{sT}
    v_lshlrev_b32 v6, 1, v2
    v_add_u32 v7, 384, v6
    v_add_u32 v{t0}, 576, v2
    v_cndmask_b32 v7, v7, v{t0}, s[60:61]
    v_lshl_add_u32 v{vSC + 1}, v7, 2, s{sT}
    v_cndmask_b32 v7, 64, 32, s[60:61]
    v_lshl_add_u32 v{vSC + 2}, v7, 2, v{vSC + 1}
    v_lshl_add_u32 v7, v3, 7, v2
    v_add_u32 v7, 512, v7
    v_lshl_add_u32 v{vSC + 3}, v7, 2, s{sT}
    v_add_u32 v6, 385, v6
    v_lshlrev_b32 v7, 2, v2
    v_add_u32 v7, 256, v7
    v_cndmask_b32 v7, v7, v6, s[60:61]
    v_lshl_add_u32 v{vSC + 4}, v7, 2, s{sT}''')
    a(f's_sub_u32 s57, s{sT}, {0x4280 * 4}')
    for r in range(2):
        a(f'''s_lshl_b32 s58, s{sMH}, 10
        s_sub_u32 s58, {2047 - 512 * r}, s58
        v_lshlrev_b32 v6, 3, v0
        v_sub_u32 v{t0}, s58, v6
        v_cvt_f32_u32 v{t0 + 1}, v{t0}''')
        for e in range(1, 9):
            a(f'v_add_f32 v{t0 + 1 + e}, {f32(-float(e))}, v{t0 + 1}')
        a(f'v_max_f32 v{t0 + 9}, 0, v{t0 + 9}')
        for e in range(0, 9, 2):
            g = vGA + 9 * r + e
            a(f'''v_cvt_pk_bf16_f32 v6, v{t0 + 1 + e}, v{t0 + 2 + e}
            v_and_b32 v7, 0xffff, v6
            v_lshl_add_u32 v{g}, v7, 2, s57''')
            if e < 8:
                a(f'''v_lshrrev_b32 v6, 16, v6
                v_lshl_add_u32 v{g + 1}, v6, 2, s57''')
        if r == 1:
            for e in range(9):
                a(f'v_subrev_u32 v6, {e}, v{t0}')
                if e == 8:
                    a('v_max_i32 v6, 0, v6')
                a(f'''v_min_u32 v6, 0x80, v6
                v_lshl_add_u32 v6, v6, 2, s{sT}
                v_max_i32 v{vGA + 9 + e}, v{vGA + 9 + e}, v6''')
    vA, vB, vA2 = 129, 130, 131
    a(f'''v_and_b32 v7, 1, v4
    v_cmp_eq_u32 vcc, 0, v7
    v_mov_b32 v7, 4158
    v_lshlrev_b32 v6, 1, v4
    v_cndmask_b32 v7, 0, v7, vcc
    v_sub_u32 v7, v7, v6
    v_lshl_add_u32 v7, v3, 4, v7
    v_add_u32 v7, {4094 - 32 * 6}, v7
    s_lshl_b32 s57, s{sMH}, 10
    s_sub_u32 s57, s{sRG}, s57
    v_add_u32 v{vA}, s57, v7
    v_subrev_u32 v{vA2}, 2048, v{vA}
    v_mul_u32_u24 v7, 96, v3
    v_add_u32 v7, v7, v2
    s_lshl_b32 s57, s{sMH}, 8
    s_sub_u32 s57, s{sRG}, s57
    s_add_u32 s57, s57, {L_U + (32 - 3) * 16}
    v_lshl_add_u32 v{vB}, v7, 4, s57''')
    for i in range(16):
        a(f'v_mov_b32 v{acc + i}, 0')
    stamp(a, 1)
    a(f'''s_waitcnt vmcnt(0) lgkmcnt(0)
    s_lshl_b32 s58, s{sCI}, 4
    s_lshr_b32 s62, s62, s58
    s_lshl_b32 s62, s62, 16
    s_lshr_b32 s63, s63, s58
    s_lshl_b32 s63, s63, 16
    s_mov_b32 s59, {f32(LOG2E)}
    v_mov_b32 v6, s62
    v_mul_f32 v6, s59, v6
    v_lshlrev_b32 v8, 16, v8
    v_mul_f32 v8, s59, v8
    v_exp_f32 v6, v6
    v_exp_f32 v8, v8
    v_lshlrev_b32 v9, 16, v9
    v_lshlrev_b32 v10, 16, v10
    v_cvt_pk_bf16_f32 v6, v6, v8
    v_and_b32 v8, 0xffff0000, v6
    v_lshlrev_b32 v6, 16, v6
    v_mul_f32 v8, v8, v6
    v_mul_f32 v8, {f32(-LOG2E)}, v8
    v_mul_f32 v9, v9, v6
    v_mul_f32 v9, 0.15915494, v9
    v_add_f32 v6, v6, v6
    v_lshlrev_b32 v11, 16, v11
    v_mul_f32 v10, v10, v6
    v_mul_f32 v11, -v11, v6
    v_mov_b32 v12, v8
    v_mov_b32 v13, v9
    v_mov_b32 v14, v10
    v_mov_b32 v15, v11
    s_mov_b32 s59, {f32(8.0)}
    v_permlane32_swap_b32 v8, v12
    v_permlane32_swap_b32 v9, v13
    v_permlane32_swap_b32 v10, v14
    v_permlane32_swap_b32 v11, v15''')
    stamp(a, 2)
    if 'park' in DBG:
        a(f'v_mov_b32 v6, {L_SY + SY_FREE}')
        lds_wait(a, 6, 4, 7, sleep=True)
    FA, FBf = 96, 112
    a('''s_mov_b32 s62, 2
L_KP:''')
    if 'kp' in DBG:
        stamp(a, 1)
    for ps in range(1):
        p = P[ps]
        ev = [cexp(a, SG, p, p + 1, f'v{vTS}', t0, True), cexp(a, XV, p, p + 1, f'v{vTX}', t0 + 2, True),
              cexp(a, YV, p, p + 1, f'v{vTY}', t0 + 4, True), cexp(a, BV, p, p + 1, f'v{vTB}', t0 + 6),
              cexp(a, BS, p, p + 1, 's59', t0 + 8)]
        for st in range(4):
            for e in ev:
                for l in e[st]:
                    if ', s59' in l:
                        l = l.replace(f'v{p}, s59', f's59, v{p}').replace(f'v{p + 1}, s59', f's59, v{p + 1}')
                    a(l)
        m = [cmul(XV, XV, p + 2, t0), cmul(YV, YV, p + 2, t0 + 2), cmul(SY2, SG, SG, t0 + 4)]
        for st in range(2):
            for e in m:
                a(e[st])
        a(f'''v_cndmask_b32 v{SY2}, v{SY2}, v{SG}, s[60:61]
        v_cndmask_b32 v{SY2 + 1}, v{SY2 + 1}, v{SG + 1}, s[60:61]''')
        for k in range(16):
            ch = [(BV, BS, vEB + (k >> 3), k & 7, k < 15, 0)]
            if k < 8:
                ch.append((XV, SG, vEX, k, k < 7, 1))
            elif k < 12:
                ch.append((YV, SY2, vEY, k - 8, k < 11, 1))
            for v, s, ad, row, more, j in ch:
                a(f'v_cvt_pk_bf16_f32 v{t0 + 10 + 4 * j + (k & 3)}, v{v}, v{v + 1}')
                if more:
                    a(cmul(v, v, s, t0 + 2 * j)[0])
            for v, s, ad, row, more, j in ch:
                if more:
                    a(cmul(v, v, s, t0 + 2 * j)[1])
                if k & 1:
                    r = t0 + 10 + 4 * j + (k & 3)
                    a(f'ds_write2_b32 v{ad}, v{r - 1}, v{r} offset0:{(row - 1) * EROW // 4} offset1:{row * EROW // 4}')
        a('s_waitcnt lgkmcnt(0)')
        for q in range(4):
            a(f'''ds_read_b128 {vr(FA + 4 * q, 4)}, v{vRA} offset:{q * 32}
            ds_read_b128 {vr(FBf + 4 * q, 4)}, v{vRA} offset:{24 * EROW + q * 32}''')
        for i in range(4):
            a(f'v_mov_b32 v{P[0] + i}, v{P[1] + i}')
        a('''s_sub_u32 s62, s62, 1
        s_cmp_lg_u32 s62, 0''')
        for q in range(4):
            a(f'''s_waitcnt lgkmcnt({6 - 2 * q})
            {MFMA} {vr(acc, 16)}, {vr(FA + 4 * q, 4)}, {vr(FBf + 4 * q, 4)}, {vr(acc, 16)}''')
        a('s_cbranch_scc1 L_KP')
        if KDRY:
            a(f'''s_cmp_lt_u32 s{sWV}, 4
            s_cbranch_scc1 L_KDRY_BACK''')
    stamp(a, 3)
    a(f's_setprio {POST_PRIO}')

    a(f'''s_lshl_b32 s57, s{sCI}, 2
    v_mov_b32 v134, {L_SY + SY_K0}
    v_add_u32 v134, s57, v134
    s_add_u32 s57, s{sRG}, {CVS // 2}
    v_add_u32 v23, s57, v1
    s_cmp_eq_u32 s{sMH}, 0
    s_cbranch_scc1 L_KSUM''')
    for i in range(3):
        a(f'ds_write_b128 v23, {vr(acc + 4 * i, 4)} offset:{i * 1024}')
    a(f"""v_mov_b32 v7, 1
    s_waitcnt lgkmcnt(0)
    s_mov_b64 exec, 1
    ds_add_u32 v134, v7
    s_mov_b64 exec, -1
    v_mov_b32 v25, {L_SY + SY_XS}
    s_lshl_b32 s57, s{sCI}, 4
    v_bfe_u32 v6, v0, 2, 3
    v_add_u32 v6, s57, v6
    v_and_b32 v7, 3, v0
    v_lshl_add_u32 v143, v3, 5, v6
    v_lshlrev_b32 v143, 4, v143
    v_lshl_add_u32 v143, v7, 11, v143
    v_add_u32 v143, {L_XS}, v143
    v_lshlrev_b32 v6, 12, v6
    v_lshl_add_u32 v6, v3, 10, v6
    v_lshl_add_u32 v132, v7, 4, v6
    s_lshl_b32 s62, s{sR}, 1
    s_add_u32 s62, s62, s{sP4}
    s_and_b32 s62, s62, 15
    s_lshl_b32 s58, s62, 17
    s_lshl_b32 s59, s{sRB}, 6
    s_add_u32 s58, s58, s59
    s_add_u32 s58, s58, {XT}
    s_mul_i32 s62, s62, {FS}
    s_lshl_b32 s59, s{sRB}, {FSH}
    s_add_u32 s62, s62, s59
    s_add_u32 s11, s62, {FX}
    s_add_u32 s59, s58, 32768
    s_setprio 0""")
    min4_wait(a, 25, 136, 1)
    if 'ks' in DBG:
        stamp(a, 5, True)
    a(f's_setprio {RELAY_PRIO}')
    for i in range(4):
        a(f'ds_read_b128 {vr(96 + 4 * i, 4)}, v143 offset:{(i & 1) * 1024 + (i >> 1) * 128}')
    for i in range(4):
        a(f"""s_waitcnt lgkmcnt({3 - i})
        buffer_store_dwordx4 {vr(96 + 4 * i, 4)}, v132, {WS_}, s{58 + (i >> 1)} offen offset:{(i & 1) * 2048} sc1""")
    a('s_setprio 0')
    if 'ks' in DBG:
        stamp(a, 6, True)
    get_nonce(a, 6, 7)
    group_flag_set(a, SY_X, 11, 6, 7, 2)
    if 'ks' in DBG:
        stamp(a, 8, True)
    a('''s_branch L_KSIG
L_KSUM:''')
    lds_wait(a, 134, 1, 6, sleep=True)
    for i in range(3):
        a(f'ds_read_b128 {vr(FA + 4 * i, 4)}, v23 offset:{i * 1024}')
    a('s_waitcnt lgkmcnt(0)')
    lds_add(a, SY_TAB, 6, 7)
    for i in range(12):
        a(f'v_add_f32 v{acc + i}, v{acc + i}, v{FA + i}')
    a(f'''ds_write_b128 v{vSC}, {vr(acc, 4)}
    ds_write_b32 v{vSC + 1}, v{acc + 4}
    ds_write_b32 v{vSC + 2}, v{acc + 5}
    ds_write_b32 v{vSC + 3}, v{acc + 6}
    s_mov_b32 exec_hi, 0
    ds_write_b32 v{vSC + 3}, v{acc + 7} offset:128
    ds_write_b128 v{vSC + 4}, {vr(acc + 8, 4)}
    s_not_b64 exec, exec
    ds_write2st64_b32 v{vSC + 4}, v{acc + 8}, v{acc + 9} offset0:0 offset1:1
    s_mov_b64 exec, -1
    v_mov_b32 v7, 1
    s_waitcnt lgkmcnt(0)
    s_mov_b64 exec, 1
    ds_add_u32 v134, v7
    s_mov_b64 exec, -1
L_KSIG:
    ''')
    if 'ks' in DBG:
        stamp(a, 7, True)
    get_nonce(a, 6, 7)
    lds_wait(a, 134, 2, 6, sleep=True)
    if 'ks' in DBG:
        stamp(a, 9, True)
    a('s_setprio 0')

    def gather():
        G0 = 96
        for k in range(18):
            a(f'ds_read_b32 v{G0 + k}, v{vGA + k}')
            if k == 8:
                a('s_waitcnt lgkmcnt(4)')
        a(f'''v_lshl_add_u32 v7, v0, 1, s{sMH}
        v_cmp_eq_u32 vcc, 0x7f, v7
        v_mov_b32 v6, s63
        s_lshl_b32 s57, s{sMH}, 11
        s_add_u32 s57, s57, s{sRG}
        v_cndmask_b32 v6, 0, v6, vcc
        v_add_u32 v135, s57, v1
        s_waitcnt lgkmcnt(0)
        v_add_f32 v{G0 + 16}, v{G0 + 16}, v6
        v_cndmask_b32 v{G0 + 17}, v{G0 + 17}, 0, vcc''')
        lds_add(a, SY_FREE, 6, 7)
        for r in range(2):
            for c in range(2):
                d = 32 + 8 * r + 4 * c
                for i in range(4):
                    a(f'v_cvt_pk_bf16_f32 v{d + i}, v{G0 + 9 * r + c + 2 * i}, v{G0 + 9 * r + c + 2 * i + 1}')
                a(f'ds_write_b128 v135, {vr(d, 4)} offset:{r * 1024 + c * 4160}')
        for i in range(16):
            a(f'v_mov_b32 v{acc + i}, 0')
        a(f'''v_bfe_u32 v6, v0, 2, 1
        v_mul_u32_u24 v6, {4160 - 64}, v6
        v_add_u32 v6, v6, v1
        v_add_u32 v6, s{sRG}, v6
        s_mov_b64 exec, 0xff
        ds_write_b128 v6, {vr(acc, 4)} offset:4096
        s_mov_b64 exec, -1
        v_mul_u32_u24 v6, 96, v3
        v_add_u32 v6, v6, v2
        s_mul_i32 s58, s{sMH}, 3072
        s_add_u32 s58, s58, s{sRG}
        v_lshl_add_u32 v6, v6, 4, s58
        ds_write_b128 v6, {vr(acc, 4)} offset:{L_U}
        ''')
        if 'ks' in DBG:
            stamp(a, 10, True)
    attn_setup(a)

    stamp(a, 4)
    if DEFER:
        a(f'v_mov_b32 v6, {L_SY + SY_FREE}')
        lds_wait(a, 6, 4, 7, sleep=True)
        a(f's_setprio {TAIL_PRIO}')
        if 'cs' in DBG:
            stamp(a, 5, True)
        gather()
        if 'cs' in DBG:
            stamp(a, 6, True)
    for i in range(32):
        a(f'v_mov_b32 v{CK + i}, 0')
    a(f'''v_mov_b32 v134, {L_SY + SY_U}
    v_mov_b32 v7, 1
    s_waitcnt lgkmcnt(0)
    s_mov_b64 exec, 1
    ds_add_u32 v134, v7
    s_mov_b64 exec, -1''')
    if 'cs' in DBG:
        stamp(a, 7, True)
    lds_wait(a, 134, 8, 6, sleep=True)
    stamp(a, 5)
    CF = (32, 48, 96, 112)
    if 'cs' in DBG:
        stamp(a, 9, True)
    a(f"""s_mov_b32 s59, 4
    s_setprio {CONV_PRIO}""")

    def cread(k, part):
        f = CF[k & 3]
        k &= 7
        oa = (7 - k) * 8
        ob = (3 - (k >> 1)) * 16 + (3072 if (k & 1) == 0 else 0)
        if part == 0:
            a(f"""ds_read2_b32 {vr(f, 2)}, v{vA} offset0:{oa} offset1:{oa + 1}
            ds_read2_b32 {vr(f + 2, 2)}, v{vA} offset0:{oa + 2} offset1:{oa + 3}""")
        elif part == 1:
            a(f"""ds_read_b128 {vr(f + 4, 4)}, v{vB} offset:{ob}
            ds_read_b128 {vr(f + 8, 4)}, v{vB} offset:{ob + 512}""")
        else:
            a(f"""ds_read2_b32 {vr(f + 12, 2)}, v{vA2} offset0:{oa} offset1:{oa + 1}
            ds_read2_b32 {vr(f + 14, 2)}, v{vA2} offset0:{oa + 2} offset1:{oa + 3}""")

    a(f"""s_cmp_eq_u32 s{sMH}, 0
    s_cbranch_scc1 L_CV0""")
    for mh in (1, 0):
        acc, ac1 = (CK, CG) if mh == 0 else (CG, CK)
        if mh == 0:
            a('L_CV0:')
        for k in range(2):
            for p in range(3):
                cread(k, p)
        a(f'L_CL{mh}:')
        if 'kp' in DBG:
            stamp(a, 4)
        for k in range(8):
            f = CF[k & 3]
            a(f"""s_waitcnt lgkmcnt(6)
            {MFMA} {vr(acc, 16)}, {vr(f, 4)}, {vr(f + 4, 4)}, {vr(acc, 16)}""")
            cread(k + 2, 0)
            if k == 5:
                a(f'v_subrev_u32 v{vA}, 256, v{vA}')
            a(f'{MFMA} {vr(ac1, 16)}, {vr(f, 4)}, {vr(f + 8, 4)}, {vr(ac1, 16)}')
            cread(k + 2, 1)
            if k == 5:
                a(f'v_subrev_u32 v{vB}, 64, v{vB}')
            a(f'{MFMA} {vr(ac1, 16)}, {vr(f + 12, 4)}, {vr(f + 4, 4)}, {vr(ac1, 16)}')
            cread(k + 2, 2)
            if k == 5:
                a(f"""v_subrev_u32 v{vA2}, 256, v{vA2}
                s_sub_u32 s59, s59, 1
                s_cmp_lg_u32 s59, 0""")
        a(f's_cbranch_scc1 L_CL{mh}')
        if mh == 1:
            a('s_branch L_CV1')
    a('L_CV1:')
    if 'cs' in DBG:
        stamp(a, 10, True)
    a(f"""s_setprio 0
    s_and_b32 s57, s{sWV}, 3
    s_lshl_b32 s57, s57, 12
    s_add_u32 s58, s57, {L_CV}
    v_add_u32 v{CXW}, s58, v1
    s_xor_b32 s57, s57, 4096
    s_add_u32 s58, s57, {L_CV}
    v_add_u32 v{CXR}, s58, v1
    s_lshl_b32 s62, s{sCH}, 12
    s_lshl_b32 s58, s{sMH}, 11
    s_add_u32 s62, s62, s58
    s_add_u32 s62, s62, {BT}
    s_waitcnt lgkmcnt(0)""")
    stamp(a, 6)


Q, Kf, V1 = (4, 8), 12, 16
V0 = (20, 24)
vIX, vK, vV = 28, 29, 30
S = (32, 48)
O, M = (64, 80), (96, 112)
T0 = 128
sQT, sKH, sH = 20, 21, 22


def rowmax(a, src, dst):
    a(f'v_max3_f32 v{dst}, v{src}, v{src + 1}, v{src + 2}')
    for i in range(3, 15, 2):
        a(f'v_max3_f32 v{dst}, v{dst}, v{src + i}, v{src + i + 1}')
    a(f'v_max_f32 v{dst}, v{dst}, v{src + 15}')


def set_m(a, mx, t, m):
    a(f'''v_mov_b32 v{t}, v{mx}
    v_permlane32_swap_b32 v{mx}, v{t}
    v_max_f32 v{mx}, v{mx}, v{t}
    v_sub_f32 v{m}, 0, v{mx}
    v_sub_f32 v{m + 1}, 0, v{mx}''')
    for i in range(2, 16, 2):
        a(f'v_pk_mov_b32 {vr(m + i, 2)}, {vr(m, 2)}, {vr(m, 2)} op_sel:[0,1]')


def attn_setup(a):
    a(f'''s_and_b32 s{sH}, s2, 31
    s_lshr_b32 s{sQT}, s2, 5
    s_lshl_b32 s{sQT}, s{sQT}, 2
    s_and_b32 s23, s{sWV}, 3
    s_add_u32 s{sQT}, s{sQT}, s23
    s_lshl_b32 s{sQT}, s{sQT}, 1
    s_lshr_b32 s{sKH}, s{sWV}, 2
    s_lshl_b32 s24, s{sKH}, 15
    s_lshl_b32 s23, s23, 11
    s_add_u32 s23, s23, {L_T}
    v_mov_b32 v{vIX}, 0xdddd
    v_add_u32 v{vK}, s24, v1
    v_add_u32 v{vK}, {L_K}, v{vK}
    v_and_b32 v{T0}, 15, v2
    v_lshlrev_b32 v{T0}, 4, v{T0}
    v_lshl_add_u32 v{T0}, v3, 8, v{T0}
    s_add_u32 s24, s24, {L_V}
    v_add_u32 v{vV}, s24, v{T0}
    v_cmp_eq_u32 vcc, 16, v2
    v_mov_b32 v{T0}, 0x3f803f80
    s_mov_b32 s12, 0xffff
    s_mov_b32 s13, 0xffff
    v_cndmask_b32 v{V1}, 0, v{T0}, vcc
    v_add_u32 v{T0}, s23, v1''')
    for i in range(1, 12):
        a(f'v_mov_b32 v{V1 + i}, v{V1}')
    for i in range(32):
        a(f'v_mov_b32 v{O[0] + i}, 0')


def attn_loop(a, young):
    if not young:
        attn_setup(a)
    y = int(young)
    if PDRY and not young:
        a(f'''v_mov_b32 v{CXW}, 0
        s_mov_b64 s[14:15], 0
        s_mov_b64 s[16:17], 0
        s_mov_b64 exec, 0
        s_branch L_PRO1
L_DRY1:
        s_branch L_PRO0
L_DRY0:
        s_mov_b64 exec, -1''')
    a('''s_mov_b64 s[14:15], -1
    s_mov_b64 s[16:17], s[12:13]''')
    if young and YPRE:
        a('s_setprio 1')
    stamp(a, 7)
    a(f'''s_barrier
L_PRO{y}:
    ds_read_b128 {vr(Kf, 4)}, v{vK}
    ds_read_b128 {vr(Q[0], 4)}, v{T0}
    ds_read_b128 {vr(Q[1], 4)}, v{T0} offset:1024
    s_mov_b64 exec, s[16:17]
    ds_read_b128 {vr(V0[0], 4)}, v{vV}
    s_mov_b64 exec, s[14:15]''')
    stamp(a, 8)
    if 'as' in DBG:
        stamp(a, 1, True)
    a(f'''s_waitcnt lgkmcnt(2)
    {MFMA} {vr(S[0], 16)}, {vr(Kf, 4)}, {vr(Q[0], 4)}, 0
    s_waitcnt lgkmcnt(0)
    {MFMA} {vr(S[1], 16)}, {vr(Kf, 4)}, {vr(Q[1], 4)}, 0''')
    if young:
        for i in range(4):
            a(f'ds_write_b128 v{CXW}, {vr(CG + 4 * i, 4)} offset:{i * 1024}')
    rowmax(a, S[0], T0)
    rowmax(a, S[1], T0 + 1)
    set_m(a, T0, T0 + 2, M[0])
    a(f'{MFMA} {vr(S[0], 16)}, {vr(Kf, 4)}, {vr(Q[0], 4)}, {vr(M[0], 16)}')
    set_m(a, T0 + 1, T0 + 2, M[1])
    if PDRY:
        a(f'''s_cmp_eq_u32 s14, 0
        s_cbranch_scc1 L_DRY{y}''')
    if young:
        a('s_setprio 1')
    if 'as' in DBG:
        stamp(a, 2, True)
    NT = 32
    for u in range(2 * NT):
        t, q = u >> 1, u & 1
        s, sn = S[q], S[q ^ 1]

        def e(i):
            if young and q == 1 and i == 11 and PWIN:
                a('s_setprio 0')
            a(f'v_exp_f32 v{s + i}, v{s + i}')
            if young and q == 1 and i == 10 + PWIN and PWIN:
                a('s_setprio 1')

        if q == 0 and t + 1 in KV_G[:2]:
            if t + 1 == KV_G[1]:
                a('s_waitcnt vmcnt(0)')
            if 'as' in DBG:
                stamp(a, 3 if t + 1 == KV_G[0] else 7, True)
            a('s_barrier')
            if 'as' in DBG:
                stamp(a, 4 if t + 1 == KV_G[0] else 8, True)
            if young and t + 1 == KV_G[0]:
                for i in range(4):
                    a(f'ds_read_b128 {vr(CG + 4 * i, 4)}, v{CXR} offset:{i * 1024}')
        if young and u == 2 * KV_G[0] - 1:
            a('s_waitcnt lgkmcnt(0)')
            for i in range(0, 16, 2):
                a(f'v_pk_add_f32 {vr(CK + i, 2)}, {vr(CK + i, 2)}, {vr(CG + i, 2)}')
            cvt8(a, CG, CK)
            a(f'''buffer_store_dwordx4 {vr(CG, 4)}, v1, {WS_}, s62 offen sc1
            buffer_store_dwordx4 {vr(CG + 4, 4)}, v1, {WS_}, s62 offen offset:1024 sc1''')
        if q == 0 and t + 1 == KV_G[1]:
            stamp(a, 9)
        if 'as' in DBG and u in (6, 12, 30, 46, 62):
            stamp(a, {6: 5, 12: 6, 30: 9, 46: 10, 62: 11}[u], True)
        e(0)
        if q == 1:
            a('s_waitcnt lgkmcnt(0)')
        e(1)
        if u > 0:
            a(f'{SMF} {vr(O[q ^ 1], 16)}, {vr(V1, 4)}, {vr(sn + 8, 8)}, v{vIX}')
        if q == 0:
            a(f'''s_mov_b64 exec, s[12:13]
            ds_read_b128 {vr(V1, 4)}, v{vV} offset:{t * 1024 + 512}''')
            if t + 1 < NT:
                a(f'ds_read_b128 {vr(V0[(t + 1) & 1], 4)}, v{vV} offset:{(t + 1) * 1024}')
            a('s_mov_b64 exec, -1')
        nq = 6 if (q == 0 and t + 1 < NT) else 5
        for i in range(2, nq):
            e(i)
        if u + 1 < 2 * NT:
            a(f'{MFMA} {vr(sn, 16)}, {vr(Kf, 4)}, {vr(Q[q ^ 1], 4)}, {vr(M[q ^ 1], 16)}')
        if q == 0 and t + 1 < NT:
            a(f'ds_read_b128 {vr(Kf, 4)}, v{vK} offset:{(t + 1) * 1024}')
        for i in range(nq, 11):
            e(i)
        a(f'{SMF} {vr(O[q], 16)}, {vr(V0[t & 1], 4)}, {vr(s, 8)}, v{vIX}')
        for i in range(11, 16):
            e(i)
    keep = 1 if young else 0
    give = keep ^ 1
    a(f'''s_mul_i32 s54, s{sWV}, 3072
    s_add_u32 s54, s54, {L_CV}
    {SMF} {vr(O[1], 16)}, {vr(V1, 4)}, {vr(S[1] + 8, 8)}, v{vIX}
    v_add_u32 v{T0}, s54, v1
    s_xor_b32 s54, s{sWV}, 4
    s_mul_i32 s54, s54, 3072
    s_add_u32 s54, s54, {L_CV}
    v_add_u32 v{T0 + 1}, s54, v1
    s_add_u32 s{sQT}, s{sQT}, s{sKH}
    s_lshl_b32 s54, s{sQT}, 5
    s_add_u32 s54, s54, s{sH}
    s_mul_i32 s55, s{sQT}, {FS}
    s_lshl_b32 s56, s{sH}, {FSH}
    s_add_u32 s55, s55, s56
    s_add_u32 s55, s55, {FO}
    s_lshl_b32 s54, s54, 10
    s_add_u32 s54, s54, {OF}
    s_setprio 0''')
    stamp(a, 10)
    a(f'''v_mov_b32 v{O[give] + 9}, v{M[give]}
    ds_write_b128 v{T0}, {vr(O[give], 4)}
    ds_write_b128 v{T0}, {vr(O[give] + 4, 4)} offset:1024
    ds_write_b128 v{T0}, {vr(O[give] + 8, 4)} offset:2048''')
    if young:
        for i in range(9):
            a(f'v_mov_b32 v{O[0] + i}, v{O[1] + i}')
        for i in range(4):
            a(f'v_mov_b32 v{Q[0] + i}, v{Q[1] + i}')
        a(f'v_mov_b32 v{M[0]}, v{M[1]}')


def attn_tail(a):
    X = S[0]
    Oo, Mo = O[0], M[0]
    a(f'''L_ATT_X:
    s_waitcnt lgkmcnt(0)
    s_barrier
    ds_read_b128 {vr(X + 8, 4)}, v{T0 + 1} offset:2048
    ds_read_b128 {vr(X, 4)}, v{T0 + 1}
    ds_read_b128 {vr(X + 4, 4)}, v{T0 + 1} offset:1024
    s_mov_b32 s56, {f32(2.0 ** 60)}
    s_waitcnt lgkmcnt(2)
    v_min_f32 v{T0}, v{Mo}, v{X + 9}
    v_sub_f32 v{T0 + 2}, v{T0}, v{Mo}
    v_sub_f32 v{T0 + 3}, v{T0}, v{X + 9}
    v_exp_f32 v{T0 + 2}, v{T0 + 2}
    v_exp_f32 v{T0 + 3}, v{T0 + 3}
    v_cmp_nlt_f32 vcc, v{Oo + 8}, s56
    v_cmp_nlt_f32 s[58:59], v{X + 8}, s56
    v_mul_f32 v{T0}, v{Oo + 8}, v{T0 + 2}
    v_fma_f32 v{T0}, v{X + 8}, v{T0 + 3}, v{T0}
    s_or_b32 s58, s58, vcc_lo
    v_mov_b32 v{T0 + 1}, v{T0}
    s_cmp_lg_u32 s58, 0
    s_cbranch_scc1 L_REDO
    v_permlane32_swap_b32 v{T0}, v{T0 + 1}
    v_rcp_f32 v{T0}, v{T0}
    s_waitcnt lgkmcnt(0)
    v_mul_f32 v{T0 + 2}, v{T0 + 2}, v{T0}
    v_mul_f32 v{T0 + 3}, v{T0 + 3}, v{T0}''')
    for i in range(0, 8, 2):
        a(f'v_pk_mul_f32 {vr(Oo + i, 2)}, {vr(Oo + i, 2)}, {vr(T0 + 2, 2)} op_sel:[0,0] op_sel_hi:[1,0]')
    for i in range(0, 8, 2):
        a(f'v_pk_fma_f32 {vr(Oo + i, 2)}, {vr(X + i, 2)}, {vr(T0 + 2, 2)}, {vr(Oo + i, 2)} op_sel:[0,1,0] op_sel_hi:[1,1,1]')
    a('L_FIN:')
    cvt8(a, X, Oo, 4)
    a(f'buffer_store_dwordx4 {vr(X, 4)}, v1, {WS_}, s54 offen sc1')
    if NOX3:
        lds_add(a, SY_DONE, T0, T0 + 1)
    flag_set(a, 55, T0, T0 + 1)
    stamp(a, 11)
    stamp_flush(a)
    a('s_endpgm')
    a(f'''L_REDO:
    s_waitcnt lgkmcnt(0)
    v_mov_b32 v{T0}, 0xff800000
    v_add_u32 v{T0 + 2}, {L_K}, v1
    s_mov_b32 s57, 64
L_R1:
    ds_read_b128 {vr(Kf, 4)}, v{T0 + 2}
    v_add_u32 v{T0 + 2}, 1024, v{T0 + 2}
    s_waitcnt lgkmcnt(0)
    {MFMA} {vr(S[0], 16)}, {vr(Kf, 4)}, {vr(Q[0], 4)}, 0''')
    rowmax(a, S[0], T0 + 1)
    a(f'''v_max_f32 v{T0}, v{T0}, v{T0 + 1}
    s_sub_u32 s57, s57, 1
    s_cmp_lg_u32 s57, 0
    s_cbranch_scc1 L_R1''')
    set_m(a, T0, T0 + 1, Mo)
    for i in range(16):
        a(f'v_mov_b32 v{Oo + i}, 0')
    a(f'''v_add_u32 v{T0 + 2}, {L_K}, v1
    s_lshl_b32 s57, s{sKH}, 15
    v_subrev_u32 v{T0 + 3}, s57, v{vV}
    s_mov_b32 s57, 64
L_R2:
    ds_read_b128 {vr(Kf, 4)}, v{T0 + 2}
    s_mov_b64 exec, s[12:13]
    ds_read_b128 {vr(V0[0], 4)}, v{T0 + 3}
    ds_read_b128 {vr(V1, 4)}, v{T0 + 3} offset:512
    s_mov_b64 exec, -1
    v_add_u32 v{T0 + 2}, 1024, v{T0 + 2}
    v_add_u32 v{T0 + 3}, 1024, v{T0 + 3}
    s_waitcnt lgkmcnt(0)
    {MFMA} {vr(S[0], 16)}, {vr(Kf, 4)}, {vr(Q[0], 4)}, {vr(Mo, 16)}''')
    for i in range(16):
        a(f'v_exp_f32 v{S[0] + i}, v{S[0] + i}')
    a(f'''{SMF} {vr(Oo, 16)}, {vr(V0[0], 4)}, {vr(S[0], 8)}, v{vIX}
    {SMF} {vr(Oo, 16)}, {vr(V1, 4)}, {vr(S[0] + 8, 8)}, v{vIX}
    s_sub_u32 s57, s57, 1
    s_cmp_lg_u32 s57, 0
    s_cbranch_scc1 L_R2
    s_nop 9
    v_mov_b32 v{T0}, v{Oo + 8}
    v_mov_b32 v{T0 + 1}, v{Oo + 8}
    v_permlane32_swap_b32 v{T0}, v{T0 + 1}
    v_rcp_f32 v{T0}, v{T0}''')
    for i in range(8):
        a(f'v_mul_f32 v{Oo + i}, v{Oo + i}, v{T0}')
    a('s_branch L_FIN')


def aux(a):
    sC, sROW = 51, 53
    vGX, vGW, vWO, vID, D2 = 16, 24, 28, 36, 44
    vWD, vXD, vLD, vPR, vF = 5, 8, 12, 13, 60
    vm = VM(a)
    a(f"""L_AUX:
    s_setprio {LOAD_PRIO}
    s_and_b32 s{sC}, s{sWV}, 3
    v_lshrrev_b32 v{vWD}, 2, v0
    v_mul_u32_u24 v{vWD}, 3072, v{vWD}
    v_and_b32 v6, 3, v0
    v_lshl_add_u32 v{vWD}, v6, 4, v{vWD}
    s_lshl_b32 s54, s{sCB}, 6
    s_mul_i32 s55, s{sC}, 49152
    s_add_u32 s54, s54, s55
    s_mul_i32 s55, s{sC}, 3072
    s_add_u32 s55, s55, {L_K}
    s_lshl_b32 s56, s{sRB}, 2
    s_add_u32 s56, s56, s{sC}
    s_lshl_b32 s56, s56, 15
    s_lshl_b32 s57, s{sC}, 12
    s_add_u32 s57, s57, {L_K + 12288}
    s_mov_b32 s58, s{sR}
    v_lshrrev_b32 v6, 4, v0
    v_and_b32 v7, 7, v0
    v_xor_b32 v6, v6, v7
    v_lshlrev_b32 v6, 4, v6
    v_lshrrev_b32 v7, 3, v0
    v_lshl_add_u32 v{vXD}, v7, 10, v6
    v_xor_b32 v{vXD + 1}, 64, v{vXD}
    v_add_u32 v{vXD + 2}, {2 * 7168}, v{vXD}
    v_add_u32 v{vXD + 3}, {3 * 7168}, v{vXD + 1}
    v_add_u32 v{vXD + 1}, 7168, v{vXD + 1}""")
    srd(a, sW, 6, 0x180000)
    a(f"""v_mov_b32 v14, 0
    v_mov_b32 v15, {L_SY + SY_NONCE}
    s_mov_b32 s{sNON}, 0
    s_lshl_b32 s59, s2, 4
    s_add_u32 s59, s59, s{sWV}
    s_cmp_lg_u32 s59, 8
    s_cbranch_scc1 L_TAG_MADE
    s_memrealtime s[60:61]
    s_waitcnt lgkmcnt(0)
    s_mul_i32 s60, s60, 0x9e3779b1
    s_or_b32 s60, s60, 1
    v_mov_b32 v7, s60
    s_mov_b64 exec, 1
    global_store_dword v14, v7, s[30:31] sc1
    s_mov_b64 exec, -1
L_TAG_MADE:""")

    def landed(st, tag=True):
        vm.wait(st)
        a(f'ds_write_b32 v{vLD}, v{24 + st}')
        if tag and st in TAG_ST:
            a(f"""s_mov_b64 exec, 1
            ds_or_b32 v15, v{16 + st}
            s_mov_b64 exec, -1""")

    for st in range(8):
        if 'st' in DBG and st < 3:
            stamp(a, 7 + st, True)
        if st == 1:
            a(f"""s_lshl_b32 s59, s{sC}, 2
            s_add_u32 s59, s59, {L_SY + SY_LD}
            v_mov_b32 v{vLD}, s59
            v_mov_b32 v{vPR}, {L_SY + SY_PR}""")
            for i in range(8):
                a(f'v_mov_b32 v{24 + i}, {i + 1}')
        slot = (st if st < 4 else st - NSLOT) * SLOT
        if st >= NSLOT and ADAPT:
            l = a.lab('FR')
            a(f"""ds_read_b128 {vr(vF, 4)}, v{vPR}
            s_waitcnt lgkmcnt(0)
            v_min3_u32 v{vF}, v{vF}, v{vF + 1}, v{vF + 2}
            v_min_u32 v{vF}, v{vF}, v{vF + 3}
            s_nop 0
            v_readfirstlane_b32 s64, v{vF}
            s_cmp_ge_u32 s64, {st - NSLOT + 1}
            s_cbranch_scc1 {l}""")
            landed(st - 1, tag=False)
            min4_wait(a, vPR, vF, st - NSLOT + 1)
            a(f'{l}:')
        elif st >= NSLOT:
            min4_wait(a, vPR, vF, st - NSLOT + 1)
        elif st == 4:
            a(f'v_mov_b32 v6, {L_SY + SY_TAB}')
            lds_wait(a, 6, 2, 7, sleep=True)
        if st in TAG_ST:
            vm.issue(st, f'global_load_dword v{16 + st}, v14, s[30:31] sc1')
        a(f"""s_mul_i32 s59, s58, 196608
        s_add_u32 s59, s59, s54
        s_add_u32 m0, s55, {slot}
        s_lshl_b32 s60, s58, 7""")
        for sg in range(3):
            vm.issue(st, f'buffer_load_dwordx4 v{vWD}, {W_}, s59 offen offset:{sg * 1024} lds')
        a(f"""s_add_u32 m0, s57, {slot}
        s_add_u32 s60, s60, s56""")
        for q in range(4):
            vm.issue(st, f'buffer_load_dwordx4 v{vXD + q}, {X_}, s60 offen offset:{q * 1024} lds')
        a("""s_add_u32 s58, s58, 1
        s_and_b32 s58, s58, 7""")
        order = {2: [0], 3: [1, 2]}.get(st, [st - 1] if st >= 4 else []) if LAG == 2 else [st - 1] if st else []
        for k in order:
            landed(k)
            if 'gs' in DBG:
                stamp(a, 5 + k, True)
    landed(7)
    a(f"""s_setprio 0
    ds_read_b32 v16, v15
    s_mov_b32 s65, {SPIN_G}
    s_waitcnt lgkmcnt(0)
    v_readfirstlane_b32 s{sNON}, v16
L_TAG_P:
    s_cmp_lg_u32 s{sNON}, 0
    s_cbranch_scc1 L_TAG_OK
    global_load_dword v16, v14, s[30:31] sc1
    s_waitcnt vmcnt(0)
    v_readfirstlane_b32 s{sNON}, v16
    s_sub_u32 s65, s65, 1
    s_cbranch_scc0 L_TAG_P
    s_mov_b32 s{sNON}, 1
L_TAG_OK:
    v_mov_b32 v16, s{sNON}
    ds_write_b32 v15, v16""")
    stamp(a, 1)
    a(f"""s_and_b32 s60, s2, 7
    s_lshl_b32 s60, s60, 5
    s_lshr_b32 s61, s2, 3
    s_add_u32 s60, s60, s61
    s_lshr_b32 s57, s60, 4
    s_mul_i32 s57, s57, {FS}
    s_add_u32 s57, s57, {FX}
    s_lshl_b32 s60, s60, 13
    s_lshl_b32 s61, s{sC}, 11
    s_add_u32 s60, s60, s61
    s_add_u32 s60, s60, {XT}
    s_lshr_b32 s61, s{sC}, 1
    s_mul_i32 s61, s61, {CVS}
    s_and_b32 s62, s{sC}, 1
    s_mul_i32 s62, s62, 3072
    s_add_u32 s61, s61, s62
    v_and_b32 v5, 15, v0
    v_lshlrev_b32 v5, {FSH}, v5""")
    relay_wait(a, 8, SY_XOK, lambda: flag_wait(a, 5, 57, 7), 6, 7)
    a(f'v_mov_b32 v6, {L_SY + SY_TAB}')
    lds_wait(a, 6, 2, 7, sleep=True)
    if NSLOT == 5:
        min4_wait(a, vPR, vF, 5)
    a(f"""s_add_u32 m0, s61, {L_CV + L_U + 512}
    s_nop 0
    buffer_load_dwordx4 v1, {WS_}, s60 offen sc1 lds
    s_add_u32 m0, s61, {L_CV + L_U + 1024}
    s_nop 0
    buffer_load_dwordx4 v1, {WS_}, s60 offen offset:1024 sc1 lds""")
    vID = 8
    if LATE_W == 0:
        side_loads(a, 11)
    identity_frags(a, vID, 2, 3, 6, 7, 12)
    if LATE_W == 0:
        side_work(a, 11, 0, vID)
    a('s_waitcnt vmcnt(0)')
    lds_add(a, SY_U, 6, 7)
    sG, sL = 54, 55
    vm = VM(a)
    a(f'''s_and_b32 s56, s2, 31
    s_lshr_b32 s57, s56, 1
    s_mul_i32 s57, s57, {FS}
    s_add_u32 s57, s57, {FQ}
    s_lshl_b32 s56, s56, 16
    s_lshr_b32 s58, s{sC}, 1
    s_lshl_b32 s58, s58, 15
    s_and_b32 s59, s{sC}, 1
    s_lshl_b32 s{sL}, s59, 16
    s_add_u32 s{sL}, s{sL}, s58
    s_add_u32 s{sL}, s{sL}, {L_K}
    s_mul_i32 s{sG}, s59, {VF - KF}
    s_add_u32 s{sG}, s{sG}, s58
    s_add_u32 s{sG}, s{sG}, s56
    s_add_u32 s{sG}, s{sG}, {KF}
    s_lshr_b32 s58, s2, 5
    s_lshl_b32 s58, s58, 2
    s_add_u32 s58, s58, s{sC}
    s_lshl_b32 s58, s58, 11
    s_add_u32 s56, s56, s58
    s_add_u32 s56, s56, {QF}
    v_mov_b32 v6, {L_SY + SY_FREE}
    v_and_b32 v5, 15, v0
    v_lshlrev_b32 v5, {FSH}, v5''')
    lds_wait(a, 6, 8, 7, sleep=True)
    stamp(a, 3)

    def poll_q():
        a(f'v_mov_b32 v16, {L_SY + SY_Q}')
        lds_wait(a, 16, 4, 7, sleep=True)
        if FAST:
            flag_wait_fast(a, 5, 57, 18)
        else:
            flag_wait(a, 5, 57, 7)

    if ALLPOLL:
        poll_q()
    else:
        relay_wait(a, 8, SY_QOK, poll_q, 6, 7)
    a('s_waitcnt vmcnt(0)')
    stamp(a, 4)
    a(f'''s_lshl_b32 s58, s{sC}, 11
    s_add_u32 m0, s58, {L_T}
    s_nop 0''')
    for i in range(2):
        vm.issue('q', f'buffer_load_dwordx4 v1, {WS_}, s56 offen offset:{i * 1024} sc1 lds')

    def kv(t0, t1):
        for t in range(t0, t1):
            if t == t0 or t % 4 == 0:
                a(f'''s_add_u32 m0, s{sL}, {(t & ~3) * 1024}
                s_add_u32 s58, s{sG}, {(t & ~3) * 1024}''')
            vm.issue(t, f'buffer_load_dwordx4 v1, {WS_}, s58 offen offset:{(t & 3) * 1024} sc1 lds')

    kv(0, KV_G[1])
    vm.wait(KV_G[0] - 1)
    a('''s_setprio 3
    s_barrier''')
    stamp(a, 5)
    kv(KV_G[1], KV_G[2])
    vm.wait(KV_G[1] - 1)
    a('s_barrier')
    if LATE_W == 1:
        side_loads(a, 11)
    kv(KV_G[2], 32)
    if LATE_W == 1 and SIDE_PRE:
        side_work(a, 11, 32 - KV_G[2], vID)
        a('''s_waitcnt vmcnt(1)
        s_barrier''')
    else:
        a('''s_waitcnt vmcnt(0)
        s_barrier''')
        if LATE_W == 1:
            side_work(a, 11, 0, vID)
    a(f'''s_lshl_b32 s4, s2, 2
    s_add_u32 s4, s4, {FW}''')
    group_flag_set(a, SY_W, 4, 6, 7)
    stamp(a, 2)
    stamp(a, 6)

    a('s_setprio 3')
    sT3, sC3 = 52, 53
    vG, vOA, BTM, acc, FR, WO = 5, 6, 8, 16, (32, 36), 40
    a(f'''s_setprio 3
    s_and_b32 s{sT3}, s2, 7
    s_lshl_b32 s{sT3}, s{sT3}, 3
    s_bfe_u32 s54, s2, 0x30003
    s_add_u32 s{sT3}, s{sT3}, s54
    s_lshr_b32 s{sC3}, s2, 6
    s_mov_b32 s54, {FW}
    ''')

    def poll_w():
        flag_wait(a, 1, 54, acc, n=4, sleep=8)

    relay_wait(a, 8, SY_WOK, poll_w, 6, 7)
    a(f"""s_lshl_b32 s56, s2, 4
    s_add_u32 s56, s56, s{sWV}
    s_cmp_lg_u32 s56, 8
    s_cbranch_scc1 L_TAG_KEEP
    v_mov_b32 v6, 0
    s_mov_b64 exec, 1
    global_store_dword v6, v6, s[30:31] sc1
    s_mov_b64 exec, -1
L_TAG_KEEP:""")
    vBT, vI3, accb = FR[0], BTM, acc
    a(f"""s_lshl_b32 s{sC3}, s{sC3}, 2
    s_add_u32 s{sC3}, s{sC3}, s{sC}
    v_lshlrev_b32 v6, 12, v4
    v_lshl_add_u32 v6, v3, 9, v6
    s_lshl_b32 s54, s{sC3}, 17
    s_lshr_b32 s55, s{sT3}, 5
    s_lshl_b32 s55, s55, 11
    s_add_u32 s54, s54, s55
    s_and_b32 s55, s{sT3}, 31
    s_lshl_b32 s55, s55, 4
    s_add_u32 s54, s54, s55
    s_add_u32 s54, s54, {BT}
    s_lshl_b32 s55, s{sT3}, 7
    s_add_u32 s55, s55, {GG}
    v_lshlrev_b32 v7, 2, v2
    buffer_load_dwordx4 {vr(vBT, 4)}, v6, {WS_}, s54 offen sc1
    buffer_load_dwordx4 {vr(vBT + 4, 4)}, v6, {WS_}, s54 offen offset:1024 sc1
    buffer_load_dword v{vG}, v7, {WS_}, s55 offen sc1
    s_lshl_b32 s54, s{sC3}, 15
    s_add_u32 s54, s54, {WOF}""")
    for k in range(32):
        if k and k % 4 == 0:
            a('s_add_u32 s54, s54, 4096')
        a(f'buffer_load_dwordx4 {vr(WO + 4 * k, 4)}, v1, {WS_}, s54 offen offset:{(k & 3) * 1024} sc1')
    a(f"""s_waitcnt vmcnt(32)
    {MFMA} {vr(accb, 16)}, {vr(vBT, 4)}, {vr(vI3, 4)}, 0
    {MFMA} {vr(accb, 16)}, {vr(vBT + 4, 4)}, {vr(vI3 + 4, 4)}, {vr(accb, 16)}
    v_sub_f32 v7, 1.0, v{vG}
    v_lshlrev_b32 v{vOA}, 10, v2
    v_lshl_add_u32 v{vOA}, v3, 4, v{vOA}""")
    for i in range(0, 16, 2):
        a(f'v_pk_mul_f32 {vr(accb + i, 2)}, {vr(accb + i, 2)}, v[6:7] op_sel:[0,1] op_sel_hi:[1,1]')
    cvt8(a, BTM, accb)
    a(f'''s_mul_i32 s54, s{sT3}, {FS}
    s_add_u32 s54, s54, {FO}
    s_lshl_b32 s55, s{sT3}, 15
    s_add_u32 s55, s55, {OF}
    s_lshl_b32 s56, s{sC}, 10
    s_add_u32 s55, s55, s56
    s_lshl_b32 s57, s{sT3}, 15
    s_lshl_b32 s58, s{sC3}, 6
    s_add_u32 s57, s57, s58
    v_lshlrev_b32 v7, {FSH}, v2''')
    if OUT_LDS:
        a(f'''s_mul_i32 s58, s{sC}, 2560
        s_add_u32 s58, s58, {L_V}
        v_mul_u32_u24 v2, 80, v2
        v_lshl_add_u32 v2, v3, 4, v2
        v_add_u32 v2, s58, v2
        v_lshrrev_b32 v{vOA}, 2, v0
        v_and_b32 v0, 3, v0
        v_mul_u32_u24 v3, 80, v{vOA}
        v_lshl_add_u32 v3, v0, 4, v3
        v_add_u32 v3, s58, v3
        v_lshlrev_b32 v{vOA}, 10, v{vOA}
        v_lshl_add_u32 v{vOA}, v0, 4, v{vOA}''')
    srd(a, sOUT, 28, 0x200000)
    stamp(a, 7)
    a('s_barrier')
    if NOX3:
        stamp(a, 8)

        def poll_o():
            flag_wait(a, 7, 54, FR[0], n=1, sleep=OSLEEP)
            a(f'v_mov_b32 v{FR[0]}, {L_SY + SY_DONE}')
            lds_wait(a, FR[0], 8, FR[0] + 1, sleep=True)

        relay_wait(a, 8, SY_OOK, poll_o, FR[1], FR[1] + 1)
        a('s_waitcnt vmcnt(0)')
    else:
        a('s_barrier')
        stamp(a, 8)
        if ALLPOLL > 1:
            flag_wait(a, 7, 54, FR[0], n=1, sleep=OSLEEP)
        else:
            a(f'''s_cmp_lg_u32 s{sWV}, 8
            s_cbranch_scc1 L_OWAIT''')
            flag_wait(a, 7, 54, FR[0], n=1, sleep=OSLEEP)
            a('''L_OWAIT:
            s_waitcnt vmcnt(0)
            s_barrier''')
    stamp(a, 9)
    for i in range(8):
        a(f'''s_add_u32 m0, s56, {L_K + i * 4096}
        s_nop 0
        buffer_load_dwordx4 v1, {WS_}, s55 offen sc1 lds
        s_add_u32 s55, s55, 4096''')
    for c in range(4):
        a(f'''s_waitcnt vmcnt({6 - 2 * c})
        s_barrier
        ds_read_b128 {vr(FR[0], 4)}, v1 offset:{L_K + 8 * c * 1024}''')
        for k in range(8 * c, 8 * c + 8):
            if k + 1 < 8 * c + 8:
                a(f'''ds_read_b128 {vr(FR[(k + 1) & 1], 4)}, v1 offset:{L_K + (k + 1) * 1024}
                s_waitcnt lgkmcnt(1)''')
            else:
                a('s_waitcnt lgkmcnt(0)')
            a(f'{MFMA} {vr(acc, 16)}, {vr(WO + 4 * k, 4)}, {vr(FR[k & 1], 4)}, {vr(acc, 16) if k else 0}')
    stamp(a, 10)
    for i in range(8):
        a(f'''v_lshlrev_b32 v{WO + 2 * i}, 16, v{BTM + i}
        v_and_b32 v{WO + 2 * i + 1}, 0xffff0000, v{BTM + i}''')
    for i in range(0, 16, 2):
        a(f'v_pk_fma_f32 {vr(acc + i, 2)}, {vr(acc + i, 2)}, v[4:5], {vr(WO + i, 2)} op_sel:[0,1,0] op_sel_hi:[1,1,1]')
    cvt8(a, BTM, acc)
    if OUT_LDS:
        a(f'''ds_write_b128 v2, {vr(BTM, 4)}
        ds_write_b128 v2, {vr(BTM + 4, 4)} offset:32
        s_add_u32 s58, s57, 16384
        s_waitcnt lgkmcnt(0)
        ds_read_b128 {vr(BTM, 4)}, v3
        ds_read_b128 {vr(BTM + 4, 4)}, v3 offset:{16 * 80}
        s_waitcnt lgkmcnt(1)
        buffer_store_dwordx4 {vr(BTM, 4)}, v{vOA}, {OUT_}, s57 offen {OUTF}
        s_waitcnt lgkmcnt(0)
        buffer_store_dwordx4 {vr(BTM + 4, 4)}, v{vOA}, {OUT_}, s58 offen {OUTF}''')
    else:
        a(f'''buffer_store_dwordx4 {vr(BTM, 4)}, v{vOA}, {OUT_}, s57 offen {OUTF}
        buffer_store_dwordx4 {vr(BTM + 4, 4)}, v{vOA}, {OUT_}, s57 offen offset:32 {OUTF}''')
    stamp(a, 11)
    stamp_flush(a)
    a('''L_END:
    s_endpgm''')


def kernel(a):
    prologue(a)
    gemm(a)
    attn_loop(a, False)
    a('s_branch L_ATT_X')
    for f in a.deferred:
        f()
    kgen_conv(a)
    attn_loop(a, True)
    attn_tail(a)
    aux(a)


def build():
    here = os.path.dirname(os.path.abspath(__file__))
    ref = open(os.path.join(here, '..', 'cdna_kernels', NAME + '.s.ref')).read().split('\n')
    head = [l for l in ref if l.startswith(';') and 'launch' not in l.lower() and 'lds=0' not in l]
    out = '\n'.join(head) + '\n'
    name = NAME + '_kernel'
    out += f'; @launch grid=(256,1,1) block=(768,1,1) lds={LDS_BYTES}\n'
    out += '.amdgcn_target "amdgcn-amd-amdhsa--gfx950"\n.text\n'
    a = Gen()
    kernel(a)
    bad = a.check_branches()
    if bad:
        for b in bad:
            print('BRANCH HAZARD', b, file=sys.stderr)
        sys.exit(1)
    if ENV('SHOWPAD'):
        for p in a.padded:
            print('pad', p, file=sys.stderr)
    out += f'.globl {name}\n.p2align 8\n.type {name},@function\n{name}:\n' + a.text()
    out += f'''.section .rodata,"a"
.p2align 6
.amdhsa_kernel {name}
  .amdhsa_next_free_vgpr 168
  .amdhsa_next_free_sgpr 100
  .amdhsa_accum_offset 168
  .amdhsa_group_segment_fixed_size 0
  .amdhsa_kernarg_size 112
  .amdhsa_user_sgpr_count 2
  .amdhsa_user_sgpr_kernarg_segment_ptr 1
  .amdhsa_system_sgpr_workgroup_id_x 1
.end_amdhsa_kernel
'''
    return out


if __name__ == '__main__':
    dst = sys.argv[1] if len(sys.argv) > 1 else os.path.join(os.path.dirname(os.path.abspath(__file__)), '..', 'cdna_kernels', NAME + '.s')
    open(dst, 'w').write(build())
    print('wrote', dst)
```

```python
import sys, os, struct
sys.path.insert(0, os.path.dirname(os.path.abspath(__file__)))
from asmlib import Asm, vr, sr

NAME = 'gated_mix__softmax_full_mha__ssm_conv_s4d__prompt'
ENV = os.environ.get
STAMP = bool(ENV('STAMP'))

RSTRIDE = 0x210000
QF, KF, VF, OF, XT, BT, WOF = (0x10000 + i * RSTRIDE for i in range(7))
GG = WOF + 0x80000
FRAGT = True
FS = 0x1100
FX = GG + 0x10000
FQ, FW, FO = FX + 16 * FS, FX + 32 * FS, FX + 33 * FS
FSH = int(ENV('FSH', 7))
STAMPS = 0xF20000
WS_BYTES = 0x1200000 if STAMP else 0xE00000
TOUCH = int(ENV('TOUCH', 0))

SLOT = 28672
L_CV = 0
CVS = 16128
L_K = 2 * CVS
L_V = L_K + 65536
L_XS = L_K + 114688
L_T = L_K + 122880
EROW = 144
L_U = 8320
L_SY = L_K + 131072
NSLOT = int(ENV('NSLOT', 4))
SY_LD, SY_PR, SY_NONCE, SY_FREE, SY_K0, SY_K1, SY_K2 = 0, 16, 32, 36, 40, 48, 56
SY_X, SY_Q, SY_TAB, SY_U, SY_XOK, SY_QOK, SY_WOK, SY_W, SY_XS, SY_DONE, SY_OOK = 64, 68, 72, 76, 80, 84, 88, 92, 96, 112, 116
LDS_BYTES = 163840

LOG2E = 1.4426950408889634
MFMA = 'v_mfma_f32_32x32x16_bf16'
SMF = 'v_smfmac_f32_32x32x32_bf16'
SPIN = 0x40000
SPIN_G = 0x8000

sWV, sX, sW, sWS, sOUT, sRB, sCB, sNON, sR, sP4 = 3, 32, 36, 40, 44, 48, 49, 50, 10, 97
X_, W_, WS_, OUT_ = (f's[{b}:{b + 3}]' for b in (sX, sW, sWS, sOUT))

KV_G = [int(x) for x in ENV('KVG', '2,10,22').split(',')]
PWIN = int(ENV('PWIN', 4))
CONV_PRIO = int(ENV('CPRIO', 0))
GEMM_PRIO = int(ENV('GPRIO', 1))
ROT = int(ENV('ROT', 9))
PSLEEP = int(ENV('PSLEEP', 1))
DBG = ENV('DBG', '')
SIDE_PRE = int(ENV('SIDEPRE', 1))
NOX3 = int(ENV('NOX3', 0))
PDRY = int(ENV('PDRY', 0))
YPRE = int(ENV('YPRE', 1))
ALLPOLL = int(ENV('ALLPOLL', 1))
ADAPT = int(ENV('ADAPT', 1))
GSLEEP = int(ENV('GSLEEP', 1))
XST = 1 if ROT == 2 else 2
OUT_LDS = int(ENV('OUTLDS', 1))
POST_PRIO = int(ENV('PPRIO', 0))
KDRY = int(ENV('KDRY', 0))
FAST = int(ENV('FAST', 0))
FSLEEP = int(ENV('FSLEEP', 2))
OUTF = ENV('OUTF', '')
DRY = int(ENV('DRY', 0))
DEFER = int(ENV('DEFER', 1))
TAIL_PRIO = int(ENV('TPRIO', 2))
RELAY_PRIO = int(ENV('RPRIO', 2))
XPOLL = int(ENV('XPOLL', 8))
RSLEEP = int(ENV('RSLEEP', 1))
LATE_W = int(ENV('LATEW', 1))
TAG_ST = (1, 2, 4)
LOAD_PRIO = int(ENV('LPRIO', 2))
OSLEEP = int(ENV('OSLEEP', 1))
KGEN_PRIO = int(ENV('KPRIO', 2))
CONV_WAIT = int(ENV('CWAIT', 1))
XFLAG_STAGE = int(ENV('XFS', 5))
LAG = int(ENV('LAG', 1))


def f32(x):
    return '0x%08x' % struct.unpack('<I', struct.pack('<f', x))[0]


class Gen(Asm):
    def __init__(self):
        super().__init__()
        self.nlab = 0
        self.deferred = []

    def lab(self, p):
        self.nlab += 1
        return f'{p}_{self.nlab}'


def stamp(a, i, force=False):
    if STAMP and (force or not ('gs' in DBG or 'ks' in DBG or 'ws' in DBG or 'st' in DBG or 'g0' in DBG or 'g4' in DBG or 'cs' in DBG or 'as' in DBG) or (i < 5 and 'as' not in DBG) or i == 0):
        a(f's_mem{"real" if ENV("RT") else ""}time s[{66 + 2 * i}:{67 + 2 * i}]')
        if i == 0:
            a('s_memrealtime s[92:93]')


DIAG = ENV('DIAG')


def diag(a, i):
    if DIAG:
        a(f's_memrealtime s[{66 + 2 * i}:{67 + 2 * i}]')


def diag_end(a):
    if DIAG:
        x, y = (int(c) for c in DIAG)
        a(f'''s_waitcnt vmcnt(0)
        s_memrealtime s[76:77]
        s_waitcnt lgkmcnt(0)
        s_sub_u32 s80, s{66 + 2 * y}, s{66 + 2 * x}
        s_lshl_b32 s80, s80, 1
L_DIAG:
        s_memrealtime s[78:79]
        s_waitcnt lgkmcnt(0)
        s_sub_u32 s78, s78, s76
        s_cmp_lt_u32 s78, s80
        s_cbranch_scc1 L_DIAG''')


def stamp_flush(a):
    if STAMP:
        a(f'''s_waitcnt vmcnt(0)
        s_mem{"real" if ENV("RT") else ""}time s[90:91]
        s_memrealtime s[94:95]
        s_lshl_b32 s96, s2, 4
        s_add_u32 s96, s96, s{sWV}
        s_lshl_b32 s96, s96, 6
        s_add_u32 s96, s96, {STAMPS}
        s_mov_b64 exec, 1
        v_mov_b32 v0, 0
        s_waitcnt lgkmcnt(0)''')
        for i in range(15):
            a(f'''v_mov_b32 v1, s{66 + 2 * i}
            buffer_store_dword v1, v0, {WS_}, s96 offen offset:{4 * i}''')


def srd(a, d, base, nbytes):
    a(f'''s_mov_b32 s{d}, s{base}
    s_and_b32 s{d + 1}, s{base + 1}, 0xffff
    s_mov_b32 s{d + 2}, {nbytes:#x}
    s_mov_b32 s{d + 3}, 0x20000''')


def swap23(a, dst, src, t):
    a(f'''v_lshrrev_b32 v{t}, 1, v{src}
    v_xor_b32 v{t}, v{t}, v{src}
    v_and_b32 v{t}, 4, v{t}
    v_mul_u32_u24 v{t}, 3, v{t}
    v_xor_b32 v{dst}, v{t}, v{src}''')


def identity_frags(a, dst, vn, vh, t0, t1, sb=56):
    a(f'''v_and_b32 v{t0}, 1, v{vn}
    v_lshlrev_b32 v{t0}, 4, v{t0}
    v_mov_b32 v{t1}, 0x3f80
    v_lshlrev_b32 v{t0}, v{t0}, v{t1}
    v_lshrrev_b32 v{t1}, 1, v{vn}
    v_lshlrev_b32 v{dst}, 2, v{vh}
    v_sub_u32 v{t1}, v{t1}, v{dst}''')
    for k in range(8):
        a(f'v_cmp_eq_u32 s[{sb + 2 * (k & 3)}:{sb + 1 + 2 * (k & 3)}], {8 * (k >> 2) + (k & 3)}, v{t1}')
        if (k & 3) == 3:
            for j in range(k - 3, k + 1):
                a(f'v_cndmask_b32 v{dst + j}, 0, v{t0}, s[{sb + 2 * (j & 3)}:{sb + 1 + 2 * (j & 3)}]')


def cvt8(a, dst, src, n=8):
    for i in range(n):
        a(f'v_cvt_pk_bf16_f32 v{dst + i}, v{src + 2 * i}, v{src + 2 * i + 1}')


def lds_add(a, off, t0, t1):
    a(f'''v_mov_b32 v{t0}, {L_SY + off}
    v_mov_b32 v{t1}, 1
    s_mov_b64 exec, 1
    ds_add_u32 v{t0}, v{t1}
    s_mov_b64 exec, -1''')


def lds_wait(a, addr, target, t, sleep=False, dst=64):
    l0, l1 = a.lab('LW'), a.lab('LWD')
    a(f'''s_mov_b32 s65, {SPIN}
{l0}:
    ds_read_b32 v{t}, v{addr}
    s_waitcnt lgkmcnt(0)
    v_readfirstlane_b32 s{dst}, v{t}
    s_sub_u32 s65, s65, 1
    s_cbranch_scc1 {l1}''')
    if target is None:
        a(f's_cmp_eq_u32 s{dst}, 0')
    else:
        a(f's_cmp_lt_u32 s{dst}, {target}')
    if sleep:
        a(f'''s_cbranch_scc0 {l1}
        s_sleep {int(sleep)}
        s_branch {l0}''')
    else:
        a(f's_cbranch_scc1 {l0}')
    a(f'{l1}:')


def get_nonce(a, t0, t1):
    a(f'v_mov_b32 v{t0}, {L_SY + SY_NONCE}')
    lds_wait(a, t0, None, t1, sleep=True, dst=sNON)


def flag_wait(a, voff, soff, t, n=1, sleep=None):
    l0, l1 = a.lab('FW'), a.lab('FWD')
    a(f'''s_mov_b32 s65, {SPIN_G}
{l0}:''')
    if n == 1:
        a(f'buffer_load_dword v{t}, v{voff}, {WS_}, s{soff} offen sc1')
    else:
        for i in range(n // 4):
            a(f'buffer_load_dwordx4 {vr(t + 4 * i, 4)}, v{voff}, {WS_}, s{soff} offen offset:{1024 * i} sc1')
    a('s_waitcnt vmcnt(0)')
    for i in range(n):
        a(f'v_xor_b32 v{t + i}, s{sNON}, v{t + i}')
    for i in range(1, n):
        a(f'v_or_b32 v{t}, v{t}, v{t + i}')
    a(f'''v_cmp_ne_u32 vcc, 0, v{t}
    s_sub_u32 s65, s65, 1
    s_cbranch_scc1 {l1}
    s_cmp_eq_u64 vcc, 0
    s_cbranch_scc1 {l1}
    s_sleep {sleep or PSLEEP}
    s_branch {l0}
{l1}:''')


def flag_wait_fast(a, voff, soff, t):
    l0, l1 = a.lab('FF'), a.lab('FFD')
    ld = lambda r: f'buffer_load_dword v{r}, v{voff}, {WS_}, s{soff} offen sc1'
    a(f'''s_mov_b32 s65, {SPIN_G}
    {ld(t)}
{l0}:''')
    for r in (t, t + 1):
        a(f'''s_sleep {FSLEEP}
        {ld(2 * t + 1 - r)}
        s_waitcnt vmcnt(1)
        v_cmp_ne_u32 vcc, s{sNON}, v{r}
        s_sub_u32 s65, s65, 1
        s_cbranch_scc1 {l1}
        s_cmp_eq_u64 vcc, 0
        s_cbranch_scc1 {l1}''')
    a(f'''s_branch {l0}
{l1}:''')


def flag_set(a, soff, t0, t1):
    a(f'''v_mov_b32 v{t0}, 0
    v_mov_b32 v{t1}, s{sNON}
    s_waitcnt vmcnt(0)
    s_mov_b64 exec, 1
    buffer_store_dword v{t1}, v{t0}, {WS_}, s{soff} offen sc1
    s_mov_b64 exec, -1''')


def group_flag_set(a, cnt, soff, t0, t1, n=4):
    l = a.lab('GF')
    a(f'''v_mov_b32 v{t0}, {L_SY + cnt}
    v_mov_b32 v{t1}, 1
    s_waitcnt vmcnt(0)
    s_mov_b64 exec, 1
    ds_add_rtn_u32 v{t1}, v{t0}, v{t1}
    s_waitcnt lgkmcnt(0)
    v_readfirstlane_b32 s64, v{t1}
    v_mov_b32 v{t0}, 0
    v_mov_b32 v{t1}, s{sNON}
    s_cmp_lg_u32 s64, {n - 1}
    s_cbranch_scc1 {l}
    buffer_store_dword v{t1}, v{t0}, {WS_}, s{soff} offen sc1
{l}:
    s_mov_b64 exec, -1''')


def relay_wait(a, leader, ok, polls, t0, t1):
    l0, l1 = a.lab('RL'), a.lab('RLD')
    a(f'''v_mov_b32 v{t0}, {L_SY + ok}
    s_cmp_lg_u32 s{sWV}, {leader}
    s_cbranch_scc1 {l0}''')
    polls()
    a(f'''v_mov_b32 v{t1}, 1
    ds_write_b32 v{t0}, v{t1}
    s_branch {l1}
{l0}:''')
    lds_wait(a, t0, 1, t1, sleep=RSLEEP)
    a(f'{l1}:')


class VM:
    def __init__(self, a):
        self.a, self.q = a, []

    def issue(self, tag, text):
        self.a(text)
        self.q.append(tag)

    def wait(self, *tags):
        last = max(i for i, t in enumerate(self.q) if t in tags)
        self.a(f's_waitcnt vmcnt({len(self.q) - 1 - last})')


def pointers_ready(a):
    a('s_waitcnt lgkmcnt(0)')
    srd(a, sX, 4, 0x200000)
    srd(a, sWS, 26, WS_BYTES)


def prologue(a):
    a('''s_cmp_ge_u32 s2, 256
    s_cbranch_scc1 L_END''')
    stamp(a, 0)
    diag(a, 0)
    a(f'''s_load_dwordx4 s[4:7], s[0:1], 0
    s_load_dwordx2 s[8:9], s[0:1], 16
    s_load_dwordx8 s[12:19], s[0:1], 32
    s_load_dwordx4 s[20:23], s[0:1], 64
    s_load_dwordx2 s[24:25], s[0:1], 80
    s_load_dwordx4 s[28:31], s[0:1], 88
    s_load_dwordx2 s[26:27], s[0:1], 104
    v_lshrrev_b32 v1, 6, v0
    v_and_b32 v0, 63, v0
    v_readfirstlane_b32 s{sWV}, v1
    v_lshlrev_b32 v1, 4, v0
    v_mov_b32 v8, 0
    v_mov_b32 v9, 0
    v_mov_b32 v10, 0
    v_mov_b32 v11, 0
    v_add_u32 v5, {L_SY}, v1
    s_mov_b64 exec, 0xff
    ds_write_b128 v5, v[8:11]
    s_mov_b64 exec, -1
    s_and_b32 s51, s2, 7
    s_lshr_b32 s52, s2, 3
    s_lshr_b32 s{sRB}, s51, 1
    s_lshl_b32 s{sRB}, s{sRB}, 2
    s_and_b32 s53, s52, 3
    s_add_u32 s{sRB}, s{sRB}, s53
    s_and_b32 s{sCB}, s51, 1
    s_lshl_b32 s{sCB}, s{sCB}, 3
    s_lshr_b32 s53, s52, 2
    s_add_u32 s{sCB}, s{sCB}, s53
    ''')
    if ROT == 2:
        a(f'''s_lshl_b32 s{sR}, s{sRB}, 1
        s_add_u32 s{sR}, s{sR}, s{sCB}
        s_and_b32 s{sR}, s{sR}, 7
        s_lshr_b32 s{sP4}, s{sCB}, 3''')
    elif ROT == 4:
        a(f'''s_add_u32 s{sR}, s{sRB}, s{sCB}
        s_and_b32 s{sR}, s{sR}, 3
        s_lshl_b32 s{sR}, s{sR}, 1
        s_lshr_b32 s{sP4}, s{sCB}, 2''')
    else:
        a(f'''s_add_u32 s{sR}, s{sRB}, s{sCB}
        s_and_b32 s{sR}, s{sR}, 1
        s_lshl_b32 s{sR}, s{sR}, 1
        s_lshr_b32 s53, s{sCB}, 3
        s_add_u32 s{sR}, s{sR}, s53
        s_lshl_b32 s{sR}, s{sR}, 1
        s_bfe_u32 s53, s{sRB}, 0x10002
        s_add_u32 s{sR}, s{sR}, s53
        s_bfe_u32 s{sP4}, s{sCB}, 0x20001''')
    a(f'''v_and_b32 v2, 31, v0
    v_lshrrev_b32 v3, 5, v0''')
    swap23(a, 4, 2, 5)
    pointers_ready(a)
    a(f'''s_barrier
    s_cmp_ge_u32 s{sWV}, 8
    s_cbranch_scc1 L_AUX
    s_cmp_ge_u32 s{sWV}, 4
    s_cbranch_scc1 L_KGEN''')


def min4_wait(a, addr, f, target, fresh=True, sleep=1):
    l0, l1, l2 = a.lab('MW'), a.lab('MWD'), a.lab('MWC')
    a(f's_mov_b32 s65, {SPIN}')
    if not fresh:
        a(f's_branch {l2}')
    a(f"""{l0}:
    ds_read_b128 {vr(f, 4)}, v{addr}
    s_waitcnt lgkmcnt(0)
{l2}:
    v_min3_u32 v{f}, v{f}, v{f + 1}, v{f + 2}
    v_min_u32 v{f}, v{f}, v{f + 3}
    s_sub_u32 s65, s65, 1
    s_cbranch_scc1 {l1}
    v_readfirstlane_b32 s64, v{f}
    s_cmp_ge_u32 s64, {target}
    s_cbranch_scc1 {l1}
    s_sleep {sleep}
    s_branch {l0}
{l1}:""")


def gemm(a):
    vXR, vWQ, vWV = (8, 14), (12, 18), (13, 19)
    vLD, vPR, vF, vID, vIT, vXS = 20, 21, 24, 160, 28, 29
    accQ, accK, accV, accT = 32, 48, 64, 144
    FR = (80, 96, 112, 128)
    sTT = 51
    if KDRY:
        a("""v_mov_b32 v20, 0
        v_mov_b32 v21, 0
        v_mov_b32 v23, 0
        v_mov_b32 v162, 0
        v_mov_b32 v163, 0
        s_mov_b32 s62, 1
        s_mov_b64 exec, 0
        s_branch L_KP
L_KDRY_BACK:
        s_mov_b64 exec, -1""")
    if TOUCH:
        a(f"""s_cmp_lg_u32 s{sWV}, 1
        s_cbranch_scc1 L_TOUCH_DONE
        s_mov_b32 s52, {RSTRIDE}
        v_mul_lo_u32 v6, s52, v0
        v_mov_b32 v7, 0
        s_mov_b64 exec, 0x7f
        buffer_load_dword v8, v6, {WS_}, 0 offen
        s_mov_b64 exec, 1
        global_load_dword v9, v7, s[8:9]
        global_load_dword v10, v7, s[24:25]
        global_load_dword v11, v7, s[28:29]
        s_mov_b64 exec, -1
        s_waitcnt vmcnt(0)
L_TOUCH_DONE:""")
    a(f"""
    s_lshl_b32 s{sTT}, s{sRB}, 2
    s_add_u32 s{sTT}, s{sTT}, s{sWV}
    s_lshl_b32 s52, s{sWV}, 12
    s_add_u32 s52, s52, {L_K + 12288}
    v_bfe_u32 v6, v4, 1, 3
    v_xor_b32 v6, v6, v3
    v_lshlrev_b32 v6, 4, v6
    v_lshl_add_u32 v6, v4, 7, v6
    v_add_u32 v{vXR[0]}, s52, v6
    v_xor_b32 v7, 32, v6
    v_add_u32 v{vXR[0] + 1}, s52, v7
    v_xor_b32 v7, 64, v6
    v_add_u32 v{vXR[0] + 2}, s52, v7
    v_xor_b32 v7, 96, v6
    v_add_u32 v{vXR[0] + 3}, s52, v7
    v_bfe_u32 v6, v0, 2, 2
    v_lshl_add_u32 v6, v3, 3, v6
    v_lshlrev_b32 v6, 6, v6
    v_bfe_u32 v7, v0, 4, 1
    v_lshl_add_u32 v6, v7, 5, v6
    v_add_u32 v6, {L_K}, v6
    v_and_b32 v7, 3, v0
    v_lshl_add_u32 v{vWV[0]}, v7, 3, v6
    v_bfrev_b32 v7, v7
    v_lshrrev_b32 v7, 30, v7
    v_lshl_add_u32 v{vWQ[0]}, v7, 3, v6
    v_mov_b32 v{vLD}, {L_SY + SY_LD}
    s_lshl_b32 s52, s{sWV}, 2
    s_add_u32 s52, s52, {L_SY + SY_PR}
    v_mov_b32 v{vPR}, s52""")
    for i in range(6):
        a(f'v_add_u32 v{vXR[1] + i}, {2 * SLOT}, v{vXR[0] + i}')
    identity_frags(a, vID, 2, 3, 6, 7)
    a(f"""s_lshl_b32 s56, s{sRB}, {FSH}
    s_mul_i32 s57, s{sCB}, {FS}
    s_add_u32 s56, s56, s57
    s_add_u32 s56, s56, {FQ}
    s_lshl_b32 s57, s{sWV}, 11
    s_add_u32 s57, s57, {L_XS}
    v_add_u32 v{vXS}, s57, v1""")

    sIT, sTG, sXP = 57, 58, 59
    slow, xts = [], []

    def rd(st, k, part):
        f = FR[k]
        hi, o = (st & 3) >> 1, (st & 1) * SLOT
        L = []
        if part == 0:
            L.append(f'ds_read_b128 {vr(f, 4)}, v{vXR[hi] + k} offset:{o}')
        seg = (1, 2, 0)[part]
        base = vWV[hi] if seg == 2 else vWQ[hi]
        off = o + k * 3072 + seg * 1024
        L.append(f'ds_read_b64_tr_b16 {vr(f + 4 + 4 * seg, 2)}, v{base} offset:{off}')
        L.append(f'ds_read_b64_tr_b16 {vr(f + 6 + 4 * seg, 2)}, v{base} offset:{off + 256}')
        return '\n'.join(L)

    def stage(st):
        for k in range(4):
            f = FR[k]
            fill = ['', '', '']
            a(f's_waitcnt lgkmcnt({8 if k == 0 else 7})')
            if k == 0:
                fill[0] = f'ds_read_b128 {vr(vF, 4)}, v{vLD}'
                fill[2] = f's_add_u32 s{sTG}, s{sIT}, {st + 2}\ns_min_u32 s{sTG}, s{sTG}, s63'
            if k == 1:
                lb, ls = a.lab('GB'), a.lab('GSL')
                fill[0] = f'v_min3_u32 v{vF}, v{vF}, v{vF + 1}, v{vF + 2}\nv_min_u32 v{vF}, v{vF}, v{vF + 3}'
                fill[1] = f'v_readfirstlane_b32 s64, v{vF}\nv_add_u32 v6, {st + 1}, v{vIT}'
                fill[2] = f's_cmp_lt_u32 s64, s{sTG}\ns_cbranch_scc1 {ls}\n{lb}:'
                slow.append((ls, lb))
                if 'gb' in DBG:
                    lq = a.lab('GBQ')
                    fill[2] += f'\ns_cmp_lg_u32 s{sIT}, 0\ns_cbranch_scc1 {lq}\ns_memtime s[{76 + 2 * st}:{77 + 2 * st}]\n{lq}:'
            if k == 3:
                fill[0] = f'ds_write_b32 v{vPR}, v6'
            if NSLOT == 5 and st == 2 and k < 3:
                for p in (1, 2):
                    fill[p] += f'\nv_subrev_u32 v{vXR[0] + 2 * k + p - 1}, s61, v{vXR[0] + 2 * k + p - 1}'
            if NSLOT == 5 and st == 0 and k < 3:
                for p in (1, 2):
                    fill[p] += f'\nv_subrev_u32 v{vXR[1] + 2 * k + p - 1}, s62, v{vXR[1] + 2 * k + p - 1}'
            if st < XST:
                l, lb2 = a.lab('XT'), a.lab('XTB')
                cin = '0' if (k & 1) == 0 else vr(accT, 16)
                a(f"""s_cmp_eq_u32 s{sXP}, {2 * st + (k >> 1)}
                s_cbranch_scc1 {l}
{lb2}:""")
                xts.append(f"""{l}:
                {MFMA} {vr(accT, 16)}, {vr(f, 4)}, {vr(vID + 4 * (k & 1), 4)}, {cin}
                s_branch {lb2}""")
            n, ns = (k + 2) & 3, st + (k >> 1)
            mf = [f'{MFMA} {vr(accK, 16)}, {vr(f + 8, 4)}, {vr(f, 4)}, {vr(accK, 16)}',
                  f'{MFMA} {vr(accV, 16)}, {vr(f, 4)}, {vr(f + 12, 4)}, {vr(accV, 16)}',
                  f'{MFMA} {vr(accQ, 16)}, {vr(f + 4, 4)}, {vr(f, 4)}, {vr(accQ, 16)}']
            for p in range(3):
                a(mf[p])
                if k in (0, 3) and p == 0:
                    a(fill[p])
                    a(rd(ns, n, p))
                else:
                    a(rd(ns, n, p))
                    a(fill[p])

    if DRY:
        a(f"""s_mov_b32 s{sIT}, 8
        s_mov_b32 s63, 0
        s_mov_b32 s{sXP}, 4
        s_mov_b64 exec, 0
        s_branch L_GS
L_GS_GO:
        s_mov_b64 exec, -1
        s_waitcnt lgkmcnt(0)
        s_nop 7""")
    for i in range(48):
        a(f'v_mov_b32 v{accQ + i}, 0')
    stamp(a, 1)
    a(f's_setprio {GEMM_PRIO}')
    min4_wait(a, vLD, vF, 1, sleep=GSLEEP)
    stamp(a, 2)
    a(f"""s_mov_b32 s{sIT}, 0
    s_mov_b32 s63, 8
    s_mov_b32 s62, 0
    s_mov_b32 s61, {SLOT}
    v_mov_b32 v{vIT}, 0
    s_mov_b32 s{sXP}, s{sP4}""")
    for k in range(2):
        for p in range(3):
            a(rd(0, k, p))
    if 'g0' in DBG or 'g4' in DBG:
        a('s_mov_b32 s86, s66')
    a(f"""ds_write_b32 v{vPR}, v{vIT}
L_GS:""")
    for st in range(4):
        stage(st)
        if 'g0' in DBG or 'g4' in DBG:
            l = a.lab('GST')
            a(f"""s_cmp_lg_u32 s{sIT}, {0 if 'g0' in DBG else 4}
            s_cbranch_scc1 {l}""")
            stamp(a, 5 + st, True)
            a(f'{l}:')
        if st == XST - 1:
            a(f"""s_cmp_lg_u32 s{sIT}, 0
            s_cbranch_scc0 L_GS_XT
L_GS_XTB:""")
    a(f"""s_add_u32 s{sIT}, s{sIT}, 4
    v_mov_b32 v{vIT}, 4
    s_mov_b32 s62, {SLOT}
    s_mov_b32 s61, 0
    s_mov_b32 s{sXP}, 4
    s_cmp_lt_u32 s{sIT}, 8
    s_cbranch_scc1 L_GS""")
    if DRY:
        a(f"""s_cmp_eq_u32 s{sIT}, 12
        s_cbranch_scc1 L_GS_GO""")

    def out_of_line():
        for ls, lb in slow:
            a(f'{ls}:')
            if 'g0' in DBG or 'g4' in DBG:
                a('s_add_u32 s86, s86, 1')
            min4_wait(a, vLD, vF, f's{sTG}', sleep=GSLEEP)
            a(f's_branch {lb}')
        for x in xts:
            a(x)
        a('L_GS_XT:')
        cvt8(a, vID, accT)
        a(f"""ds_write_b128 v{vXS}, {vr(vID, 4)}
        ds_write_b128 v{vXS}, {vr(vID + 4, 4)} offset:1024
        ds_write_b32 v{vPR}, v{vPR} offset:{SY_XS - SY_PR}""")
        stamp(a, 5)
        a('s_branch L_GS_XTB')

    a.deferred.append(out_of_line)
    lds_add(a, SY_FREE, 6, 7)
    a('s_waitcnt lgkmcnt(0)')
    stamp(a, 3)
    a(f"""v_lshl_add_u32 v6, v3, 5, v4
    v_lshlrev_b32 v6, 4, v6
    v_lshrrev_b32 v7, 4, v2
    v_lshlrev_b32 v7, 16, v7
    v_lshl_add_u32 v7, v3, 8, v7
    v_and_b32 v8, 15, v2
    v_lshl_add_u32 v7, v8, 4, v7
    s_lshl_b32 s57, s{sCB}, 17
    s_lshl_b32 s58, s{sTT}, 10
    s_add_u32 s57, s57, s58
    s_add_u32 s59, s57, {KF}
    s_add_u32 s60, s59, 0x10000
    s_add_u32 s61, s57, {VF}
    s_add_u32 s57, s57, {QF}
    s_add_u32 s58, s57, 0x10000
    s_mov_b32 s62, {f32(0.25 * LOG2E)}""")
    cvt8(a, 88, accK)
    a(f"""buffer_store_dwordx4 v[88:91], v6, {WS_}, s59 offen sc1
    buffer_store_dwordx4 v[92:95], v6, {WS_}, s60 offen sc1""")
    cvt8(a, 96, accV)
    a(f"""buffer_store_dwordx4 v[96:99], v7, {WS_}, s61 offen sc1
    buffer_store_dwordx4 v[100:103], v7, {WS_}, s61 offen offset:512 sc1""")
    a('v_mov_b32 v8, s62')
    for i in range(0, 16, 2):
        a(f'v_pk_mul_f32 {vr(accQ + i, 2)}, {vr(accQ + i, 2)}, v[8:9] op_sel:[0,0] op_sel_hi:[1,0]')
    cvt8(a, 80, accQ)
    a(f"""buffer_store_dwordx4 v[80:83], v6, {WS_}, s57 offen sc1
    buffer_store_dwordx4 v[84:87], v6, {WS_}, s58 offen sc1""")
    get_nonce(a, 8, 9)
    group_flag_set(a, SY_Q, 56, 8, 9)
    stamp(a, 4)
    a('s_setprio 0')
    if LATE_W == 2:
        side_loads(a, 3)
        side_work(a, 3, 0, 96, True)


vGX, vGW, vWO, D2 = 146, 154, 158, 112


def side_loads(a, last):
    if 'ws' in DBG:
        stamp(a, 5, True)
    a(f"""s_cmp_lg_u32 s{sWV}, {last}
    s_cbranch_scc1 L_NOWO1
    s_lshr_b32 s60, s2, 4
    s_lshl_b32 s60, s60, 15
    s_and_b32 s61, s2, 15
    s_lshl_b32 s61, s61, 6
    s_add_u32 s60, s60, s61
    v_lshlrev_b32 v6, 10, v2
    v_lshl_add_u32 v6, v3, 4, v6
    v_add_u32 v6, s60, v6
    global_load_dwordx4 {vr(vWO, 4)}, v6, s[8:9]
    global_load_dwordx4 {vr(vWO + 4, 4)}, v6, s[8:9] offset:32
L_NOWO1:
    s_lshl_b32 s4, s{sRB}, 7
    s_lshl_b32 s60, s{sCB}, 3
    s_add_u32 s4, s4, s60
    s_and_b32 s60, s{sWV}, 3
    s_lshl_b32 s60, s60, 1
    s_add_u32 s4, s4, s60
    s_lshl_b32 s60, s4, 10
    buffer_load_dwordx4 {vr(vGX, 4)}, v1, {X_}, s60 offen
    buffer_load_dwordx4 {vr(vGX + 4, 4)}, v1, {X_}, s60 offen offset:1024
    global_load_dwordx4 {vr(vGW, 4)}, v1, s[24:25]""")

def side_work(a, last, n, vID, make_id=False):
    if 'ws' in DBG:
        stamp(a, 6, True)
    a(f"""v_mov_b32 v144, 0
    v_mov_b32 v145, 0
    s_waitcnt vmcnt({n})""")
    if 'ws' in DBG:
        stamp(a, 7, True)
    for i in range(4):
        a(f"""v_dot2_f32_bf16 v144, v{vGX + i}, v{vGW + i}, v144
        v_dot2_f32_bf16 v145, v{vGX + 4 + i}, v{vGW + i}, v145""")
    a('s_nop 2')
    for d in ('row_shr:1', 'row_shr:2', 'row_shr:4', 'row_shr:8', 'row_bcast:15 row_mask:0xa', 'row_bcast:31 row_mask:0xc'):
        a(f"""v_add_f32_dpp v144, v144, v144 {d}
        v_add_f32_dpp v145, v145, v145 {d}""")
    a(f"""v_mul_f32 v144, {f32(-LOG2E)}, v144
    v_mul_f32 v145, {f32(-LOG2E)}, v145
    v_exp_f32 v144, v144
    v_exp_f32 v145, v145
    v_add_f32 v144, 1.0, v144
    v_add_f32 v145, 1.0, v145
    v_rcp_f32 v144, v144
    v_rcp_f32 v145, v145
    s_lshl_b32 s4, s4, 2
    s_add_u32 s4, s4, {GG}
    v_mov_b32 v{vGX}, 0
    s_mov_b32 exec_lo, 0
    s_brev_b32 exec_hi, 1
    buffer_store_dwordx2 v[144:145], v{vGX}, {WS_}, s4 offen sc1
    s_mov_b64 exec, -1
    s_cmp_lg_u32 s{sWV}, {last}
    s_cbranch_scc1 L_NOWO2""")
    if make_id:
        identity_frags(a, vID, 2, 3, 6, 7, 12)
    if 'ws' in DBG:
        stamp(a, 8, True)
    if 'ws' in DBG:
        stamp(a, 9, True)

    a(f"""{MFMA} {vr(D2, 16)}, {vr(vWO, 4)}, {vr(vID, 4)}, 0
    {MFMA} {vr(D2, 16)}, {vr(vWO + 4, 4)}, {vr(vID + 4, 4)}, {vr(D2, 16)}
    v_lshl_add_u32 v6, v3, 5, v4
    v_lshlrev_b32 v6, 4, v6
    s_and_b32 s60, s2, 15
    s_lshl_b32 s60, s60, 15
    s_lshr_b32 s61, s2, 4
    s_lshl_b32 s61, s61, 11
    s_add_u32 s60, s60, s61
    s_add_u32 s60, s60, {WOF}""")
    cvt8(a, vWO, D2)
    if 'ws' in DBG:
        stamp(a, 10, True)
    a(f"""buffer_store_dwordx4 {vr(vWO, 4)}, v6, {WS_}, s60 offen sc1
    buffer_store_dwordx4 {vr(vWO + 4, 4)}, v6, {WS_}, s60 offen offset:1024 sc1
L_NOWO2:""")


CK, CG, CXW, CXR = 136, 152, 132, 133


def cexp(a, dst, lr, li, tau, t, conj=False):
    return [
        [f'v_mul_f32 v{t}, v{lr}, {tau}', f'v_mul_f32 v{t + 1}, v{li}, {tau}'],
        [f'v_exp_f32 v{t}, v{t}', f'v_fract_f32 v{t + 1}, v{t + 1}'],
        [f'v_cos_f32 v{dst}, v{t + 1}', f'v_sin_f32 v{dst + 1}, v{t + 1}'],
        [f'v_mul_f32 v{dst}, v{t}, v{dst}', f'v_mul_f32 v{dst + 1}, {"-" if conj else ""}v{t}, v{dst + 1}'],
    ]


def cmul(dst, x, s, t):
    return [f'v_pk_mul_f32 {vr(t, 2)}, {vr(x, 2)}, {vr(s, 2)} op_sel:[0,0] op_sel_hi:[0,1]',
            f'v_pk_fma_f32 {vr(dst, 2)}, {vr(x, 2)}, {vr(s, 2)}, {vr(t, 2)} op_sel:[1,1,0] op_sel_hi:[1,0,1] neg_lo:[1,0,0]']


def kgen_conv(a):
    sCI, sMH, sCH, sRG, sE, sT = 51, 52, 53, 54, 55, 56
    P = (8, 12)
    vTS, vTX, vTY, vTB = 16, 17, 18, 19
    vEX, vEY, vEB, vRA = 20, 21, 162, 23
    vSC = 24
    vGA = 144
    acc = 48
    SG, SY2, XV, YV, BV, BS = 64, 66, 68, 70, 72, 74
    t0 = 76
    a(f'''L_KGEN:
    s_setprio 2
    s_bfe_u32 s{sCI}, s{sWV}, 0x10001
    s_and_b32 s{sMH}, s{sWV}, 1
    s_and_b32 s{sCH}, s2, 7
    s_lshl_b32 s{sCH}, s{sCH}, 5
    s_lshr_b32 s57, s2, 3
    s_add_u32 s{sCH}, s{sCH}, s57
    s_lshl_b32 s59, s{sCH}, 2
    s_lshl_b32 s{sCH}, s{sCH}, 1
    s_add_u32 s{sCH}, s{sCH}, s{sCI}
    s_lshl_b32 s57, s{sCH}, 8
    s_lshl_b32 s58, s{sMH}, 7
    s_add_u32 s57, s57, s58
    v_lshl_add_u32 v6, v0, 1, s57
    global_load_ushort v8, v6, s[12:13]
    global_load_ushort v9, v6, s[14:15]
    global_load_ushort v10, v6, s[16:17]
    global_load_ushort v11, v6, s[18:19]
    s_load_dword s62, s[20:21], s59
    s_load_dword s63, s[22:23], s59''')
    a(f'''s_setprio {KGEN_PRIO}
    s_mul_i32 s{sRG}, s{sCI}, {CVS}
    s_add_u32 s{sRG}, s{sRG}, {L_CV}
    s_mul_i32 s{sE}, s{sMH}, {CVS // 2}
    s_add_u32 s{sE}, s{sE}, s{sRG}
    s_mul_i32 s{sT}, s{sCI}, 2688
    s_add_u32 s{sT}, s{sT}, {L_T}
    s_mov_b32 s60, 0
    s_mov_b32 s61, -1
    v_mov_b32 v6, {f32(256.0)}
    v_cndmask_b32 v{vTS}, 1.0, v6, s[60:61]
    v_mov_b32 v7, {f32(516.0)}
    v_cndmask_b32 v{vTY}, v6, v7, s[60:61]
    v_cvt_f32_u32 v6, v3
    v_mul_f32 v{vTX}, {f32(512.0)}, v6
    v_mul_f32 v{vTB}, {f32(128.0)}, v6
    v_lshl_add_u32 v6, v2, 2, s{sE}
    v_mul_u32_u24 v7, {4 * EROW}, v3
    v_lshl_add_u32 v{vEX}, v7, 1, v6
    v_add_u32 v{vEY}, v7, v6
    v_add_u32 v{vEY}, {16 * EROW}, v{vEY}
    v_lshl_add_u32 v{vEB}, v7, 2, v6
    v_add_u32 v{vEB + 1}, {32 * EROW}, v{vEB}
    v_add_u32 v{vEB}, {24 * EROW}, v{vEB}
    v_mul_u32_u24 v6, {EROW}, v2
    v_lshl_add_u32 v6, v3, 4, v6
    v_add_u32 v{vRA}, s{sE}, v6''')
    a(f'''v_lshlrev_b32 v6, 3, v2
    v_lshl_add_u32 v6, v3, 2, v6
    v_lshl_add_u32 v{vSC}, v6, 2, s{sT}
    v_lshlrev_b32 v6, 1, v2
    v_add_u32 v7, 384, v6
    v_add_u32 v{t0}, 576, v2
    v_cndmask_b32 v7, v7, v{t0}, s[60:61]
    v_lshl_add_u32 v{vSC + 1}, v7, 2, s{sT}
    v_cndmask_b32 v7, 64, 32, s[60:61]
    v_lshl_add_u32 v{vSC + 2}, v7, 2, v{vSC + 1}
    v_lshl_add_u32 v7, v3, 7, v2
    v_add_u32 v7, 512, v7
    v_lshl_add_u32 v{vSC + 3}, v7, 2, s{sT}
    v_add_u32 v6, 385, v6
    v_lshlrev_b32 v7, 2, v2
    v_add_u32 v7, 256, v7
    v_cndmask_b32 v7, v7, v6, s[60:61]
    v_lshl_add_u32 v{vSC + 4}, v7, 2, s{sT}''')
    a(f's_sub_u32 s57, s{sT}, {0x4280 * 4}')
    for r in range(2):
        a(f'''s_lshl_b32 s58, s{sMH}, 10
        s_sub_u32 s58, {2047 - 512 * r}, s58
        v_lshlrev_b32 v6, 3, v0
        v_sub_u32 v{t0}, s58, v6
        v_cvt_f32_u32 v{t0 + 1}, v{t0}''')
        for e in range(1, 9):
            a(f'v_add_f32 v{t0 + 1 + e}, {f32(-float(e))}, v{t0 + 1}')
        a(f'v_max_f32 v{t0 + 9}, 0, v{t0 + 9}')
        for e in range(0, 9, 2):
            g = vGA + 9 * r + e
            a(f'''v_cvt_pk_bf16_f32 v6, v{t0 + 1 + e}, v{t0 + 2 + e}
            v_and_b32 v7, 0xffff, v6
            v_lshl_add_u32 v{g}, v7, 2, s57''')
            if e < 8:
                a(f'''v_lshrrev_b32 v6, 16, v6
                v_lshl_add_u32 v{g + 1}, v6, 2, s57''')
        if r == 1:
            for e in range(9):
                a(f'v_subrev_u32 v6, {e}, v{t0}')
                if e == 8:
                    a('v_max_i32 v6, 0, v6')
                a(f'''v_min_u32 v6, 0x80, v6
                v_lshl_add_u32 v6, v6, 2, s{sT}
                v_max_i32 v{vGA + 9 + e}, v{vGA + 9 + e}, v6''')
    vA, vB, vA2 = 129, 130, 131
    a(f'''v_and_b32 v7, 1, v4
    v_cmp_eq_u32 vcc, 0, v7
    v_mov_b32 v7, 4158
    v_lshlrev_b32 v6, 1, v4
    v_cndmask_b32 v7, 0, v7, vcc
    v_sub_u32 v7, v7, v6
    v_lshl_add_u32 v7, v3, 4, v7
    v_add_u32 v7, {4094 - 32 * 6}, v7
    s_lshl_b32 s57, s{sMH}, 10
    s_sub_u32 s57, s{sRG}, s57
    v_add_u32 v{vA}, s57, v7
    v_subrev_u32 v{vA2}, 2048, v{vA}
    v_mul_u32_u24 v7, 96, v3
    v_add_u32 v7, v7, v2
    s_lshl_b32 s57, s{sMH}, 8
    s_sub_u32 s57, s{sRG}, s57
    s_add_u32 s57, s57, {L_U + (32 - 3) * 16}
    v_lshl_add_u32 v{vB}, v7, 4, s57''')
    for i in range(16):
        a(f'v_mov_b32 v{acc + i}, 0')
    stamp(a, 1)
    a(f'''s_waitcnt vmcnt(0) lgkmcnt(0)
    s_lshl_b32 s58, s{sCI}, 4
    s_lshr_b32 s62, s62, s58
    s_lshl_b32 s62, s62, 16
    s_lshr_b32 s63, s63, s58
    s_lshl_b32 s63, s63, 16
    s_mov_b32 s59, {f32(LOG2E)}
    v_mov_b32 v6, s62
    v_mul_f32 v6, s59, v6
    v_lshlrev_b32 v8, 16, v8
    v_mul_f32 v8, s59, v8
    v_exp_f32 v6, v6
    v_exp_f32 v8, v8
    v_lshlrev_b32 v9, 16, v9
    v_lshlrev_b32 v10, 16, v10
    v_cvt_pk_bf16_f32 v6, v6, v8
    v_and_b32 v8, 0xffff0000, v6
    v_lshlrev_b32 v6, 16, v6
    v_mul_f32 v8, v8, v6
    v_mul_f32 v8, {f32(-LOG2E)}, v8
    v_mul_f32 v9, v9, v6
    v_mul_f32 v9, 0.15915494, v9
    v_add_f32 v6, v6, v6
    v_lshlrev_b32 v11, 16, v11
    v_mul_f32 v10, v10, v6
    v_mul_f32 v11, -v11, v6
    v_mov_b32 v12, v8
    v_mov_b32 v13, v9
    v_mov_b32 v14, v10
    v_mov_b32 v15, v11
    s_mov_b32 s59, {f32(8.0)}
    v_permlane32_swap_b32 v8, v12
    v_permlane32_swap_b32 v9, v13
    v_permlane32_swap_b32 v10, v14
    v_permlane32_swap_b32 v11, v15''')
    stamp(a, 2)
    if 'park' in DBG:
        a(f'v_mov_b32 v6, {L_SY + SY_FREE}')
        lds_wait(a, 6, 4, 7, sleep=True)
    FA, FBf = 96, 112
    a('''s_mov_b32 s62, 2
L_KP:''')
    if 'kp' in DBG:
        stamp(a, 1)
    for ps in range(1):
        p = P[ps]
        ev = [cexp(a, SG, p, p + 1, f'v{vTS}', t0, True), cexp(a, XV, p, p + 1, f'v{vTX}', t0 + 2, True),
              cexp(a, YV, p, p + 1, f'v{vTY}', t0 + 4, True), cexp(a, BV, p, p + 1, f'v{vTB}', t0 + 6),
              cexp(a, BS, p, p + 1, 's59', t0 + 8)]
        for st in range(4):
            for e in ev:
                for l in e[st]:
                    if ', s59' in l:
                        l = l.replace(f'v{p}, s59', f's59, v{p}').replace(f'v{p + 1}, s59', f's59, v{p + 1}')
                    a(l)
        m = [cmul(XV, XV, p + 2, t0), cmul(YV, YV, p + 2, t0 + 2), cmul(SY2, SG, SG, t0 + 4)]
        for st in range(2):
            for e in m:
                a(e[st])
        a(f'''v_cndmask_b32 v{SY2}, v{SY2}, v{SG}, s[60:61]
        v_cndmask_b32 v{SY2 + 1}, v{SY2 + 1}, v{SG + 1}, s[60:61]''')
        for k in range(16):
            ch = [(BV, BS, vEB + (k >> 3), k & 7, k < 15, 0)]
            if k < 8:
                ch.append((XV, SG, vEX, k, k < 7, 1))
            elif k < 12:
                ch.append((YV, SY2, vEY, k - 8, k < 11, 1))
            for v, s, ad, row, more, j in ch:
                a(f'v_cvt_pk_bf16_f32 v{t0 + 10 + 4 * j + (k & 3)}, v{v}, v{v + 1}')
                if more:
                    a(cmul(v, v, s, t0 + 2 * j)[0])
            for v, s, ad, row, more, j in ch:
                if more:
                    a(cmul(v, v, s, t0 + 2 * j)[1])
                if k & 1:
                    r = t0 + 10 + 4 * j + (k & 3)
                    a(f'ds_write2_b32 v{ad}, v{r - 1}, v{r} offset0:{(row - 1) * EROW // 4} offset1:{row * EROW // 4}')
        a('s_waitcnt lgkmcnt(0)')
        for q in range(4):
            a(f'''ds_read_b128 {vr(FA + 4 * q, 4)}, v{vRA} offset:{q * 32}
            ds_read_b128 {vr(FBf + 4 * q, 4)}, v{vRA} offset:{24 * EROW + q * 32}''')
        for i in range(4):
            a(f'v_mov_b32 v{P[0] + i}, v{P[1] + i}')
        a('''s_sub_u32 s62, s62, 1
        s_cmp_lg_u32 s62, 0''')
        for q in range(4):
            a(f'''s_waitcnt lgkmcnt({6 - 2 * q})
            {MFMA} {vr(acc, 16)}, {vr(FA + 4 * q, 4)}, {vr(FBf + 4 * q, 4)}, {vr(acc, 16)}''')
        a('s_cbranch_scc1 L_KP')
        if KDRY:
            a(f'''s_cmp_lt_u32 s{sWV}, 4
            s_cbranch_scc1 L_KDRY_BACK''')
    stamp(a, 3)
    a(f's_setprio {POST_PRIO}')

    a(f'''s_lshl_b32 s57, s{sCI}, 2
    v_mov_b32 v134, {L_SY + SY_K0}
    v_add_u32 v134, s57, v134
    s_add_u32 s57, s{sRG}, {CVS // 2}
    v_add_u32 v23, s57, v1
    s_cmp_eq_u32 s{sMH}, 0
    s_cbranch_scc1 L_KSUM''')
    for i in range(3):
        a(f'ds_write_b128 v23, {vr(acc + 4 * i, 4)} offset:{i * 1024}')
    a(f"""v_mov_b32 v7, 1
    s_waitcnt lgkmcnt(0)
    s_mov_b64 exec, 1
    ds_add_u32 v134, v7
    s_mov_b64 exec, -1
    v_mov_b32 v25, {L_SY + SY_XS}
    s_lshl_b32 s57, s{sCI}, 4
    v_bfe_u32 v6, v0, 2, 3
    v_add_u32 v6, s57, v6
    v_and_b32 v7, 3, v0
    v_lshl_add_u32 v143, v3, 5, v6
    v_lshlrev_b32 v143, 4, v143
    v_lshl_add_u32 v143, v7, 11, v143
    v_add_u32 v143, {L_XS}, v143
    v_lshlrev_b32 v6, 12, v6
    v_lshl_add_u32 v6, v3, 10, v6
    v_lshl_add_u32 v132, v7, 4, v6
    s_lshl_b32 s62, s{sR}, 1
    s_add_u32 s62, s62, s{sP4}
    s_and_b32 s62, s62, 15
    s_lshl_b32 s58, s62, 17
    s_lshl_b32 s59, s{sRB}, 6
    s_add_u32 s58, s58, s59
    s_add_u32 s58, s58, {XT}
    s_mul_i32 s62, s62, {FS}
    s_lshl_b32 s59, s{sRB}, {FSH}
    s_add_u32 s62, s62, s59
    s_add_u32 s11, s62, {FX}
    s_add_u32 s59, s58, 32768
    s_setprio 0""")
    min4_wait(a, 25, 136, 1)
    if 'ks' in DBG:
        stamp(a, 5, True)
    a(f's_setprio {RELAY_PRIO}')
    for i in range(4):
        a(f'ds_read_b128 {vr(96 + 4 * i, 4)}, v143 offset:{(i & 1) * 1024 + (i >> 1) * 128}')
    for i in range(4):
        a(f"""s_waitcnt lgkmcnt({3 - i})
        buffer_store_dwordx4 {vr(96 + 4 * i, 4)}, v132, {WS_}, s{58 + (i >> 1)} offen offset:{(i & 1) * 2048} sc1""")
    a('s_setprio 0')
    if 'ks' in DBG:
        stamp(a, 6, True)
    get_nonce(a, 6, 7)
    group_flag_set(a, SY_X, 11, 6, 7, 2)
    if 'ks' in DBG:
        stamp(a, 8, True)
    a('''s_branch L_KSIG
L_KSUM:''')
    lds_wait(a, 134, 1, 6, sleep=True)
    for i in range(3):
        a(f'ds_read_b128 {vr(FA + 4 * i, 4)}, v23 offset:{i * 1024}')
    a('s_waitcnt lgkmcnt(0)')
    lds_add(a, SY_TAB, 6, 7)
    for i in range(12):
        a(f'v_add_f32 v{acc + i}, v{acc + i}, v{FA + i}')
    a(f'''ds_write_b128 v{vSC}, {vr(acc, 4)}
    ds_write_b32 v{vSC + 1}, v{acc + 4}
    ds_write_b32 v{vSC + 2}, v{acc + 5}
    ds_write_b32 v{vSC + 3}, v{acc + 6}
    s_mov_b32 exec_hi, 0
    ds_write_b32 v{vSC + 3}, v{acc + 7} offset:128
    ds_write_b128 v{vSC + 4}, {vr(acc + 8, 4)}
    s_not_b64 exec, exec
    ds_write2st64_b32 v{vSC + 4}, v{acc + 8}, v{acc + 9} offset0:0 offset1:1
    s_mov_b64 exec, -1
    v_mov_b32 v7, 1
    s_waitcnt lgkmcnt(0)
    s_mov_b64 exec, 1
    ds_add_u32 v134, v7
    s_mov_b64 exec, -1
L_KSIG:
    ''')
    if 'ks' in DBG:
        stamp(a, 7, True)
    get_nonce(a, 6, 7)
    lds_wait(a, 134, 2, 6, sleep=True)
    if 'ks' in DBG:
        stamp(a, 9, True)
    a('s_setprio 0')

    def gather():
        G0 = 96
        for k in range(18):
            a(f'ds_read_b32 v{G0 + k}, v{vGA + k}')
            if k == 8:
                a('s_waitcnt lgkmcnt(4)')
        a(f'''v_lshl_add_u32 v7, v0, 1, s{sMH}
        v_cmp_eq_u32 vcc, 0x7f, v7
        v_mov_b32 v6, s63
        s_lshl_b32 s57, s{sMH}, 11
        s_add_u32 s57, s57, s{sRG}
        v_cndmask_b32 v6, 0, v6, vcc
        v_add_u32 v135, s57, v1
        s_waitcnt lgkmcnt(0)
        v_add_f32 v{G0 + 16}, v{G0 + 16}, v6
        v_cndmask_b32 v{G0 + 17}, v{G0 + 17}, 0, vcc''')
        lds_add(a, SY_FREE, 6, 7)
        for r in range(2):
            for c in range(2):
                d = 32 + 8 * r + 4 * c
                for i in range(4):
                    a(f'v_cvt_pk_bf16_f32 v{d + i}, v{G0 + 9 * r + c + 2 * i}, v{G0 + 9 * r + c + 2 * i + 1}')
                a(f'ds_write_b128 v135, {vr(d, 4)} offset:{r * 1024 + c * 4160}')
        for i in range(16):
            a(f'v_mov_b32 v{acc + i}, 0')
        a(f'''v_bfe_u32 v6, v0, 2, 1
        v_mul_u32_u24 v6, {4160 - 64}, v6
        v_add_u32 v6, v6, v1
        v_add_u32 v6, s{sRG}, v6
        s_mov_b64 exec, 0xff
        ds_write_b128 v6, {vr(acc, 4)} offset:4096
        s_mov_b64 exec, -1
        v_mul_u32_u24 v6, 96, v3
        v_add_u32 v6, v6, v2
        s_mul_i32 s58, s{sMH}, 3072
        s_add_u32 s58, s58, s{sRG}
        v_lshl_add_u32 v6, v6, 4, s58
        ds_write_b128 v6, {vr(acc, 4)} offset:{L_U}
        ''')
        if 'ks' in DBG:
            stamp(a, 10, True)
    attn_setup(a)

    stamp(a, 4)
    if DEFER:
        a(f'v_mov_b32 v6, {L_SY + SY_FREE}')
        lds_wait(a, 6, 4, 7, sleep=True)
        a(f's_setprio {TAIL_PRIO}')
        if 'cs' in DBG:
            stamp(a, 5, True)
        gather()
        if 'cs' in DBG:
            stamp(a, 6, True)
    for i in range(32):
        a(f'v_mov_b32 v{CK + i}, 0')
    a(f'''v_mov_b32 v134, {L_SY + SY_U}
    v_mov_b32 v7, 1
    s_waitcnt lgkmcnt(0)
    s_mov_b64 exec, 1
    ds_add_u32 v134, v7
    s_mov_b64 exec, -1''')
    if 'cs' in DBG:
        stamp(a, 7, True)
    lds_wait(a, 134, 8, 6, sleep=True)
    stamp(a, 5)
    CF = (32, 48, 96, 112)
    if 'cs' in DBG:
        stamp(a, 9, True)
    a(f"""s_mov_b32 s59, 4
    s_setprio {CONV_PRIO}""")

    def cread(k, part):
        f = CF[k & 3]
        k &= 7
        oa = (7 - k) * 8
        ob = (3 - (k >> 1)) * 16 + (3072 if (k & 1) == 0 else 0)
        if part == 0:
            a(f"""ds_read2_b32 {vr(f, 2)}, v{vA} offset0:{oa} offset1:{oa + 1}
            ds_read2_b32 {vr(f + 2, 2)}, v{vA} offset0:{oa + 2} offset1:{oa + 3}""")
        elif part == 1:
            a(f"""ds_read_b128 {vr(f + 4, 4)}, v{vB} offset:{ob}
            ds_read_b128 {vr(f + 8, 4)}, v{vB} offset:{ob + 512}""")
        else:
            a(f"""ds_read2_b32 {vr(f + 12, 2)}, v{vA2} offset0:{oa} offset1:{oa + 1}
            ds_read2_b32 {vr(f + 14, 2)}, v{vA2} offset0:{oa + 2} offset1:{oa + 3}""")

    a(f"""s_cmp_eq_u32 s{sMH}, 0
    s_cbranch_scc1 L_CV0""")
    for mh in (1, 0):
        acc, ac1 = (CK, CG) if mh == 0 else (CG, CK)
        if mh == 0:
            a('L_CV0:')
        for k in range(2):
            for p in range(3):
                cread(k, p)
        a(f'L_CL{mh}:')
        if 'kp' in DBG:
            stamp(a, 4)
        for k in range(8):
            f = CF[k & 3]
            a(f"""s_waitcnt lgkmcnt(6)
            {MFMA} {vr(acc, 16)}, {vr(f, 4)}, {vr(f + 4, 4)}, {vr(acc, 16)}""")
            cread(k + 2, 0)
            if k == 5:
                a(f'v_subrev_u32 v{vA}, 256, v{vA}')
            a(f'{MFMA} {vr(ac1, 16)}, {vr(f, 4)}, {vr(f + 8, 4)}, {vr(ac1, 16)}')
            cread(k + 2, 1)
            if k == 5:
                a(f'v_subrev_u32 v{vB}, 64, v{vB}')
            a(f'{MFMA} {vr(ac1, 16)}, {vr(f + 12, 4)}, {vr(f + 4, 4)}, {vr(ac1, 16)}')
            cread(k + 2, 2)
            if k == 5:
                a(f"""v_subrev_u32 v{vA2}, 256, v{vA2}
                s_sub_u32 s59, s59, 1
                s_cmp_lg_u32 s59, 0""")
        a(f's_cbranch_scc1 L_CL{mh}')
        if mh == 1:
            a('s_branch L_CV1')
    a('L_CV1:')
    if 'cs' in DBG:
        stamp(a, 10, True)
    a(f"""s_setprio 0
    s_and_b32 s57, s{sWV}, 3
    s_lshl_b32 s57, s57, 12
    s_add_u32 s58, s57, {L_CV}
    v_add_u32 v{CXW}, s58, v1
    s_xor_b32 s57, s57, 4096
    s_add_u32 s58, s57, {L_CV}
    v_add_u32 v{CXR}, s58, v1
    s_lshl_b32 s62, s{sCH}, 12
    s_lshl_b32 s58, s{sMH}, 11
    s_add_u32 s62, s62, s58
    s_add_u32 s62, s62, {BT}
    s_waitcnt lgkmcnt(0)""")
    stamp(a, 6)


Q, Kf, V1 = (4, 8), 12, 16
V0 = (20, 24)
vIX, vK, vV = 28, 29, 30
S = (32, 48)
O, M = (64, 80), (96, 112)
T0 = 128
sQT, sKH, sH = 20, 21, 22


def rowmax(a, src, dst):
    a(f'v_max3_f32 v{dst}, v{src}, v{src + 1}, v{src + 2}')
    for i in range(3, 15, 2):
        a(f'v_max3_f32 v{dst}, v{dst}, v{src + i}, v{src + i + 1}')
    a(f'v_max_f32 v{dst}, v{dst}, v{src + 15}')


def set_m(a, mx, t, m):
    a(f'''v_mov_b32 v{t}, v{mx}
    v_permlane32_swap_b32 v{mx}, v{t}
    v_max_f32 v{mx}, v{mx}, v{t}
    v_sub_f32 v{m}, 0, v{mx}
    v_sub_f32 v{m + 1}, 0, v{mx}''')
    for i in range(2, 16, 2):
        a(f'v_pk_mov_b32 {vr(m + i, 2)}, {vr(m, 2)}, {vr(m, 2)} op_sel:[0,1]')


def attn_setup(a):
    a(f'''s_and_b32 s{sH}, s2, 31
    s_lshr_b32 s{sQT}, s2, 5
    s_lshl_b32 s{sQT}, s{sQT}, 2
    s_and_b32 s23, s{sWV}, 3
    s_add_u32 s{sQT}, s{sQT}, s23
    s_lshl_b32 s{sQT}, s{sQT}, 1
    s_lshr_b32 s{sKH}, s{sWV}, 2
    s_lshl_b32 s24, s{sKH}, 15
    s_lshl_b32 s23, s23, 11
    s_add_u32 s23, s23, {L_T}
    v_mov_b32 v{vIX}, 0xdddd
    v_add_u32 v{vK}, s24, v1
    v_add_u32 v{vK}, {L_K}, v{vK}
    v_and_b32 v{T0}, 15, v2
    v_lshlrev_b32 v{T0}, 4, v{T0}
    v_lshl_add_u32 v{T0}, v3, 8, v{T0}
    s_add_u32 s24, s24, {L_V}
    v_add_u32 v{vV}, s24, v{T0}
    v_cmp_eq_u32 vcc, 16, v2
    v_mov_b32 v{T0}, 0x3f803f80
    s_mov_b32 s12, 0xffff
    s_mov_b32 s13, 0xffff
    v_cndmask_b32 v{V1}, 0, v{T0}, vcc
    v_add_u32 v{T0}, s23, v1''')
    for i in range(1, 12):
        a(f'v_mov_b32 v{V1 + i}, v{V1}')
    for i in range(32):
        a(f'v_mov_b32 v{O[0] + i}, 0')


def attn_loop(a, young):
    if not young:
        attn_setup(a)
    y = int(young)
    if PDRY and not young:
        a(f'''v_mov_b32 v{CXW}, 0
        s_mov_b64 s[14:15], 0
        s_mov_b64 s[16:17], 0
        s_mov_b64 exec, 0
        s_branch L_PRO1
L_DRY1:
        s_branch L_PRO0
L_DRY0:
        s_mov_b64 exec, -1''')
    a('''s_mov_b64 s[14:15], -1
    s_mov_b64 s[16:17], s[12:13]''')
    if young and YPRE:
        a('s_setprio 1')
    stamp(a, 7)
    a(f'''s_barrier
L_PRO{y}:
    ds_read_b128 {vr(Kf, 4)}, v{vK}
    ds_read_b128 {vr(Q[0], 4)}, v{T0}
    ds_read_b128 {vr(Q[1], 4)}, v{T0} offset:1024
    s_mov_b64 exec, s[16:17]
    ds_read_b128 {vr(V0[0], 4)}, v{vV}
    s_mov_b64 exec, s[14:15]''')
    stamp(a, 8)
    if 'as' in DBG:
        stamp(a, 1, True)
    a(f'''s_waitcnt lgkmcnt(2)
    {MFMA} {vr(S[0], 16)}, {vr(Kf, 4)}, {vr(Q[0], 4)}, 0
    s_waitcnt lgkmcnt(0)
    {MFMA} {vr(S[1], 16)}, {vr(Kf, 4)}, {vr(Q[1], 4)}, 0''')
    if young:
        for i in range(4):
            a(f'ds_write_b128 v{CXW}, {vr(CG + 4 * i, 4)} offset:{i * 1024}')
    rowmax(a, S[0], T0)
    rowmax(a, S[1], T0 + 1)
    set_m(a, T0, T0 + 2, M[0])
    a(f'{MFMA} {vr(S[0], 16)}, {vr(Kf, 4)}, {vr(Q[0], 4)}, {vr(M[0], 16)}')
    set_m(a, T0 + 1, T0 + 2, M[1])
    if PDRY:
        a(f'''s_cmp_eq_u32 s14, 0
        s_cbranch_scc1 L_DRY{y}''')
    if young:
        a('s_setprio 1')
    if 'as' in DBG:
        stamp(a, 2, True)
    NT = 32
    for u in range(2 * NT):
        t, q = u >> 1, u & 1
        s, sn = S[q], S[q ^ 1]

        def e(i):
            if young and q == 1 and i == 11 and PWIN:
                a('s_setprio 0')
            a(f'v_exp_f32 v{s + i}, v{s + i}')
            if young and q == 1 and i == 10 + PWIN and PWIN:
                a('s_setprio 1')

        if q == 0 and t + 1 in KV_G[:2]:
            if t + 1 == KV_G[1]:
                a('s_waitcnt vmcnt(0)')
            if 'as' in DBG:
                stamp(a, 3 if t + 1 == KV_G[0] else 7, True)
            a('s_barrier')
            if 'as' in DBG:
                stamp(a, 4 if t + 1 == KV_G[0] else 8, True)
            if young and t + 1 == KV_G[0]:
                for i in range(4):
                    a(f'ds_read_b128 {vr(CG + 4 * i, 4)}, v{CXR} offset:{i * 1024}')
        if young and u == 2 * KV_G[0] - 1:
            a('s_waitcnt lgkmcnt(0)')
            for i in range(0, 16, 2):
                a(f'v_pk_add_f32 {vr(CK + i, 2)}, {vr(CK + i, 2)}, {vr(CG + i, 2)}')
            cvt8(a, CG, CK)
            a(f'''buffer_store_dwordx4 {vr(CG, 4)}, v1, {WS_}, s62 offen sc1
            buffer_store_dwordx4 {vr(CG + 4, 4)}, v1, {WS_}, s62 offen offset:1024 sc1''')
        if q == 0 and t + 1 == KV_G[1]:
            stamp(a, 9)
        if 'as' in DBG and u in (6, 12, 30, 46, 62):
            stamp(a, {6: 5, 12: 6, 30: 9, 46: 10, 62: 11}[u], True)
        e(0)
        if q == 1:
            a('s_waitcnt lgkmcnt(0)')
        e(1)
        if u > 0:
            a(f'{SMF} {vr(O[q ^ 1], 16)}, {vr(V1, 4)}, {vr(sn + 8, 8)}, v{vIX}')
        if q == 0:
            a(f'''s_mov_b64 exec, s[12:13]
            ds_read_b128 {vr(V1, 4)}, v{vV} offset:{t * 1024 + 512}''')
            if t + 1 < NT:
                a(f'ds_read_b128 {vr(V0[(t + 1) & 1], 4)}, v{vV} offset:{(t + 1) * 1024}')
            a('s_mov_b64 exec, -1')
        nq = 6 if (q == 0 and t + 1 < NT) else 5
        for i in range(2, nq):
            e(i)
        if u + 1 < 2 * NT:
            a(f'{MFMA} {vr(sn, 16)}, {vr(Kf, 4)}, {vr(Q[q ^ 1], 4)}, {vr(M[q ^ 1], 16)}')
        if q == 0 and t + 1 < NT:
            a(f'ds_read_b128 {vr(Kf, 4)}, v{vK} offset:{(t + 1) * 1024}')
        for i in range(nq, 11):
            e(i)
        a(f'{SMF} {vr(O[q], 16)}, {vr(V0[t & 1], 4)}, {vr(s, 8)}, v{vIX}')
        for i in range(11, 16):
            e(i)
    keep = 1 if young else 0
    give = keep ^ 1
    a(f'''s_mul_i32 s54, s{sWV}, 3072
    s_add_u32 s54, s54, {L_CV}
    {SMF} {vr(O[1], 16)}, {vr(V1, 4)}, {vr(S[1] + 8, 8)}, v{vIX}
    v_add_u32 v{T0}, s54, v1
    s_xor_b32 s54, s{sWV}, 4
    s_mul_i32 s54, s54, 3072
    s_add_u32 s54, s54, {L_CV}
    v_add_u32 v{T0 + 1}, s54, v1
    s_add_u32 s{sQT}, s{sQT}, s{sKH}
    s_lshl_b32 s54, s{sQT}, 5
    s_add_u32 s54, s54, s{sH}
    s_mul_i32 s55, s{sQT}, {FS}
    s_lshl_b32 s56, s{sH}, {FSH}
    s_add_u32 s55, s55, s56
    s_add_u32 s55, s55, {FO}
    s_lshl_b32 s54, s54, 10
    s_add_u32 s54, s54, {OF}
    s_setprio 0''')
    stamp(a, 10)
    a(f'''v_mov_b32 v{O[give] + 9}, v{M[give]}
    ds_write_b128 v{T0}, {vr(O[give], 4)}
    ds_write_b128 v{T0}, {vr(O[give] + 4, 4)} offset:1024
    ds_write_b128 v{T0}, {vr(O[give] + 8, 4)} offset:2048''')
    if young:
        for i in range(9):
            a(f'v_mov_b32 v{O[0] + i}, v{O[1] + i}')
        for i in range(4):
            a(f'v_mov_b32 v{Q[0] + i}, v{Q[1] + i}')
        a(f'v_mov_b32 v{M[0]}, v{M[1]}')


def attn_tail(a):
    X = S[0]
    Oo, Mo = O[0], M[0]
    a(f'''L_ATT_X:
    s_waitcnt lgkmcnt(0)
    s_barrier
    ds_read_b128 {vr(X + 8, 4)}, v{T0 + 1} offset:2048
    ds_read_b128 {vr(X, 4)}, v{T0 + 1}
    ds_read_b128 {vr(X + 4, 4)}, v{T0 + 1} offset:1024
    s_mov_b32 s56, {f32(2.0 ** 60)}
    s_waitcnt lgkmcnt(2)
    v_min_f32 v{T0}, v{Mo}, v{X + 9}
    v_sub_f32 v{T0 + 2}, v{T0}, v{Mo}
    v_sub_f32 v{T0 + 3}, v{T0}, v{X + 9}
    v_exp_f32 v{T0 + 2}, v{T0 + 2}
    v_exp_f32 v{T0 + 3}, v{T0 + 3}
    v_cmp_nlt_f32 vcc, v{Oo + 8}, s56
    v_cmp_nlt_f32 s[58:59], v{X + 8}, s56
    v_mul_f32 v{T0}, v{Oo + 8}, v{T0 + 2}
    v_fma_f32 v{T0}, v{X + 8}, v{T0 + 3}, v{T0}
    s_or_b32 s58, s58, vcc_lo
    v_mov_b32 v{T0 + 1}, v{T0}
    s_cmp_lg_u32 s58, 0
    s_cbranch_scc1 L_REDO
    v_permlane32_swap_b32 v{T0}, v{T0 + 1}
    v_rcp_f32 v{T0}, v{T0}
    s_waitcnt lgkmcnt(0)
    v_mul_f32 v{T0 + 2}, v{T0 + 2}, v{T0}
    v_mul_f32 v{T0 + 3}, v{T0 + 3}, v{T0}''')
    for i in range(0, 8, 2):
        a(f'v_pk_mul_f32 {vr(Oo + i, 2)}, {vr(Oo + i, 2)}, {vr(T0 + 2, 2)} op_sel:[0,0] op_sel_hi:[1,0]')
    for i in range(0, 8, 2):
        a(f'v_pk_fma_f32 {vr(Oo + i, 2)}, {vr(X + i, 2)}, {vr(T0 + 2, 2)}, {vr(Oo + i, 2)} op_sel:[0,1,0] op_sel_hi:[1,1,1]')
    a('L_FIN:')
    cvt8(a, X, Oo, 4)
    a(f'buffer_store_dwordx4 {vr(X, 4)}, v1, {WS_}, s54 offen sc1')
    if NOX3:
        lds_add(a, SY_DONE, T0, T0 + 1)
    flag_set(a, 55, T0, T0 + 1)
    stamp(a, 11)
    stamp_flush(a)
    a('s_endpgm')
    a(f'''L_REDO:
    s_waitcnt lgkmcnt(0)
    v_mov_b32 v{T0}, 0xff800000
    v_add_u32 v{T0 + 2}, {L_K}, v1
    s_mov_b32 s57, 64
L_R1:
    ds_read_b128 {vr(Kf, 4)}, v{T0 + 2}
    v_add_u32 v{T0 + 2}, 1024, v{T0 + 2}
    s_waitcnt lgkmcnt(0)
    {MFMA} {vr(S[0], 16)}, {vr(Kf, 4)}, {vr(Q[0], 4)}, 0''')
    rowmax(a, S[0], T0 + 1)
    a(f'''v_max_f32 v{T0}, v{T0}, v{T0 + 1}
    s_sub_u32 s57, s57, 1
    s_cmp_lg_u32 s57, 0
    s_cbranch_scc1 L_R1''')
    set_m(a, T0, T0 + 1, Mo)
    for i in range(16):
        a(f'v_mov_b32 v{Oo + i}, 0')
    a(f'''v_add_u32 v{T0 + 2}, {L_K}, v1
    s_lshl_b32 s57, s{sKH}, 15
    v_subrev_u32 v{T0 + 3}, s57, v{vV}
    s_mov_b32 s57, 64
L_R2:
    ds_read_b128 {vr(Kf, 4)}, v{T0 + 2}
    s_mov_b64 exec, s[12:13]
    ds_read_b128 {vr(V0[0], 4)}, v{T0 + 3}
    ds_read_b128 {vr(V1, 4)}, v{T0 + 3} offset:512
    s_mov_b64 exec, -1
    v_add_u32 v{T0 + 2}, 1024, v{T0 + 2}
    v_add_u32 v{T0 + 3}, 1024, v{T0 + 3}
    s_waitcnt lgkmcnt(0)
    {MFMA} {vr(S[0], 16)}, {vr(Kf, 4)}, {vr(Q[0], 4)}, {vr(Mo, 16)}''')
    for i in range(16):
        a(f'v_exp_f32 v{S[0] + i}, v{S[0] + i}')
    a(f'''{SMF} {vr(Oo, 16)}, {vr(V0[0], 4)}, {vr(S[0], 8)}, v{vIX}
    {SMF} {vr(Oo, 16)}, {vr(V1, 4)}, {vr(S[0] + 8, 8)}, v{vIX}
    s_sub_u32 s57, s57, 1
    s_cmp_lg_u32 s57, 0
    s_cbranch_scc1 L_R2
    s_nop 9
    v_mov_b32 v{T0}, v{Oo + 8}
    v_mov_b32 v{T0 + 1}, v{Oo + 8}
    v_permlane32_swap_b32 v{T0}, v{T0 + 1}
    v_rcp_f32 v{T0}, v{T0}''')
    for i in range(8):
        a(f'v_mul_f32 v{Oo + i}, v{Oo + i}, v{T0}')
    a('s_branch L_FIN')


def aux(a):
    sC, sROW = 51, 53
    vGX, vGW, vWO, vID, D2 = 16, 24, 28, 36, 44
    vWD, vXD, vLD, vPR, vF = 5, 8, 12, 13, 60
    vm = VM(a)
    a(f"""L_AUX:
    s_setprio {LOAD_PRIO}
    s_and_b32 s{sC}, s{sWV}, 3
    v_lshrrev_b32 v{vWD}, 2, v0
    v_mul_u32_u24 v{vWD}, 3072, v{vWD}
    v_and_b32 v6, 3, v0
    v_lshl_add_u32 v{vWD}, v6, 4, v{vWD}
    s_lshl_b32 s54, s{sCB}, 6
    s_mul_i32 s55, s{sC}, 49152
    s_add_u32 s54, s54, s55
    s_mul_i32 s55, s{sC}, 3072
    s_add_u32 s55, s55, {L_K}
    s_lshl_b32 s56, s{sRB}, 2
    s_add_u32 s56, s56, s{sC}
    s_lshl_b32 s56, s56, 15
    s_lshl_b32 s57, s{sC}, 12
    s_add_u32 s57, s57, {L_K + 12288}
    s_mov_b32 s58, s{sR}
    v_lshrrev_b32 v6, 4, v0
    v_and_b32 v7, 7, v0
    v_xor_b32 v6, v6, v7
    v_lshlrev_b32 v6, 4, v6
    v_lshrrev_b32 v7, 3, v0
    v_lshl_add_u32 v{vXD}, v7, 10, v6
    v_xor_b32 v{vXD + 1}, 64, v{vXD}
    v_add_u32 v{vXD + 2}, {2 * 7168}, v{vXD}
    v_add_u32 v{vXD + 3}, {3 * 7168}, v{vXD + 1}
    v_add_u32 v{vXD + 1}, 7168, v{vXD + 1}""")
    srd(a, sW, 6, 0x180000)
    a(f"""v_mov_b32 v14, 0
    v_mov_b32 v15, {L_SY + SY_NONCE}
    s_mov_b32 s{sNON}, 0
    s_lshl_b32 s59, s2, 4
    s_add_u32 s59, s59, s{sWV}
    s_cmp_lg_u32 s59, 8
    s_cbranch_scc1 L_TAG_MADE
    s_memrealtime s[60:61]
    s_waitcnt lgkmcnt(0)
    s_mul_i32 s60, s60, 0x9e3779b1
    s_or_b32 s60, s60, 1
    v_mov_b32 v7, s60
    s_mov_b64 exec, 1
    global_store_dword v14, v7, s[30:31] sc1
    s_mov_b64 exec, -1
L_TAG_MADE:""")

    def landed(st, tag=True):
        vm.wait(st)
        a(f'ds_write_b32 v{vLD}, v{24 + st}')
        if tag and st in TAG_ST:
            a(f"""s_mov_b64 exec, 1
            ds_or_b32 v15, v{16 + st}
            s_mov_b64 exec, -1""")

    for st in range(8):
        if 'st' in DBG and st < 3:
            stamp(a, 7 + st, True)
        if st == 1:
            a(f"""s_lshl_b32 s59, s{sC}, 2
            s_add_u32 s59, s59, {L_SY + SY_LD}
            v_mov_b32 v{vLD}, s59
            v_mov_b32 v{vPR}, {L_SY + SY_PR}""")
            for i in range(8):
                a(f'v_mov_b32 v{24 + i}, {i + 1}')
        slot = (st if st < 4 else st - NSLOT) * SLOT
        if st >= NSLOT and ADAPT:
            l = a.lab('FR')
            a(f"""ds_read_b128 {vr(vF, 4)}, v{vPR}
            s_waitcnt lgkmcnt(0)
            v_min3_u32 v{vF}, v{vF}, v{vF + 1}, v{vF + 2}
            v_min_u32 v{vF}, v{vF}, v{vF + 3}
            s_nop 0
            v_readfirstlane_b32 s64, v{vF}
            s_cmp_ge_u32 s64, {st - NSLOT + 1}
            s_cbranch_scc1 {l}""")
            landed(st - 1, tag=False)
            min4_wait(a, vPR, vF, st - NSLOT + 1)
            a(f'{l}:')
        elif st >= NSLOT:
            min4_wait(a, vPR, vF, st - NSLOT + 1)
        elif st == 4:
            a(f'v_mov_b32 v6, {L_SY + SY_TAB}')
            lds_wait(a, 6, 2, 7, sleep=True)
        if st in TAG_ST:
            vm.issue(st, f'global_load_dword v{16 + st}, v14, s[30:31] sc1')
        a(f"""s_mul_i32 s59, s58, 196608
        s_add_u32 s59, s59, s54
        s_add_u32 m0, s55, {slot}
        s_lshl_b32 s60, s58, 7""")
        for sg in range(3):
            vm.issue(st, f'buffer_load_dwordx4 v{vWD}, {W_}, s59 offen offset:{sg * 1024} lds')
        a(f"""s_add_u32 m0, s57, {slot}
        s_add_u32 s60, s60, s56""")
        for q in range(4):
            vm.issue(st, f'buffer_load_dwordx4 v{vXD + q}, {X_}, s60 offen offset:{q * 1024} lds')
        a("""s_add_u32 s58, s58, 1
        s_and_b32 s58, s58, 7""")
        order = {2: [0], 3: [1, 2]}.get(st, [st - 1] if st >= 4 else []) if LAG == 2 else [st - 1] if st else []
        for k in order:
            landed(k)
            if 'gs' in DBG:
                stamp(a, 5 + k, True)
    landed(7)
    a(f"""s_setprio 0
    ds_read_b32 v16, v15
    s_mov_b32 s65, {SPIN_G}
    s_waitcnt lgkmcnt(0)
    v_readfirstlane_b32 s{sNON}, v16
L_TAG_P:
    s_cmp_lg_u32 s{sNON}, 0
    s_cbranch_scc1 L_TAG_OK
    global_load_dword v16, v14, s[30:31] sc1
    s_waitcnt vmcnt(0)
    v_readfirstlane_b32 s{sNON}, v16
    s_sub_u32 s65, s65, 1
    s_cbranch_scc0 L_TAG_P
    s_mov_b32 s{sNON}, 1
L_TAG_OK:
    v_mov_b32 v16, s{sNON}
    ds_write_b32 v15, v16""")
    stamp(a, 1)
    diag(a, 1)
    a(f"""s_and_b32 s60, s2, 7
    s_lshl_b32 s60, s60, 5
    s_lshr_b32 s61, s2, 3
    s_add_u32 s60, s60, s61
    s_lshr_b32 s57, s60, 4
    s_mul_i32 s57, s57, {FS}
    s_add_u32 s57, s57, {FX}
    s_lshl_b32 s60, s60, 13
    s_lshl_b32 s61, s{sC}, 11
    s_add_u32 s60, s60, s61
    s_add_u32 s60, s60, {XT}
    s_lshr_b32 s61, s{sC}, 1
    s_mul_i32 s61, s61, {CVS}
    s_and_b32 s62, s{sC}, 1
    s_mul_i32 s62, s62, 3072
    s_add_u32 s61, s61, s62
    v_and_b32 v5, 15, v0
    v_lshlrev_b32 v5, {FSH}, v5""")
    relay_wait(a, 8, SY_XOK, lambda: flag_wait(a, 5, 57, 7), 6, 7)
    a(f'v_mov_b32 v6, {L_SY + SY_TAB}')
    lds_wait(a, 6, 2, 7, sleep=True)
    if NSLOT == 5:
        min4_wait(a, vPR, vF, 5)
    a(f"""s_add_u32 m0, s61, {L_CV + L_U + 512}
    s_nop 0
    buffer_load_dwordx4 v1, {WS_}, s60 offen sc1 lds
    s_add_u32 m0, s61, {L_CV + L_U + 1024}
    s_nop 0
    buffer_load_dwordx4 v1, {WS_}, s60 offen offset:1024 sc1 lds""")
    vID = 8
    if LATE_W == 0:
        side_loads(a, 11)
    identity_frags(a, vID, 2, 3, 6, 7, 12)
    if LATE_W == 0:
        side_work(a, 11, 0, vID)
    a('s_waitcnt vmcnt(0)')
    lds_add(a, SY_U, 6, 7)
    sG, sL = 54, 55
    vm = VM(a)
    a(f'''s_and_b32 s56, s2, 31
    s_lshr_b32 s57, s56, 1
    s_mul_i32 s57, s57, {FS}
    s_add_u32 s57, s57, {FQ}
    s_lshl_b32 s56, s56, 16
    s_lshr_b32 s58, s{sC}, 1
    s_lshl_b32 s58, s58, 15
    s_and_b32 s59, s{sC}, 1
    s_lshl_b32 s{sL}, s59, 16
    s_add_u32 s{sL}, s{sL}, s58
    s_add_u32 s{sL}, s{sL}, {L_K}
    s_mul_i32 s{sG}, s59, {VF - KF}
    s_add_u32 s{sG}, s{sG}, s58
    s_add_u32 s{sG}, s{sG}, s56
    s_add_u32 s{sG}, s{sG}, {KF}
    s_lshr_b32 s58, s2, 5
    s_lshl_b32 s58, s58, 2
    s_add_u32 s58, s58, s{sC}
    s_lshl_b32 s58, s58, 11
    s_add_u32 s56, s56, s58
    s_add_u32 s56, s56, {QF}
    v_mov_b32 v6, {L_SY + SY_FREE}
    v_and_b32 v5, 15, v0
    v_lshlrev_b32 v5, {FSH}, v5''')
    lds_wait(a, 6, 8, 7, sleep=True)
    stamp(a, 3)

    def poll_q():
        a(f'v_mov_b32 v16, {L_SY + SY_Q}')
        lds_wait(a, 16, 4, 7, sleep=True)
        if FAST:
            flag_wait_fast(a, 5, 57, 18)
        else:
            flag_wait(a, 5, 57, 7)

    if ALLPOLL:
        poll_q()
    else:
        relay_wait(a, 8, SY_QOK, poll_q, 6, 7)
    a('s_waitcnt vmcnt(0)')
    stamp(a, 4)
    a(f'''s_lshl_b32 s58, s{sC}, 11
    s_add_u32 m0, s58, {L_T}
    s_nop 0''')
    for i in range(2):
        vm.issue('q', f'buffer_load_dwordx4 v1, {WS_}, s56 offen offset:{i * 1024} sc1 lds')

    def kv(t0, t1):
        for t in range(t0, t1):
            if t == t0 or t % 4 == 0:
                a(f'''s_add_u32 m0, s{sL}, {(t & ~3) * 1024}
                s_add_u32 s58, s{sG}, {(t & ~3) * 1024}''')
            vm.issue(t, f'buffer_load_dwordx4 v1, {WS_}, s58 offen offset:{(t & 3) * 1024} sc1 lds')

    kv(0, KV_G[1])
    vm.wait(KV_G[0] - 1)
    a('''s_setprio 3
    s_barrier''')
    stamp(a, 5)
    diag(a, 2)
    kv(KV_G[1], KV_G[2])
    vm.wait(KV_G[1] - 1)
    a('s_barrier')
    if LATE_W == 1:
        side_loads(a, 11)
    kv(KV_G[2], 32)
    if LATE_W == 1 and SIDE_PRE:
        side_work(a, 11, 32 - KV_G[2], vID)
        a('''s_waitcnt vmcnt(1)
        s_barrier''')
    else:
        a('''s_waitcnt vmcnt(0)
        s_barrier''')
        if LATE_W == 1:
            side_work(a, 11, 0, vID)
    a(f'''s_lshl_b32 s4, s2, 2
    s_add_u32 s4, s4, {FW}''')
    group_flag_set(a, SY_W, 4, 6, 7)
    stamp(a, 2)
    stamp(a, 6)

    a('s_setprio 3')
    sT3, sC3 = 52, 53
    vG, vOA, BTM, acc, FR, WO = 5, 6, 8, 16, (32, 36), 40
    a(f'''s_setprio 3
    s_and_b32 s{sT3}, s2, 7
    s_lshl_b32 s{sT3}, s{sT3}, 3
    s_bfe_u32 s54, s2, 0x30003
    s_add_u32 s{sT3}, s{sT3}, s54
    s_lshr_b32 s{sC3}, s2, 6
    s_mov_b32 s54, {FW}
    ''')

    def poll_w():
        flag_wait(a, 1, 54, acc, n=4, sleep=8)

    relay_wait(a, 8, SY_WOK, poll_w, 6, 7)
    a(f"""s_lshl_b32 s56, s2, 4
    s_add_u32 s56, s56, s{sWV}
    s_cmp_lg_u32 s56, 8
    s_cbranch_scc1 L_TAG_KEEP
    v_mov_b32 v6, 0
    s_mov_b64 exec, 1
    global_store_dword v6, v6, s[30:31] sc1
    s_mov_b64 exec, -1
L_TAG_KEEP:""")
    vBT, vI3, accb = FR[0], BTM, acc
    a(f"""s_lshl_b32 s{sC3}, s{sC3}, 2
    s_add_u32 s{sC3}, s{sC3}, s{sC}
    v_lshlrev_b32 v6, 12, v4
    v_lshl_add_u32 v6, v3, 9, v6
    s_lshl_b32 s54, s{sC3}, 17
    s_lshr_b32 s55, s{sT3}, 5
    s_lshl_b32 s55, s55, 11
    s_add_u32 s54, s54, s55
    s_and_b32 s55, s{sT3}, 31
    s_lshl_b32 s55, s55, 4
    s_add_u32 s54, s54, s55
    s_add_u32 s54, s54, {BT}
    s_lshl_b32 s55, s{sT3}, 7
    s_add_u32 s55, s55, {GG}
    v_lshlrev_b32 v7, 2, v2
    buffer_load_dwordx4 {vr(vBT, 4)}, v6, {WS_}, s54 offen sc1
    buffer_load_dwordx4 {vr(vBT + 4, 4)}, v6, {WS_}, s54 offen offset:1024 sc1
    buffer_load_dword v{vG}, v7, {WS_}, s55 offen sc1
    s_lshl_b32 s54, s{sC3}, 15
    s_add_u32 s54, s54, {WOF}""")
    for k in range(32):
        if k and k % 4 == 0:
            a('s_add_u32 s54, s54, 4096')
        a(f'buffer_load_dwordx4 {vr(WO + 4 * k, 4)}, v1, {WS_}, s54 offen offset:{(k & 3) * 1024} sc1')
    a(f"""s_waitcnt vmcnt(32)
    {MFMA} {vr(accb, 16)}, {vr(vBT, 4)}, {vr(vI3, 4)}, 0
    {MFMA} {vr(accb, 16)}, {vr(vBT + 4, 4)}, {vr(vI3 + 4, 4)}, {vr(accb, 16)}
    v_sub_f32 v7, 1.0, v{vG}
    v_lshlrev_b32 v{vOA}, 10, v2
    v_lshl_add_u32 v{vOA}, v3, 4, v{vOA}""")
    for i in range(0, 16, 2):
        a(f'v_pk_mul_f32 {vr(accb + i, 2)}, {vr(accb + i, 2)}, v[6:7] op_sel:[0,1] op_sel_hi:[1,1]')
    cvt8(a, BTM, accb)
    a(f'''s_mul_i32 s54, s{sT3}, {FS}
    s_add_u32 s54, s54, {FO}
    s_lshl_b32 s55, s{sT3}, 15
    s_add_u32 s55, s55, {OF}
    s_lshl_b32 s56, s{sC}, 10
    s_add_u32 s55, s55, s56
    s_lshl_b32 s57, s{sT3}, 15
    s_lshl_b32 s58, s{sC3}, 6
    s_add_u32 s57, s57, s58
    v_lshlrev_b32 v7, {FSH}, v2''')
    if OUT_LDS:
        a(f'''s_mul_i32 s58, s{sC}, 2560
        s_add_u32 s58, s58, {L_V}
        v_mul_u32_u24 v2, 80, v2
        v_lshl_add_u32 v2, v3, 4, v2
        v_add_u32 v2, s58, v2
        v_lshrrev_b32 v{vOA}, 2, v0
        v_and_b32 v0, 3, v0
        v_mul_u32_u24 v3, 80, v{vOA}
        v_lshl_add_u32 v3, v0, 4, v3
        v_add_u32 v3, s58, v3
        v_lshlrev_b32 v{vOA}, 10, v{vOA}
        v_lshl_add_u32 v{vOA}, v0, 4, v{vOA}''')
    srd(a, sOUT, 28, 0x200000)
    stamp(a, 7)
    a('s_barrier')
    diag(a, 3)
    if NOX3:
        stamp(a, 8)

        def poll_o():
            flag_wait(a, 7, 54, FR[0], n=1, sleep=OSLEEP)
            a(f'v_mov_b32 v{FR[0]}, {L_SY + SY_DONE}')
            lds_wait(a, FR[0], 8, FR[0] + 1, sleep=True)

        relay_wait(a, 8, SY_OOK, poll_o, FR[1], FR[1] + 1)
        a('s_waitcnt vmcnt(0)')
    else:
        a('s_barrier')
        stamp(a, 8)
        if ALLPOLL > 1:
            flag_wait(a, 7, 54, FR[0], n=1, sleep=OSLEEP)
        else:
            a(f'''s_cmp_lg_u32 s{sWV}, 8
            s_cbranch_scc1 L_OWAIT''')
            flag_wait(a, 7, 54, FR[0], n=1, sleep=OSLEEP)
            a('''L_OWAIT:
            s_waitcnt vmcnt(0)
            s_barrier''')
    stamp(a, 9)
    diag(a, 4)
    for i in range(8):
        a(f'''s_add_u32 m0, s56, {L_K + i * 4096}
        s_nop 0
        buffer_load_dwordx4 v1, {WS_}, s55 offen sc1 lds
        s_add_u32 s55, s55, 4096''')
    for c in range(4):
        a(f'''s_waitcnt vmcnt({6 - 2 * c})
        s_barrier
        ds_read_b128 {vr(FR[0], 4)}, v1 offset:{L_K + 8 * c * 1024}''')
        for k in range(8 * c, 8 * c + 8):
            if k + 1 < 8 * c + 8:
                a(f'''ds_read_b128 {vr(FR[(k + 1) & 1], 4)}, v1 offset:{L_K + (k + 1) * 1024}
                s_waitcnt lgkmcnt(1)''')
            else:
                a('s_waitcnt lgkmcnt(0)')
            a(f'{MFMA} {vr(acc, 16)}, {vr(WO + 4 * k, 4)}, {vr(FR[k & 1], 4)}, {vr(acc, 16) if k else 0}')
    stamp(a, 10)
    for i in range(8):
        a(f'''v_lshlrev_b32 v{WO + 2 * i}, 16, v{BTM + i}
        v_and_b32 v{WO + 2 * i + 1}, 0xffff0000, v{BTM + i}''')
    for i in range(0, 16, 2):
        a(f'v_pk_fma_f32 {vr(acc + i, 2)}, {vr(acc + i, 2)}, v[4:5], {vr(WO + i, 2)} op_sel:[0,1,0] op_sel_hi:[1,1,1]')
    cvt8(a, BTM, acc)
    if OUT_LDS:
        a(f'''ds_write_b128 v2, {vr(BTM, 4)}
        ds_write_b128 v2, {vr(BTM + 4, 4)} offset:32
        s_add_u32 s58, s57, 16384
        s_waitcnt lgkmcnt(0)
        ds_read_b128 {vr(BTM, 4)}, v3
        ds_read_b128 {vr(BTM + 4, 4)}, v3 offset:{16 * 80}
        s_waitcnt lgkmcnt(1)
        buffer_store_dwordx4 {vr(BTM, 4)}, v{vOA}, {OUT_}, s57 offen {OUTF}
        s_waitcnt lgkmcnt(0)
        buffer_store_dwordx4 {vr(BTM + 4, 4)}, v{vOA}, {OUT_}, s58 offen {OUTF}''')
    else:
        a(f'''buffer_store_dwordx4 {vr(BTM, 4)}, v{vOA}, {OUT_}, s57 offen {OUTF}
        buffer_store_dwordx4 {vr(BTM + 4, 4)}, v{vOA}, {OUT_}, s57 offen offset:32 {OUTF}''')
    stamp(a, 11)
    stamp_flush(a)
    diag_end(a)
    a('''L_END:
    s_endpgm''')


def kernel(a):
    prologue(a)
    gemm(a)
    attn_loop(a, False)
    a('s_branch L_ATT_X')
    for f in a.deferred:
        f()
    kgen_conv(a)
    attn_loop(a, True)
    attn_tail(a)
    aux(a)


def build():
    here = os.path.dirname(os.path.abspath(__file__))
    ref = open(os.path.join(here, '..', 'cdna_kernels', NAME + '.s.ref')).read().split('\n')
    head = [l for l in ref if l.startswith(';') and 'launch' not in l.lower() and 'lds=0' not in l]
    out = '\n'.join(head) + '\n'
    name = NAME + '_kernel'
    out += f'; @launch grid=(256,1,1) block=(768,1,1) lds={LDS_BYTES}\n'
    out += '.amdgcn_target "amdgcn-amd-amdhsa--gfx950"\n.text\n'
    a = Gen()
    kernel(a)
    bad = a.check_branches()
    if bad:
        for b in bad:
            print('BRANCH HAZARD', b, file=sys.stderr)
        sys.exit(1)
    if ENV('SHOWPAD'):
        for p in a.padded:
            print('pad', p, file=sys.stderr)
    out += f'.globl {name}\n.p2align 8\n.type {name},@function\n{name}:\n' + a.text()
    out += f'''.section .rodata,"a"
.p2align 6
.amdhsa_kernel {name}
  .amdhsa_next_free_vgpr 168
  .amdhsa_next_free_sgpr 100
  .amdhsa_accum_offset 168
  .amdhsa_group_segment_fixed_size 0
  .amdhsa_kernarg_size 112
  .amdhsa_user_sgpr_count 2
  .amdhsa_user_sgpr_kernarg_segment_ptr 1
  .amdhsa_system_sgpr_workgroup_id_x 1
.end_amdhsa_kernel
'''
    return out


if __name__ == '__main__':
    dst = sys.argv[1] if len(sys.argv) > 1 else os.path.join(os.path.dirname(os.path.abspath(__file__)), '..', 'cdna_kernels', NAME + '.s')
    open(dst, 'w').write(build())
    print('wrote', dst)
```
